```python
import torch

def _softmax(x, axis=-1):
    return torch.softmax(x, dim=axis)

def _gelu(x):
    return torch.nn.functional.gelu(x, approximate='tanh')

def _silu(x):
    return torch.nn.functional.silu(x)

def _sigmoid(x):
    return torch.sigmoid(x)

def _layernorm(x, axis=-1, eps=1e-05):
    m = x.mean(dim=axis, keepdim=True)
    v = x.var(dim=axis, keepdim=True, unbiased=False)
    return (x - m) / torch.sqrt(v + eps)

def _scatter_add(tgt, idx, src, axis=0):
    return tgt.clone().index_add_(axis, idx, src)

def _segment_sum(src, seg, n):
    out = torch.zeros((n,) + src.shape[1:], dtype=src.dtype)
    return out.index_add_(0, seg, src)

def _pad(x, pw):
    flat = tuple((v for pair in reversed(pw) for v in pair))
    return torch.nn.functional.pad(x, flat)
kernel_name = 'adaLN_cond__sliding_local_dilated__mixer_channel_mlp__prompt'

def setup_inputs():

    _w = lambda a: (lambda t: t.to(torch.bfloat16) if t.is_floating_point() else t)(torch.as_tensor(a))

    def _A_setup():
        B, S, D = (1, 2048, 640)
        return {'x': _w((lambda *s: torch.randn(*s, dtype=torch.bfloat16) * 0.05)(B, S, D)), 'wqkv': _w((lambda *s: torch.randn(*s, dtype=torch.bfloat16) * 0.05)(D, 3 * D)), 'wo': _w((lambda *s: torch.randn(*s, dtype=torch.bfloat16) * 0.05)(D, D))}
    _A_in = _A_setup()

    def _B_setup():
        B, S, D, F = (1, 2048, 640, 1728)
        return {'x': _w((lambda *s: torch.randn(*s, dtype=torch.bfloat16) * 0.05)(B, S, D)), 'w1': _w((lambda *s: torch.randn(*s, dtype=torch.bfloat16) * 3.2)(D, F) * D ** (-0.5)), 'b1': _w((lambda *s: torch.randn(*s, dtype=torch.bfloat16) * 1.6)(F)), 'w2': _w((lambda *s: torch.randn(*s, dtype=torch.bfloat16) * 0.4)(F, D) * F ** (-0.5)), 'b2': _w((lambda *s: torch.randn(*s, dtype=torch.bfloat16) * 0.8)(D))}
    _B_in = _B_setup()
    return {'A_x': _A_in['x'], 'A_wqkv': _A_in['wqkv'], 'A_wo': _A_in['wo'], 'B_x': _B_in['x'], 'B_w1': _B_in['w1'], 'B_b1': _B_in['b1'], 'B_w2': _B_in['w2'], 'B_b2': _B_in['b2'], 'c': _w((lambda *s: torch.randn(*s, dtype=torch.bfloat16) * 0.1)(1, 640) * 8.0), 'w_mod': _w((lambda *s: torch.randn(*s, dtype=torch.bfloat16) * 0.1)(640, 6 * 640) * 640 ** (-0.5) * 8.0)}

def reference(A_x, A_wqkv, A_wo, B_x, B_w1, B_b1, B_w2, B_b2, c, w_mod):

    def _A_ref(x, wqkv, wo):
        B, S, D = x.shape
        H = 32
        Dh = D // H
        W, dil = (8, 2)
        qkv = (lambda x, *d: x.permute(*d))((x @ wqkv).reshape(B, S, 3, H, Dh), 2, 0, 3, 1, 4)
        q, k, v = (qkv[0], qkv[1], qkv[2])
        scale = Dh ** (-0.5)
        pos = torch.arange(S)
        off = torch.arange(W) * dil
        idx = pos[:, None] - off[None, :]
        mask = idx >= 0
        idx_c = torch.where(mask, idx, 0).reshape(-1)
        kg = k[:, :, idx_c, :].reshape(B, H, S, W, Dh)
        vg = v[:, :, idx_c, :].reshape(B, H, S, W, Dh)
        logits = torch.einsum('bhsd,bhswd->bhsw', q, kg) * scale
        logits = torch.where(mask[None, None, :, :], logits, -1000000000.0)
        attn = _softmax(logits, axis=-1)
        o = torch.einsum('bhsw,bhswd->bhsd', attn, vg)
        return (lambda x, *d: x.permute(*d))(o, 0, 2, 1, 3).reshape(B, S, D) @ wo

    def _B_ref(x, w1, b1, w2, b2):
        y = _layernorm(x, axis=-1)
        h = _gelu(torch.einsum('bsd,df->bsf', y, w1) + b1)
        return torch.einsum('bsf,fd->bsd', h, w2) + b2
    x = A_x
    mod = (_silu(c) @ w_mod).reshape(c.shape[0], 6, 1, -1)
    sa, ca, ga, sb, cb, gb = (mod[:, 0].clone(), mod[:, 1].clone(), mod[:, 2].clone(), mod[:, 3].clone(), mod[:, 4].clone(), mod[:, 5].clone())
    h = _layernorm(x, axis=-1) * (1 + ca) + sa
    x = x + ga * _A_ref(h, A_wqkv, A_wo)
    h = _layernorm(x, axis=-1) * (1 + cb) + sb
    x = x + gb * _B_ref(h, B_w1, B_b1, B_w2, B_b2)
    return x
```

```python
import re

REG_RE = re.compile(r'\b([vas])(\d+)\b|\b([vas])\[(\d+):(\d+)\]|\b(vcc|exec|m0|scc)\b')
TRANS = ('v_exp_f32', 'v_log_f32', 'v_rcp_f32', 'v_rsq_f32', 'v_sqrt_f32', 'v_sin_f32', 'v_cos_f32')

def regs_of(tok):
    out = set()
    for m in REG_RE.finditer(tok):
        if m.group(1):
            out.add((m.group(1), int(m.group(2))))
        elif m.group(3):
            for i in range(int(m.group(4)), int(m.group(5)) + 1):
                out.add((m.group(3), i))
        else:
            out.add((m.group(6), 0))
    return out

def split_ops(s):
    ops, depth, cur = [], 0, ''
    for ch in s:
        if ch == '[': depth += 1
        if ch == ']': depth -= 1
        if ch == ',' and depth == 0:
            ops.append(cur.strip()); cur = ''
        else:
            cur += ch
    if cur.strip(): ops.append(cur.strip())
    return ops

class Ins:
    def __init__(self, text, tag=None):
        self.text = text.strip()
        self.tag = tag
        t = self.text.split(';')[0].strip()
        self.op = t.split()[0] if t else ''
        rest = t[len(self.op):].strip()
        self.ops = split_ops(rest)
        self.classify()

    def classify(self):
        op, ops = self.op, self.ops
        self.kind = 'other'; self.w = set(); self.r = set()
        self.dpp = False; self.perm = False; self.rdlane = False; self.srcC = set(); self.srcAB = set()
        self.wide_store = False; self.lds_dma = False; self.passes = 0
        allr = [regs_of(o) for o in ops]
        uni = lambda lst: set().union(*lst) if lst else set()
        if op.endswith(':') or op.startswith('.') or op == '':
            self.kind = 'label'; return
        if op.startswith('v_mfma'):
            self.kind = 'mfma'; self.w = allr[0]; self.srcAB = allr[1] | allr[2]; self.srcC = allr[3]
            self.r = self.srcAB | self.srcC
            self.passes = 8 if '32x32' in op else 4
            return
        if op.startswith('v_'):
            self.kind = 'valu'
            base = op.replace('_e32', '').replace('_e64', '').replace('_dpp', '').replace('_sdwa', '')
            if base in TRANS: self.kind = 'trans'
            if base.startswith('v_dot2'): self.kind = 'dot'
            self.dpp = ('_dpp' in op) or any(k in self.text for k in ('row_shr', 'row_ror', 'row_shl', 'quad_perm', 'row_mirror', 'row_half_mirror', 'row_bcast', 'row_newbcast'))
            if base.startswith('v_permlane'):
                self.perm = True; self.w = allr[0] | allr[1]; self.r = allr[0] | allr[1]; return
            if base in ('v_readfirstlane_b32', 'v_readlane_b32'):
                self.rdlane = True
            if base in ('v_add_co_u32', 'v_sub_co_u32', 'v_addc_co_u32', 'v_subb_co_u32', 'v_subrev_co_u32', 'v_mad_u64_u32'):
                self.w = allr[0] | allr[1]; self.r = uni(allr[2:]); return
            self.w = allr[0]; self.r = uni(allr[1:])
            if base in ('v_fmac_f32', 'v_dot2c_f32_bf16', 'v_writelane_b32', 'v_pk_fmac_f16') or self.dpp or 'UNUSED_PRESERVE' in self.text:
                self.r |= allr[0]
            if base.startswith('v_cmpx'): self.w |= {('exec', 0)}
            return
        if op.startswith('buffer_') or op.startswith('global_'):
            toks = self.text.split(';')[0].split()
            if op in ('buffer_inv', 'buffer_wbl2'):
                self.kind = 'vstore'; return
            if 'lds' in toks or '_lds_' in op:
                self.kind = 'vload'; self.lds_dma = True; self.r = uni(allr) | {('m0', 0)}; return
            if '_load_' in op:
                self.kind = 'vload'; self.w = allr[0]; self.r = uni(allr[1:])
                if 'd16' in op: self.r |= allr[0]
                return
            if '_atomic_' in op:
                if 'sc0' in toks:
                    self.kind = 'vload'
                    self.w = allr[0]; self.r = uni(allr) if op.startswith('buffer_') else uni(allr[1:])
                else:
                    self.kind = 'vstore'; self.r = uni(allr)
                return
            self.kind = 'vstore'; self.r = uni(allr)
            self.wide_store = ('x3' in op or 'x4' in op)
            self.sdata = allr[0] if op.startswith('buffer_') else allr[1]
            return
        if op.startswith('ds_'):
            if op.startswith('ds_read') or 'permute' in op or 'swizzle' in op or '_rtn_' in op:
                self.kind = 'dsread'; self.w = allr[0]; self.r = uni(allr[1:])
                if 'd16' in op: self.r |= allr[0]
            else:
                self.kind = 'dswrite'; self.r = uni(allr)
            return
        if op.startswith('s_load') or op.startswith('s_buffer_load') or op in ('s_memtime', 's_memrealtime'):
            self.kind = 'smem'; self.w = allr[0]; self.r = uni(allr[1:]); return
        if op == 's_waitcnt': self.kind = 'wait'; return
        if op == 's_nop': self.kind = 'nop'; return
        if op in ('s_barrier', 's_endpgm', 's_sleep', 's_setprio') : self.kind = 'misc'; return
        if op.startswith('s_cbranch') or op == 's_branch': self.kind = 'branch'; return
        if op.startswith('s_cmp') or op.startswith('s_bitcmp'):
            self.kind = 'salu'; self.r = uni(allr); return
        if op.startswith('s_'):
            self.kind = 'salu'; self.w = allr[0] if allr else set(); self.r = uni(allr[1:])
            if 'saveexec' in op: self.w |= {('exec', 0)}
            if op in ('s_addk_i32', 's_mulk_i32', 's_cmov_b32'): self.r |= allr[0]
            return
        raise ValueError('unknown instr: ' + self.text)

    def is_valu(self): return self.kind in ('valu', 'trans', 'dot')
    def states(self):
        if self.kind == 'label': return 0
        if self.kind == 'nop': return int(self.ops[0], 0) + 1
        return 1

def vg(s): return {x for x in s if x[0] in 'va' and x[0] != 'vcc'}
def isv(x): return x[0] == 'v' or x[0] == 'a'
def iss(x): return x[0] == 's' or x[0] == 'vcc'

def need_ws(p, c):
    n = 0
    pw_v = {x for x in p.w if isv(x)}
    pw_s = {x for x in p.w if iss(x)}
    if p.is_valu():
        if c.kind == 'mfma' and (pw_v & c.r): n = max(n, 2 if p.kind != 'dot' else 3)
        if c.is_valu():
            if c.dpp and (pw_v & c.r): n = max(n, 2)
            if c.perm and (pw_v & c.r): n = max(n, 2)
            if c.rdlane and (pw_v & c.r): n = max(n, 1)
            if pw_s & c.r: n = max(n, 4 if c.rdlane or c.op.startswith('v_writelane') else 2)
            if p.kind == 'trans' and c.kind != 'trans' and (pw_v & c.r): n = max(n, 1)
            if ('sdwa' in p.op or 'op_sel' in p.text) and (pw_v & (c.r | c.w)): n = max(n, 1)
        if p.kind == 'trans' and c.kind in ('vstore', 'dswrite', 'vload', 'dsread') and (pw_v & c.r): n = max(n, 1)
        if p.kind == 'dot':
            if c.kind == 'dot' and c.op == p.op:
                ab = (regs_of(c.ops[1]) | regs_of(c.ops[2]))
                if pw_v & ab: n = max(n, 3)
            elif (pw_v & (c.r | c.w)): n = max(n, 3)
        if c.kind in ('vload', 'vstore') and (pw_s & c.r): n = max(n, 5)
        if ('exec', 0) in p.w:
            if c.kind == 'mfma' or c.perm or c.rdlane: n = max(n, 4)
            if c.dpp: n = max(n, 5)
    if p.kind == 'salu' and ('m0', 0) in p.w and c.lds_dma: n = max(n, 1)
    if p.kind == 'mfma':
        big = p.passes == 8
        if c.kind == 'mfma':
            if p.w & c.srcAB: n = max(n, 12 if big else 8)
            if p.w & c.srcC:
                if not (p.w == c.srcC and p.passes == c.passes): n = max(n, 10 if big else 6)
            elif p.w & c.w:
                n = max(n, 12 if big else 8)
        elif c.is_valu() or c.kind in ('vload', 'vstore', 'dsread', 'dswrite'):
            if p.w & (c.r | c.w): n = max(n, 12 if big else 8)
        if c.is_valu() and (p.srcC & c.w): n = max(n, 7 if big else 3)
    if p.kind == 'vstore' and p.wide_store:
        if (p.sdata & c.w): n = max(n, 2)
    return n

class Asm:
    def __init__(self):
        self.ins = []
    def __call__(self, text, tag=None):
        for line in text.split('\n'):
            line = line.strip()
            if line and not line.startswith(';'):
                self.ins.append(Ins(line, tag))
    def label(self, name): self.ins.append(Ins(name + ':'))
    def wait_tag(self, tag):
        i = Ins('s_waitcnt'); i.kind = 'waittag'; i.tag = tag; self.ins.append(i)
    def wait_all(self): self('s_waitcnt vmcnt(0) lgkmcnt(0)')

    def finish(self):
        out = []
        vq = []
        lq = []
        def emit(i):
            need = 0; dist = 0
            for p in reversed(out):
                if p.kind == 'label' and not p.op.startswith('.'):
                    pass
                k = need_ws(p, i)
                if k - dist > need: need = k - dist
                dist += p.states()
                if dist >= 20: break
            while need > 0:
                n = min(need, 16)
                out.append(Ins('s_nop %d' % (n - 1))); need -= n
            out.append(i)
        def do_wait(vn, ln):
            nonlocal vq, lq
            parts = []
            if vn is not None and vn < len(vq):
                parts.append('vmcnt(%d)' % min(vn, 63));
                vq = vq[len(vq) - min(vn, 63):] if vn > 0 else []
            if ln is not None and ln < len(lq):
                if any(x.kind == 'smem' for x in lq): ln = 0
                parts.append('lgkmcnt(%d)' % min(ln, 15))
                lq = lq[len(lq) - min(ln, 15):] if ln > 0 else []
            if parts: emit(Ins('s_waitcnt ' + ' '.join(parts)))
        for i in self.ins:
            if i.kind == 'waittag':
                tags = i.tag if isinstance(i.tag, (list, tuple, set)) else [i.tag]
                vn = ln = None
                for k, x in enumerate(vq):
                    if x.tag in tags: vn = len(vq) - 1 - k
                for k, x in enumerate(lq):
                    if x.tag in tags: ln = len(lq) - 1 - k
                do_wait(vn, ln); continue
            if i.kind == 'wait':
                m = re.search(r'vmcnt\((\d+)\)', i.text)
                if m:
                    n = int(m.group(1)); vq = vq[len(vq) - n:] if 0 < n < len(vq) else ([] if n == 0 else vq)
                m = re.search(r'lgkmcnt\((\d+)\)', i.text)
                if m:
                    n = int(m.group(1)); lq = lq[len(lq) - n:] if 0 < n < len(lq) else ([] if n == 0 else lq)
                emit(i); continue
            if i.kind in ('label', 'branch') and not i.op.startswith('.'):
                if not (i.tag == 'inflight_ok'):
                    pend_v = [k for k, x in enumerate(vq) if x.w]
                    pend_l = [k for k, x in enumerate(lq) if x.w]
                    if pend_v or pend_l:
                        raise ValueError('loads in flight across control flow at ' + i.text)
                emit(i); continue
            touch = i.r | i.w
            vn = ln = None
            for k, x in enumerate(vq):
                if x.w & touch: vn = len(vq) - 1 - k
            for k, x in enumerate(lq):
                if x.w & touch: ln = len(lq) - 1 - k
            do_wait(vn, ln)
            emit(i)
            if i.kind in ('vload', 'vstore'): vq.append(i)
            if i.kind in ('dsread', 'dswrite', 'smem'): lq.append(i)
        return '\n'.join(('' if x.kind == 'label' else '  ') + x.text for x in out) + '\n'

def v(i, n=1): return f'v{i}' if n == 1 else f'v[{i}:{i+n-1}]'
def a(i, n=1): return f'a{i}' if n == 1 else f'a[{i}:{i+n-1}]'
def s(i, n=1): return f's{i}' if n == 1 else f's[{i}:{i+n-1}]'
def R(i, n=1):
    if i >= 256: return a(i - 256, n)
    assert i + n <= 256
    return v(i, n)

def kd(name, vgpr, accum, sgpr=96):
    return f'''.section .rodata,"a"
.p2align 6
.amdhsa_kernel {name}
  .amdhsa_next_free_vgpr {vgpr}
  .amdhsa_next_free_sgpr {sgpr}
  .amdhsa_accum_offset {accum}
  .amdhsa_group_segment_fixed_size 0
  .amdhsa_kernarg_size 104
  .amdhsa_user_sgpr_count 2
  .amdhsa_user_sgpr_kernarg_segment_ptr 1
  .amdhsa_system_sgpr_workgroup_id_x 1
.end_amdhsa_kernel
'''
def khead(name):
    return f'.text\n.globl {name}\n.p2align 8\n.type {name},@function\n{name}:\n'
```

```python
import sys
from asmlib import *

NAME = 'adaLN_cond__sliding_local_dilated__mixer_channel_mlp__prompt'
KA = dict(x=0, wqkv=8, wo=16, bx=24, w1=32, b1=40, w2=48, b2=56, c=64, wmod=72, out=80, dbg=88, ws=96)
SZ = dict(x=2621440, wqkv=640*1920*2, wo=640*640*2, w1=640*1728*2, b1=1728*2, w2=1728*640*2, b2=1280, c=1280, wmod=640*3840*2, out=2621440)
MODB = 0
WQ_F = 0x10000
WO_F = WQ_F + 8*4*20*4096
W1_F = WO_F + 8*20*5*1024
W2_F = W1_F + 27*20*4096
O_F  = W2_F + 8*54*5*1024
X1   = O_F + 32*4*20*1024
HID  = X1 + 2621440
WS_END = HID + 32*54*4*1024
OOB = 0x70000000
LOG2E = 1.4426950408889634
import struct
def f2u(x): return struct.unpack('<I', struct.pack('<f', x))[0]
def hx(x): return '0x%08x' % (x & 0xffffffff)

def srd(A, d, ptr, size):
    A(f's_mov_b32 s{d}, s{ptr}\ns_mov_b32 s{d+1}, s{ptr+1}\ns_mov_b32 s{d+2}, {size}\ns_mov_b32 s{d+3}, 0x20000')

PITCH = 1312
def k0():
    A = Asm()
    A('s_cmp_ge_u32 s2, 254\ns_cbranch_scc1 K0_END')
    A('s_load_dwordx4 s[28:31], s[0:1], 8')
    A('s_load_dwordx2 s[32:33], s[0:1], 32')
    A('s_load_dwordx2 s[34:35], s[0:1], 48')
    A('s_load_dwordx4 s[36:39], s[0:1], 64')
    A('s_load_dwordx2 s[40:41], s[0:1], 96')
    A('v_lshrrev_b32 v1, 6, v0\nv_and_b32 v2, 63, v0\nv_readfirstlane_b32 s3, v1')
    A('s_waitcnt lgkmcnt(0)')
    srd(A, 12, 40, WS_END)
    A('s_cmp_ge_u32 s2, 60\ns_cbranch_scc1 K0_RELAY')
    srd(A, 8, 38, SZ['wmod'])
    srd(A, 16, 36, SZ['c'])
    A('v_lshrrev_b32 v3, 3, v2')
    A('s_mul_i32 s4, s3, 160')
    A('v_mul_u32_u24 v3, 20, v3\nv_add_u32 v3, s4, v3')
    A('v_lshlrev_b32 v4, 1, v3')
    A('v_mul_u32_u24 v5, 7680, v3\nv_and_b32 v6, 7, v2\nv_lshl_add_u32 v5, v6, 4, v5')
    for i in range(5):
        A(f'buffer_load_dwordx2 v[{100+2*i}:{101+2*i}], v4, s[16:19], 0 offen offset:{8*i}')
    A('s_lshl_b32 s5, s2, 7')
    for i in range(20):
        A(f'buffer_load_dwordx4 v[{16+4*i}:{19+4*i}], v5, s[8:11], s5 offen nt')
        if i < 19: A('s_add_u32 s5, s5, 7680')
    A(f's_mov_b32 s6, {hx(f2u(-LOG2E))}')
    for i in range(10):
        t = 112 + (i % 2) * 8
        A(f'v_lshlrev_b32 v{t}, 16, v{100+i}\nv_and_b32 v{t+1}, 0xffff0000, v{100+i}')
        A(f'v_mul_f32 v{t+2}, s6, v{t}\nv_mul_f32 v{t+3}, s6, v{t+1}')
        A(f'v_exp_f32 v{t+2}, v{t+2}\nv_exp_f32 v{t+3}, v{t+3}')
        A(f'v_add_f32 v{t+2}, 1.0, v{t+2}\nv_add_f32 v{t+3}, 1.0, v{t+3}')
        A(f'v_rcp_f32 v{t+2}, v{t+2}\nv_rcp_f32 v{t+3}, v{t+3}')
        A(f'v_mul_f32 v{t}, v{t}, v{t+2}\nv_mul_f32 v{t+1}, v{t+1}, v{t+3}')
        A(f'v_cvt_pk_bf16_f32 v{100+i}, v{t}, v{t+1}')
    A('s_mov_b32 s6, 0x05040100\ns_mov_b32 s7, 0x07060302')
    for e in range(8): A(f'v_mov_b32 v{128+e}, 0')
    for i in range(10):
        ra, rb = 16 + 8*i, 20 + 8*i
        for d in range(4):
            A(f'v_perm_b32 v{112+2*d}, v{rb+d}, v{ra+d}, s6\nv_perm_b32 v{113+2*d}, v{rb+d}, v{ra+d}, s7')
        for e in range(8):
            A(f'v_dot2_f32_bf16 v{128+e}, v{112+e}, v{100+i}, v{128+e}')
    A('v_lshlrev_b32 v7, 5, v0')
    A('ds_write_b128 v7, v[128:131]\nds_write_b128 v7, v[132:135] offset:16')
    A('s_waitcnt lgkmcnt(0)\ns_barrier')
    A('s_cmp_lg_u32 s3, 0\ns_cbranch_scc1 K0_END')
    A('v_lshlrev_b32 v7, 2, v2')
    for i in range(32): A(f'ds_read_b32 v{16+i}, v7 offset:{256*i}')
    for st in (16, 8, 4, 2, 1):
        for i in range(st): A(f'v_add_f32 v{16+i}, v{16+i}, v{16+i+st}')
    A('v_cvt_pk_bf16_f32 v16, v16, v16')
    A('v_lshlrev_b32 v17, 16, v16\nv_add_f32 v17, 1.0, v17\nv_cvt_pk_bf16_f32 v17, v17, v17')
    A('s_sub_u32 s4, s2, 10\ns_cmp_lt_u32 s4, 10\ns_cselect_b32 s5, 1, 0')
    A('s_sub_u32 s4, s2, 40\ns_cmp_lt_u32 s4, 10\ns_cselect_b32 s5, 1, s5')
    A('v_cmp_eq_u32 vcc, s5, 1' .replace('vcc, s5, 1', 'vcc, 1, s5') if False else 'v_mov_b32 v18, s5\nv_cmp_eq_u32 vcc, 1, v18')
    A('v_cndmask_b32 v16, v16, v17, vcc')
    A('v_lshlrev_b32 v7, 1, v2\ns_lshl_b32 s5, s2, 7')
    A('buffer_store_short v16, v7, s[12:15], s5 offen')
    A('s_endpgm')
    A.label('K0_RELAY')
    A(f'v_lshrrev_b32 v3, 2, v2\nv_mul_u32_u24 v3, {PITCH}, v3\nv_and_b32 v4, 3, v2')
    A('v_lshlrev_b32 v1, 4, v2')
    A('s_and_b32 s20, s3, 1\ns_lshr_b32 s21, s3, 1')
    A('s_cmp_ge_u32 s2, 120\ns_cbranch_scc1 K0_NOTQ')
    A('s_sub_u32 s4, s2, 60\ns_mul_i32 s5, s4, 43691\ns_lshr_b32 s5, s5, 17\ns_mul_i32 s6, s5, 3\ns_sub_u32 s6, s4, s6')
    srd(A, 8, 28, SZ['wqkv'])
    A('s_lshl_b32 s7, s5, 5\ns_lshl_b32 s22, s20, 4\ns_add_u32 s7, s7, s22\ns_lshl_b32 s22, s21, 2\ns_add_u32 s7, s7, s22')
    A('s_mov_b32 s23, 3840\ns_mul_i32 s24, s7, 3840\ns_mul_i32 s22, s6, 1280\ns_add_u32 s24, s24, s22')
    A(f's_mov_b32 s25, {5*3840}\ns_mov_b32 s26, 0xffff\ns_mov_b32 s27, 0')
    A('s_branch K0_LOAD')
    A.label('K0_NOTQ')
    A('s_cmp_ge_u32 s2, 140\ns_cbranch_scc1 K0_NOTO')
    A('s_sub_u32 s5, s2, 120')
    srd(A, 8, 30, SZ['wo'])
    A('s_mul_i32 s7, s5, 40\ns_mul_i32 s22, s20, 20\ns_add_u32 s7, s7, s22\ns_lshl_b32 s22, s21, 2\ns_add_u32 s7, s7, s22')
    A('s_sub_u32 s4, s5, 16\ns_mul_i32 s4, s4, 160\ns_mul_i32 s22, s20, 80\ns_add_u32 s4, s4, s22\ns_mul_i32 s22, s21, 20\ns_add_u32 s4, s4, s22\ns_add_u32 s4, s4, 16')
    A(f's_cmp_ge_u32 s5, 16\ns_cselect_b32 s7, s4, s7\ns_cselect_b32 s25, {37*1280}, {5*1280}'.replace(f's_cselect_b32 s25, {37*1280}, {5*1280}', f's_mov_b32 s25, {5*1280}\ns_cmov_b32 s25, {37*1280}'))
    A('s_mov_b32 s23, 1280\ns_mul_i32 s24, s7, 1280\ns_mov_b32 s26, 0xffff\ns_mov_b32 s27, 1')
    A(f's_mul_i32 s42, s5, 5120\ns_add_u32 s42, s42, {WO_F}\ns_mov_b32 s43, {20*5120}')
    A('s_branch K0_LOAD')
    A.label('K0_NOTO')
    A('s_cmp_ge_u32 s2, 200\ns_cbranch_scc1 K0_W2')
    A('s_sub_u32 s4, s2, 140\ns_mul_i32 s5, s4, 43691\ns_lshr_b32 s5, s5, 17\ns_mul_i32 s6, s5, 3\ns_sub_u32 s6, s4, s6')
    srd(A, 8, 32, SZ['w1'])
    A('s_lshl_b32 s7, s5, 5\ns_lshl_b32 s22, s20, 4\ns_add_u32 s7, s7, s22\ns_lshl_b32 s22, s21, 2\ns_add_u32 s7, s7, s22')
    A('s_mov_b32 s23, 3456\ns_mul_i32 s24, s7, 3456\ns_mul_i32 s22, s6, 1152\ns_add_u32 s24, s24, s22')
    A(f's_mov_b32 s25, {5*3456}\ns_mov_b32 s26, 0xff\ns_mov_b32 s27, 2')
    A('s_branch K0_LOAD')
    A.label('K0_W2')
    A('s_sub_u32 s5, s2, 200')
    srd(A, 8, 34, SZ['w2'])
    A('s_lshl_b32 s7, s5, 5\ns_lshl_b32 s22, s3, 3\ns_add_u32 s7, s7, s22')
    A('s_mov_b32 s23, 1280\ns_mul_i32 s24, s7, 1280\ns_mov_b32 s25, 1280\ns_mov_b32 s26, 0xffff\ns_mov_b32 s27, 1')
    A(f's_mul_i32 s42, s5, 5120\ns_add_u32 s42, s42, {W2_F}\ns_mov_b32 s43, {54*5120}')
    A.label('K0_LOAD')
    A(f's_mul_i32 s44, s3, {8*PITCH}')
    for i in range(8):
        A(f's_mov_b32 s{48+i}, s24')
        if i < 7: A(f's_add_u32 s24, s24, s{25 if i == 3 else 23}')
    for i in range(8):
        A(f's_add_u32 m0, s44, {i*PITCH}')
        A(f'buffer_load_dwordx4 v1, s[8:11], s{48+i} offen nt lds')
    A('s_mov_b32 exec_lo, s26\ns_mov_b32 exec_hi, 0')
    for i in range(8):
        A(f's_add_u32 m0, s44, {i*PITCH}')
        A(f'buffer_load_dwordx4 v1, s[8:11], s{48+i} offen offset:1024 nt lds')
    A('s_mov_b64 exec, -1')
    A('s_waitcnt vmcnt(0)\ns_barrier')
    A('s_cmp_eq_u32 s27, 1\ns_cbranch_scc1 K0_T1\ns_cmp_eq_u32 s27, 2\ns_cbranch_scc1 K0_T2')
    H = 16 * PITCH
    A('s_mul_i32 s4, s3, 320')
    A('v_lshl_add_u32 v5, v4, 3, v3\nv_add_u32 v5, s4, v5')
    A('v_mul_u32_u24 v6, 40, v4\nv_add3_u32 v6, v6, v3, s4')
    for e in range(2):
        for t in range(5):
            d = 16 + (e*5 + t) * 4
            ad, off = ('v5', 160*e + 40*t) if t < 4 else ('v6', 160*e + 32)
            A(f'ds_read_b64_tr_b16 v[{d}:{d+1}], {ad} offset:{off}\nds_read_b64_tr_b16 v[{d+2}:{d+3}], {ad} offset:{off+H}')
    A(f's_mul_i32 s4, s3, {8*20*4096}\ns_lshl_b32 s7, s5, 12\ns_add_u32 s4, s4, s7\ns_add_u32 s4, s4, {WQ_F}')
    A(f's_lshl_b32 s7, s6, 10\ns_add_u32 s7, s7, s4')
    A(f's_mul_i32 s22, s6, {20*4096}\ns_add_u32 s22, s22, s4\ns_add_u32 s22, s22, 3072')
    for e in range(2):
        for t in range(5):
            d = 16 + (e*5 + t) * 4
            if t < 4: A(f's_add_u32 s24, s7, {(e*4+t)*20*4096}')
            else: A(f's_add_u32 s24, s22, {e*4*20*4096}')
            A(f'buffer_store_dwordx4 v[{d}:{d+3}], v1, s[12:15], s24 offen')
    A('s_endpgm')
    A.label('K0_T1')
    A('s_mul_i32 s4, s3, 320')
    A('v_lshl_add_u32 v5, v4, 4, v3\nv_add_u32 v5, s4, v5')
    A('v_lshl_add_u32 v6, v4, 3, v3\nv_add_u32 v6, s4, v6')
    for e in range(2):
        for t in range(5):
            d = 16 + (e*5 + t) * 4
            ad, off = ('v5', 160*e + 64*(t >> 1) + 8*(t & 1)) if t < 4 else ('v6', 160*e + 128)
            A(f'ds_read_b64_tr_b16 v[{d}:{d+1}], {ad} offset:{off}\nds_read_b64_tr_b16 v[{d+2}:{d+3}], {ad} offset:{off+H}')
    A('s_mul_i32 s4, s3, s43\ns_lshl_b32 s4, s4, 1\ns_add_u32 s4, s4, s42\ns_add_u32 s7, s4, s43')
    A('s_add_u32 s5, s4, 4096\ns_add_u32 s6, s7, 4096')
    for e in range(2):
        for t in range(5):
            d = 16 + (e*5 + t) * 4
            if t < 4: A(f'buffer_store_dwordx4 v[{d}:{d+3}], v1, s[12:15], s{4 if e == 0 else 7} offen offset:{1024*t}')
            else: A(f'buffer_store_dwordx4 v[{d}:{d+3}], v1, s[12:15], s{5 if e == 0 else 6} offen')
    A('s_endpgm')
    A.label('K0_T2')
    A('s_lshl_b32 s4, s3, 5')
    A('v_lshl_add_u32 v5, v4, 3, v3\nv_add_u32 v5, s4, v5')
    for i in range(9):
        d = 16 + i * 4
        A(f'ds_read_b64_tr_b16 v[{d}:{d+1}], v5 offset:{128*i}\nds_read_b64_tr_b16 v[{d+2}:{d+3}], v5 offset:{128*i+H}')
    A(f's_mul_i32 s4, s6, {9*20*4096}\ns_lshl_b32 s7, s5, 12\ns_add_u32 s4, s4, s7\ns_lshl_b32 s7, s3, 10\ns_add_u32 s4, s4, s7\ns_add_u32 s4, s4, {W1_F}')
    for i in range(9):
        d = 16 + i * 4
        A(f'buffer_store_dwordx4 v[{d}:{d+3}], v1, s[12:15], s4 offen')
        if i < 8: A(f's_add_u32 s4, s4, {20*4096}')
    A.label('K0_END')
    A('s_endpgm')
    return khead('k0_kernel') + A.finish() + kd('k0_kernel', 136, 136)

def decode(A, endlabel):
    A(f's_cmp_ge_u32 s2, 256\ns_cbranch_scc1 {endlabel}')
    A('s_and_b32 s6, s2, 7\ns_lshr_b32 s7, s2, 3')
    A('s_lshr_b32 s4, s6, 1\ns_lshl_b32 s4, s4, 3\ns_lshr_b32 s5, s7, 2\ns_add_u32 s4, s4, s5')
    A('s_and_b32 s5, s6, 1\ns_lshl_b32 s5, s5, 2\ns_and_b32 s7, s7, 3\ns_add_u32 s5, s5, s7')
    A('v_lshrrev_b32 v1, 6, v0\nv_and_b32 v2, 63, v0\nv_readfirstlane_b32 s3, v1\nv_lshlrev_b32 v1, 4, v2')

def row_stats(A, X, ng, nd, S0, T):
    for i in range(ng):
        A(f'v_mov_b32 v{S0+2*i}, 0\nv_mov_b32 v{S0+2*i+1}, 0')
    for i in range(ng):
        for d in range(nd):
            r = X + i*nd + d
            A(f'v_dot2_f32_bf16 v{S0+2*i}, v{r}, s20, v{S0+2*i}\nv_dot2_f32_bf16 v{S0+2*i+1}, v{r}, v{r}, v{S0+2*i+1}')
    reduce16(A, [S0 + k for k in range(2*ng)])

def reduce16(A, regs):
    for n in (8, 4, 2, 1):
        for r in regs:
            A(f'v_add_f32_dpp v{r}, v{r}, v{r} row_ror:{n} row_mask:0xf bank_mask:0xf')

def finish_stats(A, S0, ng, T):
    for i in range(ng):
        a_, b_ = S0+2*i, S0+2*i+1
        A(f'v_mul_f32 v{a_}, s21, v{a_}\nv_mul_f32 v{b_}, s21, v{b_}')
    for i in range(ng):
        a_, b_ = S0+2*i, S0+2*i+1
        A(f'v_fma_f32 v{b_}, -v{a_}, v{a_}, v{b_}')
    for i in range(ng):
        a_, b_ = S0+2*i, S0+2*i+1
        A(f'v_max_f32 v{b_}, 0, v{b_}\nv_add_f32 v{b_}, s22, v{b_}\nv_rsq_f32 v{T+i}, v{b_}')
    for i in range(ng):
        a_, b_ = S0+2*i, S0+2*i+1
        A(f'v_mul_f32 v{b_}, -v{a_}, v{T+i}'.replace('v_mul_f32', 'v_mul_f32_e64') + f'\nv_mov_b32 v{a_}, v{T+i}')

def k1():
    A = Asm()
    decode(A, 'K1_END')
    A('s_load_dwordx2 s[28:29], s[0:1], 0\ns_load_dwordx2 s[40:41], s[0:1], 96')
    XR, MA, MS, MR, TMP = 16, 116, 156, 196, 236
    A('v_lshrrev_b32 v3, 4, v2\ns_mul_i32 s6, s3, 20\nv_add_u32 v3, s6, v3')
    A('s_lshl_b32 s7, s4, 6\ns_sub_u32 s7, s7, 16\nv_add_u32 v4, s7, v3')
    A('s_movk_i32 s6, 1280\nv_mul_lo_u32 v4, v4, s6\nv_and_b32 v5, 15, v2\nv_lshl_add_u32 v4, v5, 4, v4')
    for i in range(1, 5): A(f'v_add_u32 v{5+i}, {5120*i}, v4')
    A('v_lshlrev_b32 v10, 4, v5')
    A('s_waitcnt lgkmcnt(0)')
    srd(A, 8, 28, SZ['x']); srd(A, 12, 40, WS_END)
    xo = ['v4', 'v6', 'v7', 'v8', 'v9']
    for i in range(5):
        for m in range(5):
            d = XR + (i*5 + m)*4
            A(f'buffer_load_dwordx4 v[{d}:{d+3}], {xo[i]}, s[8:11], 0 offen offset:{256*m}')
    for vec in range(2):
        for m in range(5):
            d = MR + (vec*5 + m)*4
            A(f'buffer_load_dwordx4 v[{d}:{d+3}], v10, s[12:15], 0 offen offset:{1280*vec + 256*m}')
    A(f's_lshl_b32 s24, s5, 2\ns_add_u32 s24, s24, s3\ns_mul_i32 s24, s24, {20*4096}\ns_add_u32 s24, s24, {WQ_F}')
    A(f's_cmp_eq_u32 s3, 3\ns_cselect_b32 s6, {OOB}, 0\nv_add_u32 v11, s6, v1')
    def wreg(s_, t): return 256 + s_*16 + t*4 if s_ < 16 else MA + (s_-16)*16 + t*4
    wl = [(s_, t) for s_ in range(20) for t in range(4)]
    wi = [0]
    def wload(n=1):
        for _ in range(n):
            if wi[0] >= len(wl): return
            s_, t = wl[wi[0]]; wi[0] += 1
            A(f'buffer_load_dwordx4 {R(wreg(s_, t), 4)}, {"v11" if t == 3 else "v1"}, s[12:15], s24 offen offset:{1024*t}')
            if t == 3: A('s_add_u32 s24, s24, 4096')
    wload(16)
    WA = TMP + 10
    A('v_and_b32 v12, 7, v2')
    for i in range(5):
        t0, t1, t2 = TMP, TMP+1, TMP+2
        A(f'v_add_u32 v{t0}, {4*i}, v3')
        A(f'v_and_b32 v{t1}, 1, v{t0}')
        A(f'v_lshrrev_b32 v{t2}, 1, v{t0}\nv_lshlrev_b32 v13, 3, v{t1}\nv_sub_u32 v{t2}, v{t2}, v13\nv_add_u32 v{t2}, 8, v{t2}')
        A(f'v_subrev_u32 v13, 16, v{t0}\nv_lshrrev_b32 v14, 5, v13\nv_lshl_add_u32 v14, v{t1}, 1, v14\nv_add_u32 v14, 1, v14')
        A(f'v_bfe_u32 v13, v13, 1, 4')
        A(f'v_cmp_gt_u32 vcc, 16, v{t0}')
        A(f'v_cndmask_b32 v13, v13, v{t2}, vcc\nv_cndmask_b32 v14, v14, 0, vcc'.replace('v_cndmask_b32 v14, v14, 0, vcc', 'v_cndmask_b32_e64 v14, v14, 0, vcc'))
        A(f'v_xor_b32 v13, v13, v12\nv_lshlrev_b32 v13, 4, v13\nv_mul_u32_u24 v14, 20480, v14\nv_lshl_add_u32 v13, v5, 8, v13\nv_add_u32 v{WA+i}, v13, v14')
    A(f's_mov_b32 s20, 0x3f803f80\ns_mov_b32 s21, {hx(f2u(1/640))}\ns_mov_b32 s22, {hx(f2u(1e-5))}')
    S0 = TMP
    row_stats(A, XR, 5, 20, S0, None)
    wload(8)
    finish_stats(A, S0, 5, TMP+15)
    for vec, dst in ((0, MS), (1, MA)):
        for d in range(20):
            A(f'v_lshlrev_b32 v{dst+2*d}, 16, v{MR+vec*20+d}\nv_and_b32 v{dst+2*d+1}, 0xffff0000, v{MR+vec*20+d}')
    wload(4)
    T2 = MR
    for i in range(5):
        for m in range(5):
            b = XR + (i*5 + m)*4
            for d in range(4):
                t = T2 + 2*d + 8*(m & 1)
                A(f'v_lshlrev_b32 v{t}, 16, v{b+d}\nv_and_b32 v{t+1}, 0xffff0000, v{b+d}')
            for d in range(4):
                t = T2 + 2*d + 8*(m & 1)
                A(f'v_pk_fma_f32 v[{t}:{t+1}], v[{t}:{t+1}], v[{S0+2*i}:{S0+2*i+1}], v[{S0+2*i}:{S0+2*i+1}] op_sel:[0,0,1] op_sel_hi:[1,0,1]')
            for d in range(4):
                t = T2 + 2*d + 8*(m & 1); f = 8*m + 2*d
                A(f'v_pk_fma_f32 v[{t}:{t+1}], v[{t}:{t+1}], v[{MA+f}:{MA+f+1}], v[{MS+f}:{MS+f+1}]')
            for d in range(4):
                t = T2 + 2*d + 8*(m & 1)
                A(f'v_cvt_pk_bf16_f32 v{b+d}, v{t}, v{t+1}')
            A(f'ds_write_b128 v{WA+i}, v[{b}:{b+3}] offset:{4096*m}')
            if wi[0] < 64: wload(2 if wi[0] < 62 else 64 - wi[0])
    assert wi[0] == 64
    X4 = 102400; ZERO = X4 + 7680
    A(f'v_mov_b32 v12, 0\nv_mov_b32 v13, 0\nv_mov_b32 v14, {ZERO}\nds_write_b64 v14, v[12:13]')
    A('v_lshrrev_b32 v3, 4, v2')
    A('v_xor_b32 v12, v5, v3\nv_lshlrev_b32 v12, 4, v12\nv_lshl_add_u32 v12, v3, 8, v12')
    A('v_xor_b32 v13, 64, v12')
    A('v_add_u32 v14, 0x10000, v12\nv_add_u32 v15, 0x10000, v13')
    A('s_waitcnt lgkmcnt(0)\ns_barrier')
    wload(16)
    ACC = 16
    accQ = lambda T: ACC + (T-1)*4
    accK = lambda T: ACC + 16 + T*4
    accV = lambda T: ACC + 36 + T*4
    acc4 = lambda T: ACC + 56 + T*4
    AF = 196
    def aread(s_):
        for T in range(5):
            idx = T*20 + s_
            ad = (12 + (s_ & 1)) + (2 if idx >= 64 else 0)
            d = AF + (s_ & 1)*20 + T*4
            A(f'ds_read_b128 v[{d}:{d+3}], v{ad} offset:{(idx % 64)*1024}')
    aread(0)
    for s_ in range(20):
        if s_ < 19: aread(s_+1)
        for T in range(5):
            af = v(AF + (s_ & 1)*20 + T*4, 4)
            def mm(acc, a_, b_):
                A(f'v_mfma_f32_16x16x32_bf16 {v(acc,4)}, {a_}, {b_}, {v(acc,4) if s_ else "0"}')
            if T > 0: mm(accQ(T), R(wreg(s_, 0), 4), af)
            mm(accK(T), R(wreg(s_, 1), 4), af)
            mm(accV(T), af, R(wreg(s_, 2), 4))
            mm(acc4(T), R(wreg(s_, 3), 4), af)
    QF, KF, VS, V4 = 100, 116, 140, 152
    BC, BP, BH, PM = 164, 168, 172, 176
    A('v_lshlrev_b32 v4, 3, v2')
    A(f's_mul_i32 s6, s3, 2560\ns_add_u32 s6, s6, {X4}\ns_cmp_eq_u32 s3, 3\ns_cselect_b32 s6, {ZERO+64}, s6\nv_add_u32 v6, s6, v4')
    A(f'v_lshlrev_b32 v7, 2, v3\nv_sub_u32 v7, v5, v7')
    A(f'v_mov_b32 v8, {hx(f2u(-1e30))}')
    for r in range(4):
        A(f'v_subrev_u32 v9, {r}, v7')
        A(f'v_cmp_gt_u32 vcc, 8, v9\nv_cndmask_b32_e64 v{BC+r}, v8, 0, vcc')
        A(f'v_cmp_gt_i32 vcc, -8, v9\nv_cndmask_b32_e64 v{BP+r}, v8, 0, vcc')
    A('v_cmp_gt_i32 s[30:31], -5, v7')
    A('s_cmp_eq_u32 s4, 0\ns_cselect_b64 s[32:33], -1, 0')
    for r in range(4): A(f'v_cndmask_b32_e64 v{BH+r}, v{BP+r}, v8, s[32:33]')
    for T in range(5):
        c = acc4(T)
        A(f'v_cvt_pk_bf16_f32 v{c}, v{c}, v{c+1}\nv_cvt_pk_bf16_f32 v{c+1}, v{c+2}, v{c+3}')
        A(f'ds_write_b64 v6, v[{c}:{c+1}] offset:{512*T}')
    vpos = {0: 0, 1: 2, 2: 4, 3: 8, 4: 10}
    for T in range(5):
        if T > 0:
            c = accQ(T); A(f'v_cvt_pk_bf16_f32 v{QF+(T-1)*4}, v{c}, v{c+1}\nv_cvt_pk_bf16_f32 v{QF+(T-1)*4+1}, v{c+2}, v{c+3}')
        c = accK(T); A(f'v_cvt_pk_bf16_f32 v{KF+T*4}, v{c}, v{c+1}\nv_cvt_pk_bf16_f32 v{KF+T*4+1}, v{c+2}, v{c+3}')
        c = accV(T); A(f'v_cvt_pk_bf16_f32 v{VS+vpos[T]}, v{c}, v{c+1}\nv_cvt_pk_bf16_f32 v{VS+vpos[T]+1}, v{c+2}, v{c+3}')
    for d in range(2):
        A(f'v_mov_b32_dpp v{KF+20+d}, v{KF+d} row_ror:8 row_mask:0xf bank_mask:0xf')
        A(f'v_mov_b32 v{VS+6+d}, v{VS+d}\nv_mov_b32 v{180+d}, v{VS+d}')
    for d in range(2):
        A(f'v_permlane32_swap_b32 v{VS+6+d}, v{180+d}')
    A(f'v_cmp_eq_u32 vcc, s3, v3')
    A(f'v_add_u32 v9, {X4}, v4')
    A(f'v_xor_b32 v10, 64, v9')
    A(f'v_lshrrev_b32 v11, 2, v2\nv_lshlrev_b32 v11, 3, v11\ns_lshl_b32 s6, s3, 7\ns_add_u32 s6, s6, {X4+5120}\nv_add_u32 v11, s6, v11\nv_xor_b32 v12, 64, v11')
    for T in range(1, 5):
        A(f'v_add_u32 v13, {512*T}, v9\nv_mov_b32 v14, {ZERO}\nv_cndmask_b32 v{182+T}, v14, v13, vcc')
    A('s_waitcnt lgkmcnt(0)\ns_barrier')
    for T in range(1, 5): A(f'ds_read_b64 v[{QF+(T-1)*4+2}:{QF+(T-1)*4+3}], v{182+T}')
    for T in range(5): A(f'ds_read_b64 v[{KF+T*4+2}:{KF+T*4+3}], v9 offset:{2560+512*T}')
    A(f'ds_read_b64 v[{KF+22}:{KF+23}], v10 offset:2560')
    for T in range(5): A(f'ds_read_b64_tr_b16 v[{V4+vpos[T]}:{V4+vpos[T]+1}], v11 offset:{512*T}')
    A(f'ds_read_b64_tr_b16 v[{V4+6}:{V4+7}], v12')
    SC, SP = 16, 32
    prevK = {1: 0, 2: 1, 3: 5, 4: 3}
    for T in range(1, 5):
        q = v(QF+(T-1)*4, 4)
        A(f'v_mfma_f32_16x16x32_bf16 {v(SC+(T-1)*4,4)}, {v(KF+T*4,4)}, {q}, {v(BC,4)}')
        A(f'v_mfma_f32_16x16x32_bf16 {v(SP+(T-1)*4,4)}, {v(KF+prevK[T]*4,4)}, {q}, {v(BH if T in (1,3) else BP,4)}')
    A(f's_mov_b32 s20, {hx(f2u(20**-0.5 * LOG2E))}')
    MX, M2 = 48, 52
    for t in range(4):
        for r in range(4): A(f'v_max_f32 v{SC+4*t+r}, v{SC+4*t+r}, v{SP+4*t+r}')
    for t in range(4):
        A(f'v_max3_f32 v{MX+t}, v{SC+4*t}, v{SC+4*t+1}, v{SC+4*t+2}\nv_max_f32 v{MX+t}, v{MX+t}, v{SC+4*t+3}')
    def xgroup(op, base, tmp):
        for sw in ('v_permlane32_swap_b32', 'v_permlane16_swap_b32'):
            for t in range(4): A(f'v_mov_b32 v{tmp+t}, v{base+t}')
            for t in range(4): A(f'{sw} v{base+t}, v{tmp+t}')
            for t in range(4): A(f'{op} v{base+t}, v{base+t}, v{tmp+t}')
    xgroup('v_max_f32', MX, M2)
    for t in range(4): A(f'v_mul_f32 v{MX+t}, s20, v{MX+t}')
    for t in range(4):
        for r in range(4): A(f'v_fma_f32 v{SC+4*t+r}, v{SC+4*t+r}, s20, -v{MX+t}')
    for t in range(4):
        for r in range(4): A(f'v_exp_f32 v{SC+4*t+r}, v{SC+4*t+r}')
    for t in range(4):
        A(f'v_add_f32 v{MX+t}, v{SC+4*t}, v{SC+4*t+1}\nv_add_f32 v{M2+t}, v{SC+4*t+2}, v{SC+4*t+3}')
    for t in range(4): A(f'v_add_f32 v{MX+t}, v{MX+t}, v{M2+t}')
    xgroup('v_add_f32', MX, M2)
    for t in range(4): A(f'v_rcp_f32 v{MX+t}, v{MX+t}')
    for t in range(4):
        for r in range(4): A(f'v_mul_f32 v{SC+4*t+r}, v{SC+4*t+r}, v{MX+t}')
    PF = 56
    for t in range(4):
        A(f'v_cvt_pk_bf16_f32 v{SC+4*t}, v{SC+4*t}, v{SC+4*t+1}\nv_cvt_pk_bf16_f32 v{SC+4*t+1}, v{SC+4*t+2}, v{SC+4*t+3}')
    for t in range(4):
        for d in range(2):
            A(f'v_cndmask_b32_e64 v{PF+4*t+d}, 0, v{SC+4*t+d}, s[30:31]')
            A(f'v_cndmask_b32_e64 v{PF+4*t+2+d}, v{SC+4*t+d}, 0, s[30:31]')
    OM, O4 = 72, 196
    win = {0: 0, 1: 2, 2: 6, 3: 8}
    for t in range(4):
        A(f'v_mfma_f32_16x16x32_bf16 {v(OM+4*t,4)}, {v(VS+win[t],4)}, {v(PF+4*t,4)}, 0')
        A(f'v_mfma_f32_16x16x32_bf16 {v(O4+4*t,4)}, {v(V4+win[t],4)}, {v(PF+4*t,4)}, 0')
    A(f's_lshl_b32 s6, s5, 2\ns_add_u32 s6, s6, s3')
    A(f's_mul_i32 s7, s4, {4*20*1024}\ns_add_u32 s7, s7, {O_F}')
    A(f's_lshl_b32 s24, s6, 9\ns_add_u32 s24, s24, s7')
    A(f's_add_u32 s25, s24, {2*20480}')
    A(f'v_and_b32 v6, 1, v3\nv_mul_u32_u24 v6, 20480, v6\nv_lshrrev_b32 v7, 1, v3\nv_lshl_add_u32 v6, v7, 8, v6\nv_lshl_add_u32 v6, v5, 4, v6')
    A(f's_lshr_b32 s26, s6, 1\ns_lshl_b32 s26, s26, 8\ns_and_b32 s27, s6, 1\ns_lshl_b32 s27, s27, 3\ns_add_u32 s26, s26, s27\ns_add_u32 s26, s26, s7\ns_add_u32 s26, s26, {16*1024}')
    A(f'v_mul_u32_u24 v7, 20480, v3\nv_lshl_add_u32 v7, v5, 4, v7')
    for pr in range(2):
        a_, b_ = OM + 8*pr, OM + 8*pr + 4
        o = 32 + 4*pr
        A(f'v_cvt_pk_bf16_f32 v{o}, v{a_}, v{a_+1}\nv_cvt_pk_bf16_f32 v{o+1}, v{a_+2}, v{a_+3}')
        A(f'v_cvt_pk_bf16_f32 v{o+2}, v{b_}, v{b_+1}\nv_cvt_pk_bf16_f32 v{o+3}, v{b_+2}, v{b_+3}')
    for pr in range(2):
        o = 32 + 4*pr
        A(f'v_permlane16_swap_b32 v{o}, v{o+2}\nv_permlane16_swap_b32 v{o+1}, v{o+3}')
        A(f'buffer_store_dwordx4 v[{o}:{o+3}], v6, s[12:15], s{24+pr} offen')
    for t in range(4):
        c = O4 + 4*t
        A(f'v_cvt_pk_bf16_f32 v{c}, v{c}, v{c+1}\nv_cvt_pk_bf16_f32 v{c+1}, v{c+2}, v{c+3}')
    for t in range(1, 4):
        A(f'v_cmp_eq_u32 vcc, {t}, v3')
        A(f'v_cndmask_b32 v{O4}, v{O4}, v{O4+4*t}, vcc\nv_cndmask_b32 v{O4+1}, v{O4+1}, v{O4+4*t+1}, vcc')
    A(f'buffer_store_dwordx2 v[{O4}:{O4+1}], v7, s[12:15], s26 offen')
    A.label('K1_END')
    A('s_endpgm')
    return khead('k1_kernel') + A.finish() + kd('k1_kernel', 512, 256)

def out_addr(A, tokexpr_done_in_v6):
    pass

def epi_loads(A, srd_rows, vrow, srow, vvec, vec_offs, XR, VR):
    pass

def k2():
    A = Asm()
    decode(A, 'K2_END')
    A('s_load_dwordx2 s[28:29], s[0:1], 0\ns_load_dwordx2 s[40:41], s[0:1], 96')
    A('v_and_b32 v5, 15, v2\nv_lshrrev_b32 v3, 4, v2')
    A('s_lshl_b32 s6, s4, 6\ns_and_b32 s7, s3, 1\ns_lshl_b32 s7, s7, 5\ns_add_u32 s6, s6, s7\ns_lshr_b32 s7, s3, 1\ns_add_u32 s6, s6, s7')
    A('s_mul_i32 s6, s6, 1280\ns_mul_i32 s7, s5, 160\ns_add_u32 s26, s6, s7')
    A('v_mul_u32_u24 v6, 2560, v5\nv_lshl_add_u32 v7, v3, 3, v6\nv_lshl_add_u32 v6, v3, 4, v6')
    A('v_lshlrev_b32 v8, 4, v3\nv_lshlrev_b32 v9, 3, v3')
    A('s_waitcnt lgkmcnt(0)')
    srd(A, 8, 28, SZ['x']); srd(A, 12, 40, WS_END)
    OF = 16
    A(f's_lshl_b32 s24, s4, 2\ns_add_u32 s24, s24, s3\ns_mul_i32 s24, s24, 20480\ns_add_u32 s24, s24, {O_F}')
    A(f's_mul_i32 s25, s5, {100*1024}\ns_mul_i32 s6, s3, 5120\ns_add_u32 s25, s25, s6\ns_add_u32 s25, s25, {WO_F}')
    for ch in range(5):
        for i in range(5):
            if i == 0 or i == 4:
                A(f's_add_u32 m0, s6, {ch*20480 + i*1024}')
                if i == 4: A('s_add_u32 s27, s25, 4096')
            A(f'buffer_load_dwordx4 v1, s[12:15], s{25 if i < 4 else 27} offen offset:{(i % 4)*1024} lds', tag=f'w{ch}')
        A('s_add_u32 s25, s25, 20480')
        for i in range(4):
            d = OF + (ch*4 + i)*4
            A(f'buffer_load_dwordx4 v[{d}:{d+3}], v1, s[12:15], s24 offen offset:{1024*i}')
        A('s_add_u32 s24, s24, 4096')
    XR, GR = 96, 108
    A(f'buffer_load_dwordx4 v[{XR}:{XR+3}], v6, s[8:11], s26 offen\nbuffer_load_dwordx4 v[{XR+4}:{XR+7}], v6, s[8:11], s26 offen offset:64\nbuffer_load_dwordx2 v[{XR+8}:{XR+9}], v7, s[8:11], s26 offen offset:128')
    A(f'buffer_load_dwordx4 v[{GR}:{GR+3}], v8, s[12:15], s7 offen offset:2560\nbuffer_load_dwordx4 v[{GR+4}:{GR+7}], v8, s[12:15], s7 offen offset:2624\nbuffer_load_dwordx2 v[{GR+8}:{GR+9}], v9, s[12:15], s7 offen offset:2688')
    ACC, WB = 120, 140
    A('v_add_u32 v10, 0x10000, v1')
    for ch in range(5):
        A.wait_tag(f'w{ch}')
        A('s_barrier')
        NB = 10
        items = [(ch*4 + i, t) for i in range(4) for t in range(5)]
        def rd(k):
            s_, t = items[k]; idx = s_*5 + t; d = WB + (k % NB)*4
            A(f'ds_read_b128 v[{d}:{d+3}], {"v1" if idx < 64 else "v10"} offset:{(idx % 64)*1024}')
        for k in range(8): rd(k)
        for k, (s_, t) in enumerate(items):
            d = WB + (k % NB)*4
            A(f'v_mfma_f32_16x16x32_bf16 {v(ACC+4*t,4)}, {v(d,4)}, {v(OF+4*s_,4)}, {v(ACC+4*t,4) if s_ else "0"}')
            if k + 8 < len(items): rd(k+8)
    T = 180
    for d in range(10):
        A(f'v_lshlrev_b32 v{T+4*d}, 16, v{XR+d}\nv_and_b32 v{T+4*d+1}, 0xffff0000, v{XR+d}')
        A(f'v_lshlrev_b32 v{T+4*d+2}, 16, v{GR+d}\nv_and_b32 v{T+4*d+3}, 0xffff0000, v{GR+d}')
    for d in range(10):
        A(f'v_pk_fma_f32 v[{T+4*d}:{T+4*d+1}], v[{ACC+2*d}:{ACC+2*d+1}], v[{T+4*d+2}:{T+4*d+3}], v[{T+4*d}:{T+4*d+1}]')
    for d in range(10):
        A(f'v_cvt_pk_bf16_f32 v{XR+d}, v{T+4*d}, v{T+4*d+1}')
    A(f's_add_u32 s26, s26, {X1}')
    A(f'buffer_store_dwordx4 v[{XR}:{XR+3}], v6, s[12:15], s26 offen\nbuffer_store_dwordx4 v[{XR+4}:{XR+7}], v6, s[12:15], s26 offen offset:64\nbuffer_store_dwordx2 v[{XR+8}:{XR+9}], v7, s[12:15], s26 offen offset:128')
    A.label('K2_END')
    A('s_endpgm')
    return khead('k2_kernel') + A.finish() + kd('k2_kernel', 224, 224)

def k3():
    A = Asm()
    decode(A, 'K3_END')
    A('s_load_dwordx2 s[28:29], s[0:1], 40\ns_load_dwordx2 s[40:41], s[0:1], 96')
    XR, MA, MS, MR, TMP = 16, 96, 136, 176, 236
    A('v_lshrrev_b32 v3, 4, v2\nv_and_b32 v5, 15, v2\nv_lshlrev_b32 v10, 4, v5')
    A('v_mul_u32_u24 v4, 1280, v3\nv_add_u32 v4, v4, v10')
    A(f's_lshl_b32 s6, s4, 2\ns_add_u32 s6, s6, s3\ns_mul_i32 s6, s6, {16*1280}\ns_add_u32 s6, s6, {X1}')
    A('s_waitcnt lgkmcnt(0)')
    srd(A, 8, 28, SZ['b1']); srd(A, 12, 40, WS_END)
    for i in range(4):
        for m in range(5):
            d = XR + (i*5 + m)*4
            A(f'buffer_load_dwordx4 v[{d}:{d+3}], v4, s[12:15], s6 offen offset:{256*m}')
        A('s_add_u32 s6, s6, 5120')
    A('s_movk_i32 s7, 3840')
    for vec in range(2):
        for m in range(5):
            d = MR + (vec*5 + m)*4
            A(f'buffer_load_dwordx4 v[{d}:{d+3}], v10, s[12:15], s7 offen offset:{1280*vec + 256*m}')
    A(f's_lshl_b32 s23, s3, 3\ns_add_u32 s23, s23, s5\ns_mul_i32 s24, s23, {20*4096}\ns_add_u32 s24, s24, {W1_F}')
    A(f's_cmp_ge_u32 s23, 27\ns_cselect_b32 s6, {OOB}, 0\nv_add_u32 v11, s6, v1')
    BR = 216
    A('s_lshl_b32 s25, s23, 7\nv_lshlrev_b32 v9, 3, v3')
    for t in range(4): A(f'buffer_load_dwordx2 v[{BR+2*t}:{BR+2*t+1}], v9, s[8:11], s25 offen offset:{32*t}')
    def wreg(s_, t): return 256 + s_*16 + t*4 if s_ < 16 else MA + (s_-16)*16 + t*4
    wl = [(s_, t) for s_ in range(20) for t in range(4)]
    wi = [0]
    def wload(n=1):
        for _ in range(n):
            if wi[0] >= len(wl): return
            s_, t = wl[wi[0]]; wi[0] += 1
            A(f'buffer_load_dwordx4 {R(wreg(s_, t), 4)}, v11, s[12:15], s24 offen offset:{1024*t}')
            if t == 3: A('s_add_u32 s24, s24, 4096')
    wload(16)
    WA = TMP + 10
    A('v_and_b32 v12, 7, v2\ns_mul_i32 s6, s3, 20480')
    for i in range(4):
        A(f'v_add_u32 v13, {4*i}, v3\nv_xor_b32 v13, v13, v12\nv_lshlrev_b32 v13, 4, v13\nv_lshl_add_u32 v13, v5, 8, v13\nv_add_u32 v{WA+i}, s6, v13')
    A(f's_mov_b32 s20, 0x3f803f80\ns_mov_b32 s21, {hx(f2u(1/640))}\ns_mov_b32 s22, {hx(f2u(1e-5))}')
    S0 = TMP
    row_stats(A, XR, 4, 20, S0, None)
    wload(8)
    finish_stats(A, S0, 4, TMP+15)
    for vec, dst in ((0, MS), (1, MA)):
        for d in range(20):
            A(f'v_lshlrev_b32 v{dst+2*d}, 16, v{MR+vec*20+d}\nv_and_b32 v{dst+2*d+1}, 0xffff0000, v{MR+vec*20+d}')
    wload(4)
    T2 = MR
    for i in range(4):
        for m in range(5):
            b = XR + (i*5 + m)*4
            for d in range(4):
                t = T2 + 2*d + 8*(m & 1)
                A(f'v_lshlrev_b32 v{t}, 16, v{b+d}\nv_and_b32 v{t+1}, 0xffff0000, v{b+d}')
            for d in range(4):
                t = T2 + 2*d + 8*(m & 1)
                A(f'v_pk_fma_f32 v[{t}:{t+1}], v[{t}:{t+1}], v[{S0+2*i}:{S0+2*i+1}], v[{S0+2*i}:{S0+2*i+1}] op_sel:[0,0,1] op_sel_hi:[1,0,1]')
            for d in range(4):
                t = T2 + 2*d + 8*(m & 1); f = 8*m + 2*d
                A(f'v_pk_fma_f32 v[{t}:{t+1}], v[{t}:{t+1}], v[{MA+f}:{MA+f+1}], v[{MS+f}:{MS+f+1}]')
            for d in range(4):
                t = T2 + 2*d + 8*(m & 1)
                A(f'v_cvt_pk_bf16_f32 v{b+d}, v{t}, v{t+1}')
            wload(1)
    row_stats(A, XR, 4, 20, S0, None)
    wload(8)
    finish_stats(A, S0, 4, TMP+15)
    for i in range(4):
        for m in range(5):
            b = XR + (i*5 + m)*4
            for d in range(4):
                t = T2 + 2*d + 8*(m & 1)
                A(f'v_lshlrev_b32 v{t}, 16, v{b+d}\nv_and_b32 v{t+1}, 0xffff0000, v{b+d}')
            for d in range(4):
                t = T2 + 2*d + 8*(m & 1)
                A(f'v_pk_fma_f32 v[{t}:{t+1}], v[{t}:{t+1}], v[{S0+2*i}:{S0+2*i+1}], v[{S0+2*i}:{S0+2*i+1}] op_sel:[0,0,1] op_sel_hi:[1,0,1]')
            for d in range(4):
                t = T2 + 2*d + 8*(m & 1)
                A(f'v_cvt_pk_bf16_f32 v{b+d}, v{t}, v{t+1}')
            A(f'ds_write_b128 v{WA+i}, v[{b}:{b+3}] offset:{4096*m}')
            wload(2 if i >= 2 else 1)
    wload(80)
    A('v_xor_b32 v12, v5, v3\nv_lshlrev_b32 v12, 4, v12\nv_lshl_add_u32 v12, v3, 8, v12')
    A('v_xor_b32 v13, 64, v12')
    A('v_add_u32 v14, 0x10000, v12\nv_add_u32 v15, 0x10000, v13')
    BI = 160
    for d in range(8):
        A(f'v_lshlrev_b32 v{BI+2*d}, 16, v{BR+d}\nv_and_b32 v{BI+2*d+1}, 0xffff0000, v{BR+d}')
    A('s_waitcnt lgkmcnt(0)\ns_barrier')
    ACC = 16; AF = 176
    def aread(s_):
        for T in range(4):
            idx = T*20 + s_
            ad = (12 + (s_ & 1)) + (2 if idx >= 64 else 0)
            d = AF + (s_ & 1)*16 + T*4
            A(f'ds_read_b128 v[{d}:{d+3}], v{ad} offset:{(idx % 64)*1024}')
    aread(0)
    for s_ in range(20):
        if s_ < 19: aread(s_+1)
        for T in range(4):
            for t in range(4):
                acc = ACC + (T*4 + t)*4
                A(f'v_mfma_f32_16x16x32_bf16 {v(acc,4)}, {R(wreg(s_,t),4)}, {v(AF+(s_&1)*16+T*4,4)}, {v(acc,4) if s_ else v(BI+4*t,4)}')
    c0 = -2*0.7978845608028654*LOG2E; c1 = c0*0.044715
    A(f's_mov_b32 s30, {hx(f2u(c1))}\ns_mov_b32 s31, {hx(f2u(c1))}\nv_mov_b32 v6, {hx(f2u(c0))}\nv_mov_b32 v7, {hx(f2u(c0))}')
    A(f's_mul_i32 s24, s4, {54*4096}\ns_lshl_b32 s25, s23, 13\ns_add_u32 s24, s24, s25\ns_add_u32 s24, s24, {HID}\ns_add_u32 s25, s24, 4096')
    G = 96
    for T in range(4):
        for e in range(2):
            b = ACC + (T*4 + 2*e)*4; g_ = G + ((T*2+e) & 1)*8
            for d in range(4): A(f'v_pk_mul_f32 v[{g_+2*d}:{g_+2*d+1}], v[{b+2*d}:{b+2*d+1}], v[{b+2*d}:{b+2*d+1}]')
            for d in range(4): A(f'v_pk_fma_f32 v[{g_+2*d}:{g_+2*d+1}], v[{g_+2*d}:{g_+2*d+1}], s[30:31], v[6:7]')
            for d in range(4): A(f'v_pk_mul_f32 v[{g_+2*d}:{g_+2*d+1}], v[{g_+2*d}:{g_+2*d+1}], v[{b+2*d}:{b+2*d+1}]')
            for d in range(8): A(f'v_exp_f32 v{g_+d}, v{g_+d}')
            for d in range(4): A(f'v_pk_add_f32 v[{g_+2*d}:{g_+2*d+1}], v[{g_+2*d}:{g_+2*d+1}], 1.0 op_sel_hi:[1,0]')
            for d in range(8): A(f'v_rcp_f32 v{g_+d}, v{g_+d}')
            for d in range(4): A(f'v_pk_mul_f32 v[{g_+2*d}:{g_+2*d+1}], v[{g_+2*d}:{g_+2*d+1}], v[{b+2*d}:{b+2*d+1}]')
            for d in range(4): A(f'v_cvt_pk_bf16_f32 v{b+d}, v{g_+2*d}, v{g_+2*d+1}')
            A(f'buffer_store_dwordx4 v[{b}:{b+3}], v11, s[12:15], s{24+e} offen offset:{1024*T}')
    A.label('K3_END')
    A('s_endpgm')
    return khead('k3_kernel') + A.finish() + kd('k3_kernel', 512, 256)

def k4():
    A = Asm()
    decode(A, 'K4_END')
    A('s_load_dwordx2 s[28:29], s[0:1], 56\ns_load_dwordx2 s[30:31], s[0:1], 80\ns_load_dwordx2 s[40:41], s[0:1], 96')
    A('v_and_b32 v5, 15, v2\nv_lshrrev_b32 v3, 4, v2')
    A('s_mul_i32 s6, s3, 14\ns_cmp_eq_u32 s3, 3\ns_cselect_b32 s6, 41, s6')
    A(f's_cmp_ge_u32 s3, 2\ns_cselect_b32 s7, {OOB}, 0\nv_add_u32 v11, s7, v1')
    A(f's_mul_i32 s24, s5, 54\ns_add_u32 s24, s24, s6\ns_mul_i32 s24, s24, 5120\ns_add_u32 s24, s24, {W2_F}\ns_add_u32 s27, s24, 4096')
    A(f's_mul_i32 s25, s4, 54\ns_add_u32 s25, s25, s6\ns_lshl_b32 s25, s25, 12\ns_add_u32 s25, s25, {HID}')
    A('s_lshl_b32 s6, s4, 2\ns_add_u32 s6, s6, s3\ns_mul_i32 s6, s6, 20480\ns_mul_i32 s7, s5, 160\ns_add_u32 s26, s6, s7')
    A('v_mul_u32_u24 v6, 1280, v5\nv_lshl_add_u32 v7, v3, 3, v6\nv_lshl_add_u32 v6, v3, 4, v6')
    A('v_lshlrev_b32 v8, 4, v3\nv_lshlrev_b32 v9, 3, v3')
    A('s_waitcnt lgkmcnt(0)')
    srd(A, 8, 28, SZ['b2']); srd(A, 12, 40, WS_END); srd(A, 16, 30, SZ['out'])
    ACC = 16
    NSLOT = 10
    def slot(k):
        i = k % NSLOT
        return 256 + i*36 if i < 7 else 140 + (i-7)*36
    def load(k):
        b = slot(k); vo = 'v11' if k == 13 else 'v1'
        for T in range(4): A(f'buffer_load_dwordx4 {R(b+20+4*T,4)}, {vo}, s[12:15], s25 offen offset:{1024*T}')
        for t in range(5): A(f'buffer_load_dwordx4 {R(b+4*t,4)}, {vo}, s[12:15], s{24 if t < 4 else 27} offen offset:{1024*(t%4)}')
        A('s_add_u32 s24, s24, 5120\ns_add_u32 s27, s27, 5120\ns_add_u32 s25, s25, 4096')
    PRE = 6
    for k in range(PRE): load(k)
    XR, GR, BR = 96, 108, 120
    for k in range(14):
        b = slot(k)
        for T in range(4):
            for t in range(5):
                acc = ACC + (T*5 + t)*4
                A(f'v_mfma_f32_16x16x32_bf16 {v(acc,4)}, {R(b+4*t,4)}, {R(b+20+4*T,4)}, {v(acc,4) if k else "0"}')
            if T == 0 and k + PRE < 14: load(k + PRE)
            if T == 0 and k + PRE == 14:
                A(f's_add_u32 s23, s26, {X1}\ns_add_u32 s22, s7, 6400')
                A(f'buffer_load_dwordx4 v[{XR}:{XR+3}], v6, s[12:15], s23 offen\nbuffer_load_dwordx4 v[{XR+4}:{XR+7}], v6, s[12:15], s23 offen offset:64\nbuffer_load_dwordx2 v[{XR+8}:{XR+9}], v7, s[12:15], s23 offen offset:128')
                A(f'buffer_load_dwordx4 v[{GR}:{GR+3}], v8, s[12:15], s22 offen\nbuffer_load_dwordx4 v[{GR+4}:{GR+7}], v8, s[12:15], s22 offen offset:64\nbuffer_load_dwordx2 v[{GR+8}:{GR+9}], v9, s[12:15], s22 offen offset:128')
                A(f'buffer_load_dwordx4 v[{BR}:{BR+3}], v8, s[8:11], s7 offen\nbuffer_load_dwordx4 v[{BR+4}:{BR+7}], v8, s[8:11], s7 offen offset:64\nbuffer_load_dwordx2 v[{BR+8}:{BR+9}], v9, s[8:11], s7 offen offset:128')
    A('s_mul_i32 s6, s3, 20480\nv_add_u32 v12, s6, v1\ns_mul_i32 s6, s3, 5120\nv_add_u32 v13, s6, v1')
    for T in range(4):
        for t in range(5):
            acc = ACC + (T*5 + t)*4
            A(f'ds_write_b128 v12, {v(acc,4)} offset:{(T*5+t)*1024}')
    A('s_waitcnt lgkmcnt(0)\ns_barrier')
    A('v_add_u32 v14, 40960, v13')
    for w in range(4):
        for t in range(5):
            d = ACC + (w*5 + t)*4
            A(f'ds_read_b128 {v(d,4)}, {"v13" if w < 2 else "v14"} offset:{(w%2)*20480 + t*1024}')
    T = 140
    for d in range(10):
        A(f'v_lshlrev_b32 v{T+6*d}, 16, v{XR+d}\nv_and_b32 v{T+6*d+1}, 0xffff0000, v{XR+d}')
        A(f'v_lshlrev_b32 v{T+6*d+2}, 16, v{GR+d}\nv_and_b32 v{T+6*d+3}, 0xffff0000, v{GR+d}')
        A(f'v_lshlrev_b32 v{T+6*d+4}, 16, v{BR+d}\nv_and_b32 v{T+6*d+5}, 0xffff0000, v{BR+d}')
    for w in range(4):
        for d in range(10):
            A(f'v_pk_add_f32 v[{T+6*d+4}:{T+6*d+5}], v[{T+6*d+4}:{T+6*d+5}], v[{ACC+20*w+2*d}:{ACC+20*w+2*d+1}]')
    for d in range(10):
        A(f'v_pk_fma_f32 v[{T+6*d}:{T+6*d+1}], v[{T+6*d+4}:{T+6*d+5}], v[{T+6*d+2}:{T+6*d+3}], v[{T+6*d}:{T+6*d+1}]')
    for d in range(10):
        A(f'v_cvt_pk_bf16_f32 v{XR+d}, v{T+6*d}, v{T+6*d+1}')
    A(f'buffer_store_dwordx4 v[{XR}:{XR+3}], v6, s[16:19], s26 offen\nbuffer_store_dwordx4 v[{XR+4}:{XR+7}], v6, s[16:19], s26 offen offset:64\nbuffer_store_dwordx2 v[{XR+8}:{XR+9}], v7, s[16:19], s26 offen offset:128')
    A.label('K4_END')
    A('s_endpgm')
    return khead('k4_kernel') + A.finish() + kd('k4_kernel', 512, 256)

def build(extra_empty=0):
    hdr = '; five-launch pipeline: weight re-layout + modulation | LN+QKV+attention | out-proj | LN+MLP up | MLP down\n'
    hdr += f'; @launch kernel=k0_kernel grid=(256,1,1) block=(256,1,1) lds={32*PITCH}\n'
    hdr += '; @launch kernel=k1_kernel grid=(256,1,1) block=(256,1,1) lds=113664\n'
    hdr += '; @launch kernel=k2_kernel grid=(256,1,1) block=(256,1,1) lds=102400\n'
    hdr += '; @launch kernel=k3_kernel grid=(256,1,1) block=(256,1,1) lds=81920\n'
    hdr += '; @launch kernel=k4_kernel grid=(256,1,1) block=(256,1,1) lds=81920\n'
    for i in range(extra_empty):
        hdr += '; @launch kernel=ke_kernel grid=(256,1,1) block=(256,1,1) lds=0\n'
    body = '.amdgcn_target "amdgcn-amd-amdhsa--gfx950"\n' + k0() + k1() + k2() + k3() + k4()
    if extra_empty:
        body += khead('ke_kernel') + '  s_endpgm\n' + kd('ke_kernel', 8, 8)
    return hdr + body

if __name__ == '__main__':
    out = sys.argv[1]
    open(out, 'w').write(build(int(sys.argv[2]) if len(sys.argv) > 2 else 0))
```

```python
import re

REG_RE = re.compile(r'\b([vas])(\d+)\b|\b([vas])\[(\d+):(\d+)\]|\b(vcc|exec|m0|scc)\b')
TRANS = ('v_exp_f32', 'v_log_f32', 'v_rcp_f32', 'v_rsq_f32', 'v_sqrt_f32', 'v_sin_f32', 'v_cos_f32')

def regs_of(tok):
    out = set()
    for m in REG_RE.finditer(tok):
        if m.group(1):
            out.add((m.group(1), int(m.group(2))))
        elif m.group(3):
            for i in range(int(m.group(4)), int(m.group(5)) + 1):
                out.add((m.group(3), i))
        else:
            out.add((m.group(6), 0))
    return out

def split_ops(s):
    ops, depth, cur = [], 0, ''
    for ch in s:
        if ch == '[': depth += 1
        if ch == ']': depth -= 1
        if ch == ',' and depth == 0:
            ops.append(cur.strip()); cur = ''
        else:
            cur += ch
    if cur.strip(): ops.append(cur.strip())
    return ops

class Ins:
    def __init__(self, text, tag=None):
        self.text = text.strip()
        self.tag = tag
        t = self.text.split(';')[0].strip()
        self.op = t.split()[0] if t else ''
        rest = t[len(self.op):].strip()
        self.ops = split_ops(rest)
        self.classify()
        m = re.search(r'offset:(-?\d+)', t)
        if m:
            o = int(m.group(1))
            if self.op.startswith('buffer_'): assert 0 <= o <= 4095, text
            if self.op.startswith('global_'): assert -4096 <= o <= 4095, text
            if self.op.startswith('ds_'): assert 0 <= o <= 65535, text

    def classify(self):
        op, ops = self.op, self.ops
        self.kind = 'other'; self.w = set(); self.r = set()
        self.dpp = False; self.perm = False; self.rdlane = False; self.srcC = set(); self.srcAB = set()
        self.wide_store = False; self.lds_dma = False; self.passes = 0
        allr = [regs_of(o) for o in ops]
        uni = lambda lst: set().union(*lst) if lst else set()
        if op.endswith(':') or op.startswith('.') or op == '':
            self.kind = 'label'; return
        if op.startswith('v_mfma'):
            self.kind = 'mfma'; self.w = allr[0]; self.srcAB = allr[1] | allr[2]; self.srcC = allr[3]
            self.r = self.srcAB | self.srcC
            self.passes = 8 if '32x32' in op else 4
            return
        if op.startswith('v_'):
            self.kind = 'valu'
            base = op.replace('_e32', '').replace('_e64', '').replace('_dpp', '').replace('_sdwa', '')
            if base in TRANS: self.kind = 'trans'
            if base.startswith('v_dot2'): self.kind = 'dot'
            self.dpp = ('_dpp' in op) or any(k in self.text for k in ('row_shr', 'row_ror', 'row_shl', 'quad_perm', 'row_mirror', 'row_half_mirror', 'row_bcast', 'row_newbcast'))
            if base.startswith('v_permlane'):
                self.perm = True; self.w = allr[0] | allr[1]; self.r = allr[0] | allr[1]; return
            if base in ('v_readfirstlane_b32', 'v_readlane_b32'):
                self.rdlane = True
            if base in ('v_add_co_u32', 'v_sub_co_u32', 'v_addc_co_u32', 'v_subb_co_u32', 'v_subrev_co_u32', 'v_mad_u64_u32'):
                self.w = allr[0] | allr[1]; self.r = uni(allr[2:]); return
            self.w = allr[0]; self.r = uni(allr[1:])
            if base in ('v_fmac_f32', 'v_dot2c_f32_bf16', 'v_writelane_b32', 'v_pk_fmac_f16') or self.dpp or 'UNUSED_PRESERVE' in self.text:
                self.r |= allr[0]
            if base.startswith('v_cmpx'): self.w |= {('exec', 0)}
            return
        if op.startswith('buffer_') or op.startswith('global_'):
            toks = self.text.split(';')[0].split()
            if op in ('buffer_inv', 'buffer_wbl2'):
                self.kind = 'vstore'; return
            if 'lds' in toks or '_lds_' in op:
                self.kind = 'vload'; self.lds_dma = True; self.r = uni(allr) | {('m0', 0)}; return
            if '_load_' in op:
                self.kind = 'vload'; self.w = allr[0]; self.r = uni(allr[1:])
                if 'd16' in op: self.r |= allr[0]
                return
            if '_atomic_' in op:
                if 'sc0' in toks:
                    self.kind = 'vload'
                    self.w = allr[0]; self.r = uni(allr) if op.startswith('buffer_') else uni(allr[1:])
                else:
                    self.kind = 'vstore'; self.r = uni(allr)
                return
            self.kind = 'vstore'; self.r = uni(allr)
            self.wide_store = ('x3' in op or 'x4' in op)
            self.sdata = allr[0] if op.startswith('buffer_') else allr[1]
            return
        if op.startswith('ds_'):
            if op.startswith('ds_read') or 'permute' in op or 'swizzle' in op or '_rtn_' in op:
                self.kind = 'dsread'; self.w = allr[0]; self.r = uni(allr[1:])
                if 'd16' in op: self.r |= allr[0]
            else:
                self.kind = 'dswrite'; self.r = uni(allr)
            return
        if op.startswith('s_load') or op.startswith('s_buffer_load') or op in ('s_memtime', 's_memrealtime'):
            self.kind = 'smem'; self.w = allr[0]; self.r = uni(allr[1:]); return
        if op == 's_waitcnt': self.kind = 'wait'; return
        if op == 's_nop': self.kind = 'nop'; return
        if op in ('s_barrier', 's_endpgm', 's_sleep', 's_setprio') : self.kind = 'misc'; return
        if op.startswith('s_cbranch') or op == 's_branch': self.kind = 'branch'; return
        if op.startswith('s_cmp') or op.startswith('s_bitcmp'):
            self.kind = 'salu'; self.r = uni(allr); return
        if op.startswith('s_'):
            self.kind = 'salu'; self.w = allr[0] if allr else set(); self.r = uni(allr[1:])
            if 'saveexec' in op: self.w |= {('exec', 0)}
            if op in ('s_addk_i32', 's_mulk_i32', 's_cmov_b32'): self.r |= allr[0]
            return
        raise ValueError('unknown instr: ' + self.text)

    def is_valu(self): return self.kind in ('valu', 'trans', 'dot')
    def states(self):
        if self.kind == 'label': return 0
        if self.kind == 'nop': return int(self.ops[0], 0) + 1
        return 1

def vg(s): return {x for x in s if x[0] in 'va' and x[0] != 'vcc'}
def isv(x): return x[0] == 'v' or x[0] == 'a'
def iss(x): return x[0] == 's' or x[0] == 'vcc'

def need_ws(p, c):
    n = 0
    pw_v = {x for x in p.w if isv(x)}
    pw_s = {x for x in p.w if iss(x)}
    if p.is_valu():
        if c.kind == 'mfma' and (pw_v & c.r): n = max(n, 2 if p.kind != 'dot' else 3)
        if c.is_valu():
            if c.dpp and (pw_v & c.r): n = max(n, 2)
            if c.perm and (pw_v & c.r): n = max(n, 2)
            if c.rdlane and (pw_v & c.r): n = max(n, 1)
            if pw_s & c.r: n = max(n, 4 if c.rdlane or c.op.startswith('v_writelane') else 2)
            if p.kind == 'trans' and c.kind != 'trans' and (pw_v & c.r): n = max(n, 1)
            if ('sdwa' in p.op or 'op_sel' in p.text) and (pw_v & (c.r | c.w)): n = max(n, 1)
        if p.kind == 'trans' and c.kind in ('vstore', 'dswrite', 'vload', 'dsread') and (pw_v & c.r): n = max(n, 1)
        if p.kind == 'dot':
            if c.kind == 'dot' and c.op == p.op:
                ab = (regs_of(c.ops[1]) | regs_of(c.ops[2]))
                if pw_v & ab: n = max(n, 3)
            elif (pw_v & (c.r | c.w)): n = max(n, 3)
        if c.kind in ('vload', 'vstore') and (pw_s & c.r): n = max(n, 5)
        if ('exec', 0) in p.w:
            if c.kind == 'mfma' or c.perm or c.rdlane: n = max(n, 4)
            if c.dpp: n = max(n, 5)
    if p.kind == 'salu' and ('m0', 0) in p.w and c.lds_dma: n = max(n, 1)
    if p.kind == 'mfma':
        big = p.passes == 8
        if c.kind == 'mfma':
            if p.w & c.srcAB: n = max(n, 12 if big else 8)
            if p.w & c.srcC:
                if not (p.w == c.srcC and p.passes == c.passes): n = max(n, 10 if big else 6)
            elif p.w & c.w:
                n = max(n, 12 if big else 8)
        elif c.is_valu() or c.kind in ('vload', 'vstore', 'dsread', 'dswrite'):
            if p.w & (c.r | c.w): n = max(n, 12 if big else 8)
        if c.is_valu() and (p.srcC & c.w): n = max(n, 7 if big else 3)
    if p.kind == 'vstore' and p.wide_store:
        if (p.sdata & c.w): n = max(n, 2)
    return n

class Asm:
    def __init__(self):
        self.ins = []
    def __call__(self, text, tag=None):
        for line in text.split('\n'):
            line = line.strip()
            if line and not line.startswith(';'):
                self.ins.append(Ins(line, tag))
    def label(self, name, tag=None): self.ins.append(Ins(name + ':', tag))
    def raw(self, text, nvm=0, tag=None, drains_lgkm=True):
        i = Ins('s_nop 7'); i.kind = 'raw'; i.text = text; i.nvm = nvm; i.tag = tag; self.ins.append(i)
    def wait_tag(self, tag):
        i = Ins('s_waitcnt'); i.kind = 'waittag'; i.tag = tag; self.ins.append(i)
    def wait_all(self): self('s_waitcnt vmcnt(0) lgkmcnt(0)')

    def finish(self):
        out = []
        vq = []
        lq = []
        def emit(i):
            need = 0; dist = 0
            for p in reversed(out):
                if p.kind == 'label' and not p.op.startswith('.'):
                    pass
                k = need_ws(p, i)
                if k - dist > need: need = k - dist
                dist += p.states()
                if dist >= 20: break
            while need > 0:
                n = min(need, 16)
                out.append(Ins('s_nop %d' % (n - 1))); need -= n
            out.append(i)
        def do_wait(vn, ln):
            nonlocal vq, lq
            parts = []
            if vn is not None and vn < len(vq):
                parts.append('vmcnt(%d)' % min(vn, 63));
                vq = vq[len(vq) - min(vn, 63):] if vn > 0 else []
            if ln is not None and ln < len(lq):
                if any(x.kind == 'smem' for x in lq): ln = 0
                parts.append('lgkmcnt(%d)' % min(ln, 15))
                lq = lq[len(lq) - min(ln, 15):] if ln > 0 else []
            if parts: emit(Ins('s_waitcnt ' + ' '.join(parts)))
        for i in self.ins:
            if i.kind == 'raw':
                do_wait(None, 0)
                out.append(Ins('s_nop 4')); out.append(i); out.append(Ins('s_nop 4'))
                for _ in range(i.nvm):
                    d = Ins('buffer_inv'); d.tag = i.tag; vq.append(d)
                continue
            if i.tag == 'touch': i.w = set()
            if i.kind == 'waittag':
                tags = i.tag if isinstance(i.tag, (list, tuple, set)) else [i.tag]
                vn = ln = None
                for k, x in enumerate(vq):
                    if x.tag in tags: vn = len(vq) - 1 - k
                for k, x in enumerate(lq):
                    if x.tag in tags: ln = len(lq) - 1 - k
                do_wait(vn, ln); continue
            if i.kind == 'wait':
                m = re.search(r'vmcnt\((\d+)\)', i.text)
                if m:
                    n = int(m.group(1)); vq = vq[len(vq) - n:] if 0 < n < len(vq) else ([] if n == 0 else vq)
                m = re.search(r'lgkmcnt\((\d+)\)', i.text)
                if m:
                    n = int(m.group(1)); lq = lq[len(lq) - n:] if 0 < n < len(lq) else ([] if n == 0 else lq)
                emit(i); continue
            if i.kind in ('label', 'branch') and not i.op.startswith('.'):
                if not (i.tag == 'inflight_ok'):
                    pend_v = [k for k, x in enumerate(vq) if x.w]
                    pend_l = [k for k, x in enumerate(lq) if x.w]
                    if pend_v or pend_l:
                        raise ValueError('loads in flight across control flow at ' + i.text)
                emit(i); continue
            touch = i.r | i.w
            vn = ln = None
            for k, x in enumerate(vq):
                if x.w & touch: vn = len(vq) - 1 - k
            for k, x in enumerate(lq):
                if x.w & touch: ln = len(lq) - 1 - k
            do_wait(vn, ln)
            emit(i)
            if i.kind in ('vload', 'vstore'): vq.append(i)
            if i.kind in ('dsread', 'dswrite', 'smem'): lq.append(i)
        return '\n'.join(('' if x.kind in ('label', 'raw') else '  ') + x.text.rstrip('\n') for x in out) + '\n'

def v(i, n=1): return f'v{i}' if n == 1 else f'v[{i}:{i+n-1}]'
def a(i, n=1): return f'a{i}' if n == 1 else f'a[{i}:{i+n-1}]'
def s(i, n=1): return f's{i}' if n == 1 else f's[{i}:{i+n-1}]'
def R(i, n=1):
    if i >= 256: return a(i - 256, n)
    assert i + n <= 256
    return v(i, n)

def kd(name, vgpr, accum, sgpr=96):
    return f'''.section .rodata,"a"
.p2align 6
.amdhsa_kernel {name}
  .amdhsa_next_free_vgpr {vgpr}
  .amdhsa_next_free_sgpr {sgpr}
  .amdhsa_accum_offset {accum}
  .amdhsa_group_segment_fixed_size 0
  .amdhsa_kernarg_size 104
  .amdhsa_user_sgpr_count 2
  .amdhsa_user_sgpr_kernarg_segment_ptr 1
  .amdhsa_system_sgpr_workgroup_id_x 1
.end_amdhsa_kernel
'''
def khead(name):
    return f'.text\n.globl {name}\n.p2align 8\n.type {name},@function\n{name}:\n'
```

```python
import sys, struct
from asmlib import *

NAME = 'adaLN_cond__sliding_local_dilated__mixer_channel_mlp__prompt'
SZ = dict(x=2621440, wqkv=640*1920*2, wo=640*640*2, w1=640*1728*2, b1=1728*2, w2=1728*640*2, b2=1280, c=1280, wmod=640*3840*2, out=2621440)
MODB = 0
FLG  = 0x4000
WQ_F = 0x10000
WO_F = WQ_F + 8*4*20*4096
W1_F = WO_F + 8*20*5*1024
W2_F = W1_F + 27*20*4096
O_F  = W2_F + 8*54*5*1024
Z_F  = O_F + 32*4*20*1024
HID  = Z_F + 32*4*20*1024
STA  = HID + 32*54*4*1024
STB  = STA + 32*4*8*1024
MODP = STB + 32*4*8*512
WS_END = MODP + 3840*16
FLA = 0x8000
FLB = 0x8400
EPO = 0xC000
OOB = 0x70000000
OOBS = 0x6000000
LOG2E = 1.4426950408889634
def f2u(x): return struct.unpack('<I', struct.pack('<f', x))[0]
def hx(x): return '0x%08x' % (x & 0xffffffff)
def fl(x): return hx(f2u(x))

def srd(A, d, ptr, size):
    A(f's_mov_b32 s{d}, s{ptr}\ns_mov_b32 s{d+1}, s{ptr+1}\ns_mov_b32 s{d+2}, {size}\ns_mov_b32 s{d+3}, 0x20000')

class Cfg: STAMP = False
STAMP_OFF = 64 << 20
class St:
    def __init__(self, A, k, wsp=40): self.A, self.k, self.n, self.wsp = A, k, 0, wsp
    def __call__(self):
        if not Cfg.STAMP: return
        A = self.A
        A('s_memrealtime s[92:93]\ns_waitcnt lgkmcnt(0)')
        A(f's_mov_b32 s{64+self.n}, s92'); self.n += 1
        assert self.n <= 28
    def flush(self, n=None):
        if not Cfg.STAMP: return
        A = self.A
        A('s_waitcnt vmcnt(0)')
        if n is not None: self.n = n
        self()
        k = self.n
        A(f's_add_u32 s62, s{self.wsp}, {STAMP_OFF + self.k*256*8*128}\ns_addc_u32 s63, s{self.wsp+1}, 0')
        A('s_lshl_b32 s61, s2, 3\ns_add_u32 s61, s61, s3\ns_lshl_b32 s61, s61, 7\nv_mov_b32 v0, s61')
        for i in range(k):
            A(f'v_mov_b32 v1, s{64+i}\nglobal_store_dword v0, v1, s[62:63] offset:{4*i}')
        A(f'v_mov_b32 v1, {k}\nglobal_store_dword v0, v1, s[62:63] offset:120')
        A('v_mov_b32 v1, 0x57A3B001\nglobal_store_dword v0, v1, s[62:63] offset:124')

class Buf:
    def __init__(self): self.l = []
    def __call__(self, text, tag=None):
        lines = [l.strip() for l in text.split('\n') if l.strip()]
        k = 0
        while k < len(lines):
            if lines[k].startswith('s_cmp'):
                g = [lines[k]]; k += 1
                while k < len(lines) and (lines[k].startswith('s_cselect') or lines[k].startswith('s_cmov')):
                    g.append(lines[k]); k += 1
                self.l.append(('\n'.join(g), tag))
            else:
                self.l.append((lines[k], tag)); k += 1

def cost(line):
    if '\n' in line: return min(1.0, sum(cost(l) for l in line.split('\n')))
    op = line.split()[0]
    if op.startswith('s_'): return 0.5
    if any(op.startswith(t) for t in TRANS) or op.startswith('v_permlane'): return 2
    return 1

def merge(A, main, side, budget=2.0, start=0):
    side = list(side.l); main = main.l
    k = 0; nm = 0; i = 0
    while i < len(main):
        line, tag = main[i]; A(line, tag); i += 1
        if line.startswith('v_mfma'):
            nm += 1
            used = 0
            j = i
            while j < len(main) and not main[j][0].startswith('v_mfma'):
                used += cost(main[j][0]); j += 1
            if nm > start:
                while k < len(side) and used + cost(side[k][0]) <= budget + 1e-9:
                    A(*side[k]); used += cost(side[k][0]); k += 1
    while k < len(side):
        A(*side[k]); k += 1
```

```python
from common import *
MF = 'v_mfma_f32_16x16x32_bf16'
PA, PB = 672, 1312
LRED, LB = 24576, 32768
X4 = 102400; ZERO = X4 + 7680
MODF = 112704
VEC = 151552
LDS_BYTES = VEC + 5120
def unpack(A, dst, src):
    A(f'v_lshlrev_b32 v{dst}, 16, v{src}\nv_and_b32 v{dst+1}, 0xffff0000, v{src}')
def pr(r): return f'v[{r}:{r+1}]'
IF = 'inflight_ok'

LD, CR = 216, 236
def mod_issue(B, cg, q):
    srd(B, 16, 46, SZ['wmod'])
    B(f's_mul_i32 s6, s{q}, 160\ns_mul_i32 s7, s3, 40\ns_add_u32 s6, s6, s7')
    B('v_lshrrev_b32 v12, 3, v2\nv_mul_u32_u24 v12, 5, v12\nv_add_u32 v12, s6, v12')
    B('v_mul_u32_u24 v13, 7680, v12\nv_and_b32 v14, 7, v2\nv_lshl_add_u32 v13, v14, 4, v13\nv_lshlrev_b32 v12, 1, v12')
    B(f's_lshl_b32 s6, s{cg}, 7')
    for i in range(5):
        B(f'buffer_load_dwordx4 {v(LD+4*i,4)}, v13, s[16:19], s6 offen nt', tag='touch')
        if i < 4: B('s_add_u32 s6, s6, 7680')
    for i in range(5): B(f'v_mov_b32 v{CR+i}, 0')
    for i in range(5): B(f'buffer_load_short_d16_hi v{CR+i}, v12, s[96:99], 0 offen offset:{2*i}', tag='touch')
def mod_proc(B, cg, q, npad):
    T = 241
    B(f's_mov_b32 s6, {fl(-LOG2E)}')
    for i in range(5): B(f'v_mul_f32 v{T+i}, s6, v{CR+i}')
    for i in range(5): B(f'v_exp_f32 v{T+i}, v{T+i}')
    for i in range(5): B(f'v_add_f32 v{T+i}, 1.0, v{T+i}')
    for i in range(5): B(f'v_rcp_f32 v{T+i}, v{T+i}')
    for i in range(5): B(f'v_mul_f32 v{CR+i}, v{CR+i}, v{T+i}')
    for i in range(5): B(f'v_cvt_pk_bf16_f32 v{CR+i}, v{CR+i}, v{CR+i}')
    for i in range(5): B(f'v_and_b32 v{CR+i}, 0xffff0000, v{CR+i}')
    AC = 248
    for i in range(5):
        for d in range(4):
            t = 242 + 2*(d & 1)
            unpack(B, t, LD+4*i+d)
            if i == 0: B(f'v_mul_f32 v{AC+2*d}, v{t}, v{CR}\nv_mul_f32 v{AC+2*d+1}, v{t+1}, v{CR}')
            else: B(f'v_fmac_f32 v{AC+2*d}, v{t}, v{CR+i}\nv_fmac_f32 v{AC+2*d+1}, v{t+1}, v{CR+i}')
    B(f's_lshl_b32 s6, s3, 11\ns_add_u32 s6, s6, {LRED}\nv_lshl_add_u32 v12, v2, 5, s6')
    B(f'ds_write_b128 v12, {v(AC,4)}\nds_write_b128 v12, {v(AC+4,4)} offset:16')
    B('v_lshlrev_b32 v12, 2, v2')
    B(f's_cmp_eq_u32 s3, 0\ns_cselect_b32 s6, 0, {OOB}\nv_add_u32 v13, s6, v1')
    B(f's_lshl_b32 s6, s{cg}, 10\ns_lshl_b32 s7, s{q}, 2\ns_add_u32 s6, s6, s7\ns_add_u32 s6, s6, {MODP}')
    B('s_waitcnt lgkmcnt(0)\ns_barrier')
    for i in range(32): B(f'ds_read_b32 v{LD+i}, v12 offset:{LRED+256*i}')
    for stp in (16, 8, 4, 2, 1):
        for i in range(stp): B(f'v_add_f32 v{LD+i}, v{LD+i}, v{LD+i+stp}')
    B(f'buffer_store_dword v{LD}, v13, s[12:15], s6 offen sc1')
    pad_st(B, npad - 1)
def pad_st(B, n):
    for _ in range(n): B('buffer_store_dword v11, v11, s[12:15], 0 offen')
def pad_ld(B, n):
    for _ in range(n): B('buffer_load_dword v0, v11, s[12:15], 0 offen', tag='touch')

def slotA_issue():
    B = Asm()
    B('s_cmp_lt_u32 s2, 80\ns_cbranch_scc1 SA_M0\ns_cmp_ge_u32 s2, 200\ns_cbranch_scc1 SA_M1')
    B('s_sub_u32 s6, s2, 80\ns_mul_i32 s54, s6, 10923\ns_lshr_b32 s54, s54, 16\ns_mul_i32 s55, s54, 6\ns_sub_u32 s55, s6, s55')
    srd(B, 16, 30, SZ['wqkv'])
    B('s_lshl_b32 s6, s54, 5\ns_add_u32 s6, s6, s60\ns_mul_i32 s6, s6, 3840\ns_mul_i32 s7, s55, 640\ns_add_u32 s6, s6, s7')
    B(f's_mul_i32 s7, s3, {8*PA}')
    B('s_mov_b32 exec_hi, 0xff')
    for i in range(8):
        B(f's_add_u32 m0, s7, {i*PA}')
        B('buffer_load_dwordx4 v1, s[16:19], s6 offen nt lds')
        if i < 7: B(f's_add_u32 s6, s6, {3840*(5 if i == 3 else 1)}')
    B('s_mov_b64 exec, -1\ns_mov_b32 s95, 0\ns_branch SA_END')
    B.label('SA_M0')
    B('s_mul_i32 s55, s2, 3277\ns_lshr_b32 s55, s55, 16\ns_mul_i32 s54, s55, 20\ns_sub_u32 s54, s2, s54\ns_branch SA_M')
    B.label('SA_M1')
    B('s_sub_u32 s54, s2, 180\ns_mov_b32 s55, 0\ns_cmp_ge_u32 s2, 240\ns_cselect_b32 s55, 1, 0\ns_cselect_b32 s6, 40, 0\ns_sub_u32 s54, s54, s6')
    B.label('SA_M')
    mod_issue(B, 54, 55)
    B('s_mov_b32 s95, 1')
    B.label('SA_END')
    return B.finish()

def slotA_proc():
    B = Asm()
    B('s_cmp_eq_u32 s95, 1\ns_cbranch_scc1 PA_M')
    B('s_barrier')
    B(f'v_lshrrev_b32 v12, 2, v2\nv_mul_u32_u24 v12, {PA}, v12\nv_and_b32 v13, 3, v2\ns_mul_i32 s6, s3, 160\nv_add_u32 v12, s6, v12')
    B('v_mul_u32_u24 v14, 40, v13\nv_add_u32 v14, v14, v12\nv_lshl_add_u32 v12, v13, 3, v12')
    for t in range(5):
        d = LD + 4*t
        ad, off = ('v12', 40*t) if t < 4 else ('v14', 32)
        B(f'ds_read_b64_tr_b16 {v(d,2)}, {ad} offset:{off}\nds_read_b64_tr_b16 {v(d+2,2)}, {ad} offset:{off+16*PA}')
    B(f's_and_b32 s6, s55, 1\ns_lshl_b32 s6, s6, 2\ns_add_u32 s6, s6, s3\ns_mul_i32 s6, s6, {4*20*4096}\ns_lshl_b32 s7, s54, 12\ns_add_u32 s6, s6, s7\ns_add_u32 s6, s6, {WQ_F}')
    B(f's_lshr_b32 s7, s55, 1\ns_mul_i32 s24, s7, {20*4096}\ns_add_u32 s24, s24, s6\ns_lshl_b32 s7, s7, 10\ns_add_u32 s6, s6, s7')
    for t in range(4):
        B(f'buffer_store_dwordx4 {v(LD+4*t,4)}, v1, s[12:15], s6 offen sc1')
        if t < 3: B(f's_add_u32 s6, s6, {20*4096}')
    B(f'buffer_store_dwordx4 {v(LD+16,4)}, v1, s[12:15], s24 offen offset:3072 sc1')
    B('s_branch PA_END')
    B.label('PA_M')
    mod_proc(B, 54, 55, 5)
    B.label('PA_END')
    return B.finish()

def slotB_issue():
    B = Asm()
    B('s_and_b32 s20, s3, 1\ns_lshr_b32 s21, s3, 1')
    B('s_cmp_lt_u32 s2, 104\ns_cbranch_scc1 SB_M\ns_cmp_ge_u32 s2, 238\ns_cbranch_scc1 SB_NONE')
    B('s_cmp_ge_u32 s2, 124\ns_cbranch_scc1 SB_NOTO')
    B('s_sub_u32 s54, s2, 104')
    srd(B, 16, 32, SZ['wo'])
    B('s_mul_i32 s7, s54, 40\ns_mul_i32 s22, s20, 20\ns_add_u32 s7, s7, s22\ns_lshl_b32 s22, s21, 2\ns_add_u32 s7, s7, s22')
    B('s_sub_u32 s6, s54, 16\ns_mul_i32 s6, s6, 160\ns_mul_i32 s22, s20, 80\ns_add_u32 s6, s6, s22\ns_mul_i32 s22, s21, 20\ns_add_u32 s6, s6, s22\ns_add_u32 s6, s6, 16')
    B(f's_cmp_ge_u32 s54, 16\ns_cselect_b32 s7, s6, s7\ns_mov_b32 s25, {5*1280}\ns_cmov_b32 s25, {37*1280}')
    B('s_mov_b32 s23, 1280\ns_mul_i32 s24, s7, 1280\ns_mov_b32 s26, 0xffff\ns_mov_b32 s95, 1')
    B(f's_mul_i32 s56, s54, 5120\ns_add_u32 s56, s56, {WO_F}\ns_mov_b32 s57, {20*5120}')
    B('s_branch SB_LOAD')
    B.label('SB_NOTO')
    B('s_cmp_ge_u32 s2, 184\ns_cbranch_scc1 SB_W2')
    B('s_sub_u32 s6, s2, 124\ns_mul_i32 s54, s6, 43691\ns_lshr_b32 s54, s54, 17\ns_mul_i32 s55, s54, 3\ns_sub_u32 s55, s6, s55')
    srd(B, 16, 36, SZ['w1'])
    B('s_lshr_b32 s7, s54, 1\ns_mul_i32 s7, s7, 80\ns_and_b32 s22, s54, 1\ns_lshl_b32 s22, s22, 5\ns_add_u32 s7, s7, s22\ns_add_u32 s7, s7, s60')
    B('s_sub_u32 s6, s54, 16\ns_mul_i32 s6, s6, 160\ns_mul_i32 s22, s21, 80\ns_add_u32 s6, s6, s22\ns_lshl_b32 s22, s20, 3\ns_add_u32 s6, s6, s22\ns_add_u32 s6, s6, 64')
    B(f's_cmp_ge_u32 s54, 16\ns_cselect_b32 s7, s6, s7\ns_mov_b32 s25, {5*3456}\ns_cmov_b32 s25, 3456')
    B('s_mov_b32 s23, 3456\ns_mul_i32 s24, s7, 3456\ns_mul_i32 s22, s55, 1152\ns_add_u32 s24, s24, s22')
    B('s_mov_b32 s26, 0xff\ns_mov_b32 s95, 2')
    B('s_branch SB_LOAD')
    B.label('SB_W2')
    B('s_sub_u32 s54, s2, 184')
    srd(B, 16, 40, SZ['w2'])
    B('s_lshl_b32 s7, s54, 5\ns_lshl_b32 s22, s3, 3\ns_add_u32 s7, s7, s22')
    B('s_mov_b32 s23, 1280\ns_mul_i32 s24, s7, 1280\ns_mov_b32 s25, 1280\ns_mov_b32 s26, 0xffff\ns_mov_b32 s95, 1')
    B(f's_mul_i32 s56, s54, 5120\ns_add_u32 s56, s56, {W2_F}\ns_mov_b32 s57, {54*5120}')
    B.label('SB_LOAD')
    B(f's_mul_i32 s7, s3, {8*PB}\ns_add_u32 s7, s7, {LB}')
    for tail in range(2):
        B('s_mov_b32 s6, s24')
        if tail: B('s_mov_b32 exec_lo, s26\ns_mov_b32 exec_hi, 0')
        for i in range(8):
            B(f's_add_u32 m0, s7, {i*PB}')
            B(f'buffer_load_dwordx4 v1, s[16:19], s6 offen offset:{1024*tail} nt lds')
            if i < 7: B(f's_add_u32 s6, s6, s{25 if i == 3 else 23}')
    B('s_mov_b64 exec, -1\ns_branch SB_END')
    B.label('SB_M')
    B('s_add_u32 s6, s2, 56\ns_mul_i32 s55, s6, 1639\ns_lshr_b32 s55, s55, 16\ns_mul_i32 s54, s55, 40\ns_sub_u32 s54, s6, s54\ns_add_u32 s54, s54, 20')
    mod_issue(B, 54, 55)
    pad_ld(B, 6)
    B('s_mov_b32 s95, 0\ns_branch SB_END')
    B.label('SB_NONE')
    pad_ld(B, 16)
    B('s_mov_b32 s95, 3')
    B.label('SB_END')
    return B.finish()

def slotB_proc():
    B = Asm()
    H = 16*PB; D = 216
    B(f'v_lshrrev_b32 v12, 2, v2\nv_mul_u32_u24 v12, {PB}, v12\nv_and_b32 v13, 3, v2\nv_add_u32 v12, {LB}, v12')
    B('s_cmp_eq_u32 s95, 0\ns_cbranch_scc1 PB_M\ns_cmp_eq_u32 s95, 2\ns_cbranch_scc1 PB_W1\ns_cmp_eq_u32 s95, 3\ns_cbranch_scc1 PB_NONE')
    B('s_mul_i32 s6, s3, 320\nv_add_u32 v12, s6, v12\nv_lshl_add_u32 v14, v13, 3, v12\nv_lshl_add_u32 v12, v13, 4, v12')
    for e in range(2):
        for t in range(5):
            d = D + (e*5 + t)*4
            ad, off = ('v12', 160*e + 64*(t >> 1) + 8*(t & 1)) if t < 4 else ('v14', 160*e + 128)
            B(f'ds_read_b64_tr_b16 {a(d,2)}, {ad} offset:{off}\nds_read_b64_tr_b16 {a(d+2,2)}, {ad} offset:{off+H}')
    B('s_mul_i32 s6, s3, s57\ns_lshl_b32 s6, s6, 1\ns_add_u32 s6, s6, s56')
    for e in range(2):
        B('s_add_u32 s7, s6, 4096')
        for t in range(5):
            d = D + (e*5 + t)*4
            B(f'buffer_store_dwordx4 {a(d,4)}, v1, s[12:15], s{6 if t < 4 else 7} offen offset:{1024*(t%4)} sc1')
        if e == 0: B('s_add_u32 s6, s6, s57')
    B('s_branch PB_END')
    B.label('PB_W1')
    B('s_lshl_b32 s6, s3, 5\nv_add_u32 v12, s6, v12\nv_lshl_add_u32 v12, v13, 3, v12')
    for i in range(9):
        d = D + i*4
        B(f'ds_read_b64_tr_b16 {a(d,2)}, v12 offset:{128*i}\nds_read_b64_tr_b16 {a(d+2,2)}, v12 offset:{128*i+H}')
    B(f's_mul_i32 s6, s55, {9*20*4096}\ns_lshl_b32 s7, s54, 12\ns_add_u32 s6, s6, s7\ns_lshl_b32 s7, s3, 10\ns_add_u32 s6, s6, s7\ns_add_u32 s6, s6, {W1_F}')
    for i in range(9):
        B(f'buffer_store_dwordx4 {a(D+4*i,4)}, v1, s[12:15], s6 offen sc1')
        if i < 8: B(f's_add_u32 s6, s6, {20*4096}')
    pad_st(B, 1)
    B('s_branch PB_END')
    B.label('PB_M')
    mod_proc(B, 54, 55, 10)
    B('s_branch PB_END')
    B.label('PB_NONE')
    pad_st(B, 10)
    B.label('PB_END')
    return B.finish()

def kp():
    A = Asm()
    A('s_cmp_ge_u32 s2, 256\ns_cbranch_scc1 KP_END')
    st = St(A, 0); st()
    A('s_load_dwordx16 s[28:43], s[0:1], 0\ns_load_dwordx8 s[44:51], s[0:1], 64\ns_load_dwordx2 s[52:53], s[0:1], 96')
    A('s_and_b32 s6, s2, 7\ns_lshr_b32 s7, s2, 3')
    A('s_lshr_b32 s4, s6, 1\ns_lshl_b32 s4, s4, 3\ns_lshr_b32 s5, s7, 2\ns_add_u32 s4, s4, s5')
    A('s_and_b32 s5, s6, 1\ns_lshl_b32 s5, s5, 2\ns_and_b32 s7, s7, 3\ns_add_u32 s5, s5, s7')
    A('v_lshrrev_b32 v1, 6, v0\nv_and_b32 v2, 63, v0\nv_readfirstlane_b32 s3, v1\nv_lshlrev_b32 v1, 4, v2')
    XR, XN = 116, 16
    A('v_lshrrev_b32 v3, 4, v2\ns_mul_i32 s6, s3, 20\nv_add_u32 v15, s6, v3')
    A('s_lshl_b32 s7, s4, 6\ns_sub_u32 s7, s7, 16\nv_add_u32 v4, s7, v15')
    A('s_movk_i32 s6, 1280\nv_mul_lo_u32 v4, v4, s6\nv_and_b32 v5, 15, v2\nv_lshl_add_u32 v4, v5, 4, v4')
    for i in range(1, 5): A(f'v_add_u32 v{5+i}, {5120*i}, v4')
    A(f'v_mov_b32 v11, {OOB}\nv_cmp_eq_u32 vcc, 0, v0\nv_cndmask_b32_e64 v10, v11, 0, vcc')
    A('s_and_b32 s6, s3, 1\ns_lshl_b32 s60, s6, 4\ns_lshr_b32 s6, s3, 1\ns_lshl_b32 s6, s6, 2\ns_add_u32 s60, s60, s6')
    A('s_waitcnt lgkmcnt(0)')
    A(f's_load_dword s94, s[52:53], {EPO}')
    srd(A, 8, 28, SZ['x']); srd(A, 12, 52, WS_END); srd(A, 96, 44, SZ['c'])
    blk = slotA_issue()
    A.ins.append(Ins('s_nop 0')); A.ins[-1].kind = 'label'; A.ins[-1].op = '.raw'; A.ins[-1].text = blk.rstrip('\n')
    xo = ['v4', 'v6', 'v7', 'v8', 'v9']
    xl = [(i, m) for i in range(5) for m in range(5)]
    def xload(lo, hi):
        for i, m in xl[lo:hi]:
            A(f'buffer_load_dwordx4 {v(XR+(i*5+m)*4,4)}, {xo[i]}, s[8:11], 0 offen offset:{256*m}')
    NX0, NX1 = 7, 15
    xload(0, NX0)
    A(f's_mul_i32 s94, s94, 0x2c9277b5\ns_add_u32 s94, s94, 0xac564b05')
    A(f's_waitcnt vmcnt({NX0})')
    st()
    A.raw(slotA_proc(), nvm=5, tag='sa')
    xload(NX0, NX1)
    A('v_mov_b32 v14, s94\ns_lshl_b32 s6, s2, 2\ns_add_u32 s6, s6, %d' % FLA)
    A.wait_tag('sa'); A('s_barrier')
    A('buffer_store_dword v14, v10, s[12:15], s6 offen sc1')
    st()
    xload(NX1, 25)
    A.raw(slotB_issue(), nvm=16, tag='sb')
    WAr = [4, 6, 7, 8, 9]
    A('v_and_b32 v12, 7, v2')
    for i in range(5):
        t0, t1, t2 = 251, 252, 253
        A(f'v_add_u32 v{t0}, {4*i}, v15')
        A(f'v_and_b32 v{t1}, 1, v{t0}')
        A(f'v_lshrrev_b32 v{t2}, 1, v{t0}\nv_lshlrev_b32 v13, 3, v{t1}\nv_sub_u32 v{t2}, v{t2}, v13\nv_add_u32 v{t2}, 8, v{t2}')
        A(f'v_subrev_u32 v13, 16, v{t0}\nv_lshrrev_b32 v14, 5, v13\nv_lshl_add_u32 v14, v{t1}, 1, v14\nv_add_u32 v14, 1, v14')
        A(f'v_bfe_u32 v13, v13, 1, 4')
        A(f'v_cmp_gt_u32 vcc, 16, v{t0}')
        A(f'v_cndmask_b32 v13, v13, v{t2}, vcc\nv_cndmask_b32_e64 v14, v14, 0, vcc')
        A(f'v_xor_b32 v13, v13, v12\nv_lshlrev_b32 v13, 4, v13\nv_mul_u32_u24 v14, 20480, v14\nv_lshl_add_u32 v13, v5, 8, v13\nv_add_u32 v{WAr[i]}, v13, v14')
    A(f's_mov_b32 s20, 0x3f803f80\ns_mov_b32 s21, {fl(1/640)}\ns_mov_b32 s22, {fl(1e-5)}')
    S0 = 242; T = 252
    for i in range(5):
        a_, b_ = S0+2*i, S0+2*i+1
        A(f'v_mov_b32 v{a_}, 0\nv_mov_b32 v{b_}, 0')
        for d in range(20):
            r = XR + i*20 + d
            A(f'v_dot2_f32_bf16 v{a_}, v{r}, s20, v{a_}\nv_dot2c_f32_bf16 v{b_}, v{r}, v{r}')
        for n in (8, 4, 2, 1):
            A(f'v_add_f32_dpp v{a_}, v{a_}, v{a_} row_ror:{n} row_mask:0xf bank_mask:0xf\nv_add_f32_dpp v{b_}, v{b_}, v{b_} row_ror:{n} row_mask:0xf bank_mask:0xf')
            for d in range(5): unpack(A, XN + i*40 + 2*(5*[8,4,2,1].index(n) + d), XR + i*20 + 5*[8,4,2,1].index(n) + d)
        A(f'v_mul_f32 v{a_}, s21, v{a_}\nv_mul_f32 v{b_}, s21, v{b_}\nv_fma_f32 v{b_}, -v{a_}, v{a_}, v{b_}')
        A(f'v_max_f32 v{b_}, 0, v{b_}\nv_add_f32 v{b_}, s22, v{b_}\nv_rsq_f32 v{T}, v{b_}')
        A(f'v_mul_f32_e64 v{b_}, -v{a_}, v{T}\nv_mov_b32 v{a_}, v{T}')
        for d in range(20):
            t = XN + i*40 + 2*d
            A(f'v_pk_fma_f32 {pr(t)}, {pr(t)}, {pr(a_)}, {pr(a_)} op_sel:[0,0,1] op_sel_hi:[1,0,1]')
    st()
    A(f'v_cmp_gt_u32 vcc, 50, v2\nv_cndmask_b32 v12, 0, v1, vcc\ns_mov_b32 s59, 0\ns_mov_b32 s6, {FLA}')
    A('s_cmp_lg_u32 s3, 0'); A('s_cbranch_scc1 SYA_DONE', IF)
    A.label('SYA', IF)
    def chk4(r):
        A(f'v_xor_b32 v{r}, s94, v{r}\nv_xor_b32 v{r+1}, s94, v{r+1}\nv_xor_b32 v{r+2}, s94, v{r+2}\nv_xor_b32 v{r+3}, s94, v{r+3}')
        A(f'v_or3_b32 v{r}, v{r}, v{r+1}, v{r+2}\nv_or_b32 v{r}, v{r}, v{r+3}\nv_cmp_ne_u32 vcc, 0, v{r}')
    A('buffer_load_dwordx4 v[252:255], v12, s[12:15], s6 offen sc1\ns_waitcnt vmcnt(0)')
    chk4(252)
    A('s_add_u32 s59, s59, 1\ns_cmp_gt_u32 s59, 0x40000'); A('s_cbranch_scc1 SYA_DONE', IF)
    A('s_nop 3'); A('s_cbranch_vccnz SYA', IF)
    A.label('SYA_DONE', IF)
    A('s_waitcnt vmcnt(0)\ns_barrier')
    st()
    A(f's_lshl_b32 s6, s3, 10\ns_add_u32 s6, s6, {MODP}')
    for i in range(5):
        A(f'buffer_load_dwordx4 {a(196+4*i,4)}, v1, s[12:15], s6 offen sc1')
        if i < 4: A('s_add_u32 s6, s6, 4096')
    A(f's_lshl_b32 s24, s5, 2\ns_add_u32 s24, s24, s3\ns_mul_i32 s24, s24, {20*4096}\ns_add_u32 s24, s24, {WQ_F}')
    A('v_lshlrev_b32 v15, 7, v2')
    A('s_and_b32 s58, s4, 7\ns_lshl_b32 s58, s58, 13')
    A('s_add_u32 s6, s24, s58\ns_add_u32 s6, s6, 16384')
    A('buffer_load_dword v0, v15, s[12:15], s6 offen sc1', tag='touch')
    WV = 192
    def wreg(s_, t): return 256 + s_*16 + t*4 if s_ < 16 else WV + (s_-16)*16 + t*4
    wl = [(s_, t) for s_ in range(20) for t in range(4)]
    wi = [0]
    A(f's_cmp_eq_u32 s3, 3\ns_cselect_b32 s27, {OOBS}, 0')
    def wload(n=1, B=None):
        B = B or A
        for _ in range(n):
            if wi[0] >= len(wl): return
            s_, t = wl[wi[0]]; wi[0] += 1
            if t == 3: B('s_add_u32 s25, s24, s27')
            B(f'buffer_load_dwordx4 {R(wreg(s_, t), 4)}, v1, s[12:15], s{25 if t == 3 else 24} offen offset:{1024*t} sc1')
            if t == 3: B('s_add_u32 s24, s24, 4096')
    wload(6)
    A.raw(slotB_proc(), nvm=10, tag='pb')
    srd(A, 16, 48, SZ['out']); srd(A, 44, 38, SZ['b1']); srd(A, 48, 42, SZ['b2'])
    A('s_mov_b32 s40, s52\ns_mov_b32 s41, s53')
    A(f's_lshl_b32 s52, s4, 7\ns_add_u32 s52, s52, {FLG}\ns_add_u32 s54, s40, s52\ns_addc_u32 s55, s41, 0')
    A(f's_lshl_b32 s6, s5, 2\ns_add_u32 s52, s52, s6')
    A(f's_lshl_b32 s23, s3, 3\ns_add_u32 s23, s23, s5\ns_mul_i32 s53, s23, {20*4096}\ns_add_u32 s53, s53, {W1_F}')
    wload(4)
    M0 = 216
    for k in range(20): A(f'v_accvgpr_read_b32 v{M0+k}, a{196+k}')
    def modsum(B, r, plus1):
        B(f'v_add_f32 v{r}, v{r}, v{r+1}\nv_add_f32 v{r+2}, v{r+2}, v{r+3}\nv_add_f32 v{r}, v{r}, v{r+2}')
        B(f'v_cvt_pk_bf16_f32 v{r}, v{r}, v{r}\nv_and_b32 v{r}, 0xffff0000, v{r}')
        if plus1:
            B(f'v_add_f32 v{r+1}, 1.0, v{r}\nv_cvt_pk_bf16_f32 v{r+1}, v{r+1}, v{r+1}\nv_and_b32 v{r+1}, 0xffff0000, v{r+1}')
            B(f'v_mov_b32 v{r}, v{r+1}' if plus1 == 1 else f'v_cndmask_b32 v{r}, v{r}, v{r+1}, vcc')
    A('s_cmp_ge_u32 s3, 2\ns_cselect_b64 vcc, -1, 0')
    A(f's_lshl_b32 s6, s3, 8\ns_add_u32 s6, s6, {MODF}\nv_lshl_add_u32 v12, v2, 2, s6')
    for i in range(5):
        modsum(A, M0+4*i, [0, 0, 2, 1, 1][i])
        A(f'ds_write_b32 v12, v{M0+4*i} offset:{1024*i}')
    A(f'v_mov_b32 v12, 0\nv_mov_b32 v13, 0\nv_mov_b32 v14, {ZERO}\nds_write_b64 v14, v[12:13]')
    A(f'v_lshlrev_b32 v12, 5, v5\nv_add_u32 v12, {MODF}, v12')
    A('s_waitcnt lgkmcnt(0)\ns_barrier')
    st()
    def mread(m):
        d = M0 + (m & 1)*16
        A(f'ds_read_b128 {v(d,4)}, v12 offset:{512*m}\nds_read_b128 {v(d+4,4)}, v12 offset:{512*m+16}')
        A(f'ds_read_b128 {v(d+8,4)}, v12 offset:{2560+512*m}\nds_read_b128 {v(d+12,4)}, v12 offset:{2560+512*m+16}')
    mread(0)
    for m in range(5):
        if m < 4: mread(m+1)
        d0 = M0 + (m & 1)*16
        for i in range(5):
            b = XN + i*40 + 8*m
            for d in range(4): A(f'v_pk_fma_f32 {pr(b+2*d)}, {pr(b+2*d)}, {pr(d0+8+2*d)}, {pr(d0+2*d)}')
            for d in range(4): A(f'v_cvt_pk_bf16_f32 v{b+d}, v{b+2*d}, v{b+2*d+1}')
            A(f'ds_write_b128 v{WAr[i]}, {v(b,4)} offset:{4096*m}')
            wload(1)
    A('v_xor_b32 v12, v5, v3\nv_lshlrev_b32 v12, 4, v12\nv_lshl_add_u32 v12, v3, 8, v12')
    A('v_xor_b32 v13, 64, v12')
    A('v_add_u32 v8, 0x10000, v12\nv_add_u32 v9, 0x10000, v13')
    A('v_mov_b32 v14, s94\ns_lshl_b32 s6, s2, 2\ns_add_u32 s6, s6, %d' % FLB)
    A.wait_tag('pb'); A('s_waitcnt lgkmcnt(0)\ns_barrier')
    A('buffer_store_dword v14, v10, s[12:15], s6 offen sc1')
    st()
    ACC = 16
    accQ = lambda T: ACC + (T-1)*4
    accK = lambda T: ACC + 16 + T*4
    accV = lambda T: ACC + 36 + T*4
    acc4 = lambda T: ACC + 56 + T*4
    AF = 92
    def aread(B, s_, T):
        idx = T*20 + s_
        ad = (12 + (s_ & 1)) if idx < 64 else (8 + (s_ & 1))
        d = AF + (s_ & 1)*20 + T*4
        B(f'ds_read_b128 v[{d}:{d+3}], v{ad} offset:{(idx % 64)*1024}')
    for T in range(5): aread(A, 0, T)
    w1i = [0]
    def w1load(B, n, limit):
        for _ in range(n):
            if w1i[0] >= min(80, limit): return
            s_, t = wl[w1i[0]]; w1i[0] += 1
            B(f'buffer_load_dwordx4 {R(wreg(s_, t), 4)}, v11, s[12:15], s53 offen offset:{1024*t} sc1')
            if t == 3: B('s_add_u32 s53, s53, 4096')
    def g1step(B, s_, w1ok):
        for T in range(5):
            af = v(AF + (s_ & 1)*20 + T*4, 4)
            def mm(acc, a_, b_):
                B(f'{MF} {v(acc,4)}, {a_}, {b_}, {v(acc,4) if s_ else "0"}')
            if T > 0: mm(accQ(T), R(wreg(s_, 0), 4), af)
            mm(accK(T), R(wreg(s_, 1), 4), af)
            if s_ < 19: aread(B, s_+1, T)
            mm(accV(T), af, R(wreg(s_, 2), 4))
            mm(acc4(T), R(wreg(s_, 3), 4), af)
            if T > 0:
                if wi[0] < 80: wload(1, B)
                elif w1ok: w1load(B, 1, 4*s_)
    SB_ISSUE, SB_CHECK = 4, 8
    PV = 132
    for s_ in range(SB_CHECK):
        g1step(A, s_, False)
        if s_ == SB_ISSUE:
            A(f's_mov_b32 s6, {FLB}\nbuffer_load_dwordx4 {v(PV,4)}, v1, s[12:15], s6 offen sc1')
    A('s_mov_b32 s59, 0')
    chk4(PV)
    A('s_nop 3'); A('s_cbranch_vccz SYB_DONE', IF)
    A.label('SYB', IF)
    Bk = Asm()
    Bk(f'buffer_load_dwordx4 {v(PV,4)}, v1, s[12:15], s6 offen sc1\ns_waitcnt vmcnt(0)')
    A.ins.append(Ins('s_nop 0')); A.ins[-1].kind = 'label'; A.ins[-1].op = '.raw'; A.ins[-1].text = Bk.finish().rstrip('\n')
    chk4(PV)
    A('s_add_u32 s59, s59, 1\ns_cmp_gt_u32 s59, 0x40000'); A('s_cbranch_scc1 SYB_DONE', IF)
    A('s_nop 3'); A('s_cbranch_vccnz SYB', IF)
    A.label('SYB_DONE', IF)
    st()
    M = Buf(); S = Buf()
    S(f's_cmp_eq_u32 s2, 0\ns_cselect_b32 s6, {EPO}, s14\nbuffer_store_dword v14, v10, s[12:15], s6 offen sc1')
    S(f's_cmp_ge_u32 s23, 27\ns_cselect_b32 s6, {OOBS}, 0\nv_add_u32 v11, s6, v1')
    S(f's_lshl_b32 s26, s58, 2\ns_lshl_b32 s7, s3, 13\ns_add_u32 s26, s26, s7\ns_mul_i32 s7, s5, {100*1024}\ns_add_u32 s7, s7, s26\ns_add_u32 s7, s7, {WO_F}')
    S(f's_cmp_lt_u32 s26, {100*1024}\ns_cselect_b32 s7, s7, s14')
    S('buffer_load_dword v0, v15, s[12:15], s7 offen sc1', tag='touch')
    S(f's_add_u32 s7, s53, s58\ns_add_u32 s7, s7, 16384\ns_add_u32 s7, s7, s6')
    S('buffer_load_dword v0, v15, s[12:15], s7 offen sc1', tag='touch')
    VL = 136
    S(f's_lshl_b32 s6, s3, 10\ns_add_u32 s6, s6, {MODP + 1920*16}')
    for i in range(5):
        S(f'buffer_load_dwordx4 {v(VL+4*i,4)}, v1, s[12:15], s6 offen sc1')
        if i < 4: S('s_add_u32 s6, s6, 4096')
    S('s_lshl_b32 s6, s3, 6\nv_add_u32 v4, s6, v2')
    S(f'v_mov_b32 v6, {(3200-80-1280)*16}\nv_cmp_le_u32 vcc, 80, v4\nv_cndmask_b32 v6, 0, v6, vcc\nv_lshl_add_u32 v6, v4, 4, v6')
    S(f's_mul_i32 s6, s5, {80*16}\ns_add_u32 s6, s6, {MODP + 1280*16}')
    S(f'buffer_load_dwordx4 {v(VL+20,4)}, v6, s[12:15], s6 offen sc1')
    S(f'v_mov_b32 v{VL+24}, s20\nv_mov_b32 v{VL+25}, s20\nv_lshlrev_b32 v6, 3, v4\nv_add_u32 v6, {VEC}, v6\nds_write_b64 v6, {v(VL+24,2)} offset:3072')
    S(f'v_lshlrev_b32 v6, 1, v4\nv_add_u32 v6, {VEC}, v6')
    for s_ in range(SB_CHECK, 14): g1step(M, s_, False)
    merge(A, M, S, budget=2.0)
    M = Buf(); S = Buf()
    S('s_cmp_ge_u32 s3, 2\ns_cselect_b64 vcc, -1, 0')
    for i in range(6):
        modsum(S, VL+4*i, [0, 0, 2, 1, 1, 0][i])
        S(f'ds_write_b16_d16_hi v6, v{VL+4*i} offset:{512*i}')
    for s_ in range(14, 20): g1step(M, s_, True)
    merge(A, M, S, budget=2.0)
    st()
    QF, KF, VS, V4 = 92, 108, 132, 144
    BC, BP, BH = 156, 160, 164
    AD = 168
    A('v_lshlrev_b32 v4, 3, v2')
    A(f's_mul_i32 s6, s3, 2560\ns_add_u32 s6, s6, {X4}\ns_cmp_eq_u32 s3, 3\ns_cselect_b32 s6, {ZERO+64}, s6\nv_add_u32 v6, s6, v4')
    A(f'v_lshlrev_b32 v7, 2, v3\nv_sub_u32 v7, v5, v7')
    A(f'v_mov_b32 v8, {fl(-1e30)}')
    for T in range(5):
        c = acc4(T)
        A(f'v_cvt_pk_bf16_f32 v{c}, v{c}, v{c+1}\nv_cvt_pk_bf16_f32 v{c+1}, v{c+2}, v{c+3}')
        A(f'ds_write_b64 v6, v[{c}:{c+1}] offset:{512*T}')
    A(f'v_cmp_eq_u32 vcc, s3, v3')
    A(f'v_add_u32 v9, {X4}, v4')
    A(f'v_xor_b32 v{AD}, 64, v9')
    A(f'v_lshrrev_b32 v{AD+8}, 2, v2\nv_lshlrev_b32 v{AD+8}, 3, v{AD+8}\ns_lshl_b32 s6, s3, 7\ns_add_u32 s6, s6, {X4+5120}\nv_add_u32 v{AD+8}, s6, v{AD+8}\nv_xor_b32 v12, 64, v{AD+8}')
    A(f'v_mov_b32 v{AD+9}, {ZERO}')
    for T in range(1, 5):
        A(f'v_add_u32 v13, {512*T}, v9\nv_cndmask_b32 v{AD+T}, v{AD+9}, v13, vcc')
    A('s_waitcnt lgkmcnt(0)\ns_barrier')
    for T in range(1, 5): A(f'ds_read_b64 v[{QF+(T-1)*4+2}:{QF+(T-1)*4+3}], v{AD+T}')
    for T in range(5): A(f'ds_read_b64 v[{KF+T*4+2}:{KF+T*4+3}], v9 offset:{2560+512*T}')
    A(f'ds_read_b64 v[{KF+22}:{KF+23}], v{AD} offset:2560')
    vpos = {0: 0, 1: 2, 2: 4, 3: 8, 4: 10}
    for T in range(5): A(f'ds_read_b64_tr_b16 v[{V4+vpos[T]}:{V4+vpos[T]+1}], v{AD+8} offset:{512*T}')
    A(f'ds_read_b64_tr_b16 v[{V4+6}:{V4+7}], v12')
    A(f's_mul_i32 s25, s5, {100*1024}\ns_mul_i32 s26, s3, {25*1024}\ns_add_u32 s25, s25, s26\ns_add_u32 s25, s25, {WO_F}')
    woi = [0]
    def woload(n=1):
        for _ in range(n):
            i = woi[0]
            if i >= 25: return
            woi[0] += 1
            if i % 4 == 0: A(f's_add_u32 m0, s26, {i*1024}')
            A(f'buffer_load_dwordx4 v1, s[12:15], s25 offen offset:{(i % 4)*1024} sc1 lds', tag='wo')
            if i % 4 == 3: A('s_add_u32 s25, s25, 4096')
    woload(4)
    for T in range(5):
        if T > 0:
            c = accQ(T); A(f'v_cvt_pk_bf16_f32 v{QF+(T-1)*4}, v{c}, v{c+1}\nv_cvt_pk_bf16_f32 v{QF+(T-1)*4+1}, v{c+2}, v{c+3}')
        c = accK(T); A(f'v_cvt_pk_bf16_f32 v{KF+T*4}, v{c}, v{c+1}\nv_cvt_pk_bf16_f32 v{KF+T*4+1}, v{c+2}, v{c+3}')
    woload(2)
    for r in range(4):
        A(f'v_subrev_u32 v9, {r}, v7')
        A(f'v_cmp_gt_u32 vcc, 8, v9\nv_cmp_gt_i32 s[36:37], -8, v9')
        A(f'v_cndmask_b32_e64 v{BC+r}, v8, 0, vcc\nv_cndmask_b32_e64 v{BP+r}, v8, 0, s[36:37]')
    A('v_cmp_gt_i32 s[36:37], -5, v7')
    A('s_cmp_eq_u32 s4, 0\ns_cselect_b64 s[38:39], -1, 0')
    for r in range(4): A(f'v_cndmask_b32_e64 v{BH+r}, v{BP+r}, v8, s[38:39]')
    for d in range(2): A(f'v_mov_b32_dpp v{KF+20+d}, v{KF+d} row_ror:8 row_mask:0xf bank_mask:0xf')
    woload(2)
    SC, SP = 16, 32
    prevK = {1: 0, 2: 1, 3: 5, 4: 3}
    for T in range(1, 5):
        q = v(QF+(T-1)*4, 4)
        A(f'{MF} {v(SC+(T-1)*4,4)}, {v(KF+T*4,4)}, {q}, {v(BC,4)}')
        A(f'{MF} {v(SP+(T-1)*4,4)}, {v(KF+prevK[T]*4,4)}, {q}, {v(BH if T in (1,3) else BP,4)}')
    woload(2)
    for T in range(5):
        c = accV(T); A(f'v_cvt_pk_bf16_f32 v{VS+vpos[T]}, v{c}, v{c+1}\nv_cvt_pk_bf16_f32 v{VS+vpos[T]+1}, v{c+2}, v{c+3}')
    for d in range(2): A(f'v_mov_b32 v{VS+6+d}, v{VS+d}\nv_mov_b32 v{AD+6+d}, v{VS+d}')
    for d in range(2): A(f'v_permlane32_swap_b32 v{VS+6+d}, v{AD+6+d}')
    A(f's_mov_b32 s20, {fl(20**-0.5 * LOG2E)}')
    MX, M2 = 48, 52
    woload(2)
    for t in range(4):
        for r in range(4): A(f'v_max_f32 v{SC+4*t+r}, v{SC+4*t+r}, v{SP+4*t+r}')
    for t in range(4):
        A(f'v_max3_f32 v{MX+t}, v{SC+4*t}, v{SC+4*t+1}, v{SC+4*t+2}\nv_max_f32 v{MX+t}, v{MX+t}, v{SC+4*t+3}')
    def xgroup(B, op, base, tmp, n=4):
        for sw in ('v_permlane32_swap_b32', 'v_permlane16_swap_b32'):
            for t in range(n): B(f'v_mov_b32 v{tmp+t}, v{base+t}')
            for t in range(n): B(f'{sw} v{base+t}, v{tmp+t}')
            for t in range(n): B(f'{op} v{base+t}, v{base+t}, v{tmp+t}')
    woload(2)
    xgroup(A, 'v_max_f32', MX, M2)
    woload(3)
    for t in range(4): A(f'v_mul_f32 v{MX+t}, s20, v{MX+t}')
    for t in range(4):
        for r in range(4): A(f'v_fma_f32 v{SC+4*t+r}, v{SC+4*t+r}, s20, -v{MX+t}')
    woload(2)
    for t in range(4):
        for r in range(4): A(f'v_exp_f32 v{SC+4*t+r}, v{SC+4*t+r}')
    woload(3)
    PF = 56
    for t in range(4):
        A(f'v_cvt_pk_bf16_f32 v{SP+2*t}, v{SC+4*t}, v{SC+4*t+1}\nv_cvt_pk_bf16_f32 v{SP+2*t+1}, v{SC+4*t+2}, v{SC+4*t+3}')
    for t in range(4):
        for d in range(2):
            A(f'v_cndmask_b32_e64 v{PF+4*t+d}, 0, v{SP+2*t+d}, s[36:37]')
            A(f'v_cndmask_b32_e64 v{PF+4*t+2+d}, v{SP+2*t+d}, 0, s[36:37]')
    woload(3)
    OM, O4 = 72, 92
    win = {0: 0, 1: 2, 2: 6, 3: 8}
    for t in range(4):
        A(f'{MF} {v(OM+4*t,4)}, {v(VS+win[t],4)}, {v(PF+4*t,4)}, 0')
        A(f'{MF} {v(O4+4*t,4)}, {v(V4+win[t],4)}, {v(PF+4*t,4)}, 0')
    for t in range(4):
        A(f'v_add_f32 v{MX+t}, v{SC+4*t}, v{SC+4*t+1}\nv_add_f32 v{M2+t}, v{SC+4*t+2}, v{SC+4*t+3}')
    for t in range(4): A(f'v_add_f32 v{MX+t}, v{MX+t}, v{M2+t}')
    xgroup(A, 'v_add_f32', MX, M2)
    for t in range(4): A(f'v_rcp_f32 v{MX+t}, v{MX+t}')
    A(f's_lshl_b32 s6, s5, 2\ns_add_u32 s6, s6, s3')
    A(f's_mul_i32 s7, s4, {4*20*1024}\ns_add_u32 s7, s7, {O_F}')
    A(f's_lshl_b32 s56, s6, 9\ns_add_u32 s56, s56, s7')
    A(f's_add_u32 s57, s56, {2*20480}')
    A(f'v_and_b32 v6, 1, v3\nv_mul_u32_u24 v6, 20480, v6\nv_lshrrev_b32 v7, 1, v3\nv_lshl_add_u32 v6, v7, 8, v6\nv_lshl_add_u32 v6, v5, 4, v6')
    A(f's_lshr_b32 s24, s6, 1\ns_lshl_b32 s24, s24, 8\ns_and_b32 s27, s6, 1\ns_lshl_b32 s27, s27, 3\ns_add_u32 s24, s24, s27\ns_add_u32 s24, s24, s7\ns_add_u32 s24, s24, {16*1024}')
    A(f'v_mul_u32_u24 v7, 20480, v3\nv_lshl_add_u32 v7, v5, 4, v7')
    for t in range(4):
        for r in range(4): A(f'v_mul_f32 v{OM+4*t+r}, v{OM+4*t+r}, v{MX+t}')
    for p_ in range(2):
        a_, b_ = OM + 8*p_, OM + 8*p_ + 4
        o = 32 + 4*p_
        A(f'v_cvt_pk_bf16_f32 v{o}, v{a_}, v{a_+1}\nv_cvt_pk_bf16_f32 v{o+1}, v{a_+2}, v{a_+3}')
        A(f'v_cvt_pk_bf16_f32 v{o+2}, v{b_}, v{b_+1}\nv_cvt_pk_bf16_f32 v{o+3}, v{b_+2}, v{b_+3}')
    for p_ in range(2):
        o = 32 + 4*p_
        A(f'v_permlane16_swap_b32 v{o}, v{o+2}\nv_permlane16_swap_b32 v{o+1}, v{o+3}')
        A(f'buffer_store_dwordx4 v[{o}:{o+3}], v6, s[12:15], s{56+p_} offen sc1', tag='o')
    for t in range(1, 4):
        A(f'v_cmp_eq_u32 vcc, {t}, v3')
        for r in range(4): A(f'v_cndmask_b32 v{O4+r}, v{O4+r}, v{O4+4*t+r}, vcc')
        A(f'v_cndmask_b32 v{MX}, v{MX}, v{MX+t}, vcc')
    for r in range(4): A(f'v_mul_f32 v{O4+r}, v{O4+r}, v{MX}')
    A(f'v_cvt_pk_bf16_f32 v{O4}, v{O4}, v{O4+1}\nv_cvt_pk_bf16_f32 v{O4+1}, v{O4+2}, v{O4+3}')
    A(f'buffer_store_dwordx2 v[{O4}:{O4+1}], v7, s[12:15], s24 offen sc1', tag='o')
    st()
    def publish(ph, tag):
        A.wait_tag(tag); A('s_barrier')
        A(f's_add_u32 s6, s52, {4096*ph}\nbuffer_store_dword v14, v10, s[12:15], s6 offen sc1')
    def acquire(ph):
        A('s_waitcnt lgkmcnt(0)\ns_mov_b32 s59, 0\ns_cmp_lg_u32 s3, 0'); A(f's_cbranch_scc1 ACQ{ph}_DONE', IF)
        A.label(f'ACQ{ph}', IF)
        A(f's_load_dwordx8 s[28:35], s[54:55], {4096*ph} glc')
        A('s_waitcnt lgkmcnt(0)')
        for k in range(8): A(f's_xor_b32 s{28+k}, s{28+k}, s94')
        A('s_or_b64 s[28:29], s[28:29], s[30:31]\ns_or_b64 s[32:33], s[32:33], s[34:35]\ns_or_b64 s[28:29], s[28:29], s[32:33]\ns_or_b32 s28, s28, s29')
        A('s_add_u32 s59, s59, 1\ns_cmp_gt_u32 s59, 0x40000'); A(f's_cbranch_scc1 ACQ{ph}_DONE', IF)
        A('s_cmp_lg_u32 s28, 0'); A(f's_cbranch_scc1 ACQ{ph}', IF)
        A.label(f'ACQ{ph}_DONE', IF)
        A('s_barrier')
    assert woi[0] == 25
    w1load(A, 10, 80)
    publish(0, 'o')
    OF, WB, ACC, RG, RA, RB, RX = 16, 96, 132, 152, 162, 172, 182
    NB = 9
    A('s_lshl_b32 s6, s4, 6\ns_and_b32 s7, s3, 1\ns_lshl_b32 s7, s7, 5\ns_add_u32 s6, s6, s7\ns_lshr_b32 s7, s3, 1\ns_add_u32 s6, s6, s7')
    A('s_mul_i32 s6, s6, 1280\ns_mul_i32 s7, s5, 160\ns_add_u32 s26, s6, s7')
    A('v_mul_u32_u24 v6, 2560, v5\nv_lshl_add_u32 v7, v3, 3, v6\nv_lshl_add_u32 v6, v3, 4, v6')
    A('v_lshlrev_b32 v8, 4, v3\nv_lshlrev_b32 v9, 3, v3')
    def ld10(B, d, va, vb, sr, so, off=0):
        B(f'buffer_load_dwordx4 v[{d}:{d+3}], {va}, {sr}, {so} offen offset:{off}\nbuffer_load_dwordx4 v[{d+4}:{d+7}], {va}, {sr}, {so} offen offset:{off+64}\nbuffer_load_dwordx2 v[{d+8}:{d+9}], {vb}, {sr}, {so} offen offset:{off+128}')
    def lv10(B, d, va, vb, off):
        B(f'ds_read_b128 {v(d,4)}, {va} offset:{off}\nds_read_b128 {v(d+4,4)}, {va} offset:{off+64}\nds_read_b64 {v(d+8,2)}, {vb} offset:{off+128}')
    ld10(A, RX, 'v6', 'v7', 's[8:11]', 's26')
    w1load(A, 14, 80)
    A(f'v_add_u32 v12, {VEC}, v8\nv_add_u32 v13, {VEC}, v9')
    lv10(A, RG, 'v12', 'v13', 2560)
    A('v_add_u32 v12, s7, v12\nv_add_u32 v13, s7, v13')
    lv10(A, RB, 'v12', 'v13', 0)
    lv10(A, RA, 'v12', 'v13', 1280)
    A(f's_lshl_b32 s24, s4, 2\ns_add_u32 s24, s24, s3\ns_mul_i32 s24, s24, 20480\ns_add_u32 s25, s24, {Z_F}\ns_add_u32 s24, s24, {O_F}')
    A('v_add_u32 v4, 0x10000, v1')
    acquire(0)
    st()
    for s_ in range(20):
        A(f'buffer_load_dwordx4 {v(OF+4*s_,4)}, v1, s[12:15], s24 offen offset:{1024*(s_%4)} sc1')
        if s_ % 4 == 3: A('s_add_u32 s24, s24, 4096')
    M = Buf(); S = Buf()
    items = [(s_, t) for s_ in range(20) for t in range(5)]
    def rd(B, k):
        d = WB + (k % NB)*4
        B(f'ds_read_b128 v[{d}:{d+3}], {"v1" if k < 64 else "v4"} offset:{(k % 64)*1024}')
    for k in range(NB-1): rd(A, k)
    for k, (s_, t) in enumerate(items):
        M(f'{MF} {v(ACC+4*t,4)}, {v(WB+(k%NB)*4,4)}, {v(OF+4*s_,4)}, {v(ACC+4*t,4) if s_ else "0"}')
        if k + NB - 1 < 100: rd(M, k + NB - 1)
        if k >= 30 and k % 4 == 0: w1load(M, 1, 80)
    XU, GU, AU, BU = 16, 36, 56, 76
    for d in range(10): unpack(S, XU+2*d, RX+d)
    for d in range(10): unpack(S, GU+2*d, RG+d)
    merge(A, M, S, budget=2.0, start=52)
    for d in range(10): unpack(A, AU+2*d, RA+d)
    st()
    ZU = 96
    for d in range(10): A(f'v_pk_fma_f32 {pr(XU+2*d)}, {pr(ACC+2*d)}, {pr(GU+2*d)}, {pr(XU+2*d)}')
    for d in range(10): A(f'v_pk_mul_f32 {pr(ZU+2*d)}, {pr(XU+2*d)}, {pr(AU+2*d)}')
    ZP = 116
    for d in range(10): A(f'v_cvt_pk_bf16_f32 v{ZP+d}, v{ZU+2*d}, v{ZU+2*d+1}')
    A('s_lshl_b32 s6, s5, 11\ns_add_u32 s6, s6, s25')
    A(f's_lshr_b32 s27, s5, 1\ns_lshl_b32 s27, s27, 10\ns_add_u32 s27, s27, s25\ns_and_b32 s24, s5, 1\ns_lshl_b32 s24, s24, 3\ns_add_u32 s27, s27, s24\ns_add_u32 s27, s27, {16*1024}')
    A(f'buffer_store_dwordx4 v[{ZP}:{ZP+3}], v1, s[12:15], s6 offen sc1\nbuffer_store_dwordx4 v[{ZP+4}:{ZP+7}], v1, s[12:15], s6 offen offset:1024 sc1', tag='z')
    A(f'buffer_store_dwordx2 v[{ZP+8}:{ZP+9}], v1, s[12:15], s27 offen sc1', tag='z')
    for d in range(10): unpack(A, BU+2*d, RB+d)
    SS = 132
    for d in range(10):
        x_, z_, a_, b_ = pr(XU+2*d), pr(ZU+2*d), pr(AU+2*d), pr(BU+2*d)
        if d == 0:
            A(f'v_pk_add_f32 {pr(SS)}, {x_}, {pr(XU+2)}\nv_pk_mul_f32 {pr(SS+2)}, {x_}, {x_}\nv_pk_add_f32 {pr(SS+4)}, {z_}, {pr(ZU+2)}')
            A(f'v_pk_mul_f32 {pr(SS+6)}, {z_}, {a_}\nv_pk_mul_f32 {pr(SS+8)}, {z_}, {z_}\nv_pk_mul_f32 {pr(SS+10)}, {z_}, {b_}')
        else:
            if d > 1: A(f'v_pk_add_f32 {pr(SS)}, {pr(SS)}, {x_}')
            A(f'v_pk_fma_f32 {pr(SS+2)}, {x_}, {x_}, {pr(SS+2)}')
            if d > 1: A(f'v_pk_add_f32 {pr(SS+4)}, {pr(SS+4)}, {z_}')
            A(f'v_pk_fma_f32 {pr(SS+6)}, {z_}, {a_}, {pr(SS+6)}\nv_pk_fma_f32 {pr(SS+8)}, {z_}, {z_}, {pr(SS+8)}\nv_pk_fma_f32 {pr(SS+10)}, {z_}, {b_}, {pr(SS+10)}')
    for k in range(6): A(f'v_add_f32 v{144+k}, v{SS+2*k}, v{SS+2*k+1}')
    A(f's_lshl_b32 s6, s4, 2\ns_add_u32 s6, s6, s3\ns_lshl_b32 s6, s6, 3')
    A(f's_lshl_b32 s56, s6, 10\ns_add_u32 s56, s56, {STA}\ns_lshl_b32 s57, s6, 9\ns_add_u32 s57, s57, {STB}')
    A(f's_lshl_b32 s6, s5, 10\ns_add_u32 s6, s6, s56\ns_lshl_b32 s27, s5, 9\ns_add_u32 s27, s27, s57')
    A('v_lshlrev_b32 v150, 3, v2')
    A('buffer_store_dwordx4 v[144:147], v1, s[12:15], s6 offen sc1\nbuffer_store_dwordx2 v[148:149], v150, s[12:15], s27 offen sc1', tag='z')
    for d in range(10): A(f'v_cvt_pk_bf16_f32 v{RX+d}, v{XU+2*d}, v{XU+2*d+1}')
    st()
    w1load(A, 80, 80)
    A('s_mul_i32 s60, s3, 14\ns_cmp_eq_u32 s3, 3\ns_cselect_b32 s60, 41, s60')
    A(f's_mul_i32 s24, s5, 54\ns_add_u32 s24, s24, s60\ns_mul_i32 s24, s24, 5120\ns_add_u32 s24, s24, {W2_F}')
    A('s_add_u32 s6, s24, s58\ns_add_u32 s6, s6, 6144')
    A('buffer_load_dword v0, v15, s[12:15], s6 offen sc1', tag='touch')
    MFR = 16
    A('v_and_b32 v12, 3, v2')
    A(f'v_mov_b32 v13, {VEC+3072}\nv_cmp_eq_u32 vcc, 0, v12\nv_mov_b32 v4, {VEC+1280}\nv_cndmask_b32 v13, v13, v4, vcc')
    A(f'v_cmp_eq_u32 vcc, 1, v12\nv_mov_b32 v4, {VEC}\nv_cndmask_b32 v13, v13, v4, vcc')
    A('v_add_u32 v12, v13, v8\nv_add_u32 v13, v13, v9')
    B1R = 96
    A('v_lshlrev_b32 v4, 1, v5\ns_lshl_b32 s6, s23, 7')
    for t in range(4): A(f'v_mov_b32 v{B1R+t}, 0')
    for t in range(4): A(f'buffer_load_short_d16_hi v{B1R+t}, v4, s[44:47], s6 offen offset:{32*t}')
    for s_ in range(16): A(f'ds_read_b128 {v(MFR+4*s_,4)}, v12 offset:{160*(s_>>1)+64*(s_&1)}')
    for s_ in range(16, 20):
        for h in range(2): A(f'ds_read_b64 {v(MFR+4*s_+2*h,2)}, v13 offset:{320*(s_-16)+160*h+128}')
    UA, GA = 100, 116
    def ustep(B, s_):
        for t in range(4): B(f'{MF} {v(UA+4*t,4)}, {v(MFR+4*s_,4)}, {R(wreg(s_,t),4)}, {v(UA+4*t,4) if s_ else "0"}')
        B(f'{MF} {v(GA,4)}, {v(MFR+4*s_,4)}, {v(MFR+4*s_,4)}, {v(GA,4) if s_ else "0"}')
    for s_ in range(6): ustep(A, s_)
    publish(1, 'z')
    W2L = 90112
    A(f's_mul_i32 s27, s3, 15360\ns_add_u32 s27, s27, {W2L}')
    M = Buf(); S = Buf()
    for s_ in range(6, 20): ustep(M, s_)
    merge(A, M, S)
    UF = 16
    for r in range(3): A(f'v_mul_f32 v{GA+r}, s21, v{GA+r}')
    for t in range(4):
        u = UA + 4*t; d = UF + 4*t
        A(f'v_cvt_pk_bf16_f32 v{d}, v{u}, v{u+1}\nv_cvt_pk_bf16_f32 v{d+1}, v{u+2}, v{B1R+t}')
        A(f'v_lshlrev_b32 v120, 16, v{d}\nv_and_b32 v121, 0xffff0000, v{d}\nv_lshlrev_b32 v122, 16, v{d+1}')
        A(f'v_sub_f32 v120, v{u}, v120\nv_sub_f32 v121, v{u+1}, v121\nv_sub_f32 v122, v{u+2}, v122')
        A(f'v_cvt_pk_bf16_f32 v{d+2}, v120, v121\nv_cvt_pk_bf16_f32 v{d+3}, v122, 0')
    A(f'v_readlane_b32 s36, v{GA}, 0\nv_readlane_b32 s37, v{GA+1}, 0\nv_readlane_b32 s38, v{GA+2}, 0\nv_readlane_b32 s39, v{GA+1}, 1\nv_readlane_b32 s42, v{GA+2}, 1')
    A(f's_mul_i32 s25, s4, {4*20480}\ns_add_u32 s25, s25, {Z_F}')
    A('s_and_b32 s6, s3, 1\ns_mul_i32 s6, s6, 20480\ns_lshr_b32 s43, s3, 1')
    st()
    acquire(1)
    st()
    def zdma(base, n, tag):
        for i in range(n):
            if i % 4 == 0: A(f's_add_u32 m0, s{base}, {i*1024}\ns_add_u32 s58, s25, m0')
            A(f'buffer_load_dwordx4 v1, s[12:15], s58 offen offset:{(i%4)*1024} sc1 lds', tag=tag)
    A('s_lshl_b32 s53, s43, 12\ns_add_u32 s53, s53, s6'); zdma(53, 4, 'z0')
    A('s_mul_i32 s53, s43, 6144\ns_add_u32 s53, s53, s6\ns_add_u32 s53, s53, 8192'); zdma(53, 6, 'z1')
    CF, KC, ACC, ZR = 32, 48, 64, 128
    SL4, SL2 = 96, 152
    A('v_lshlrev_b32 v12, 3, v2')
    A('v_add_u32 v4, 0x10000, v1')
    def zread(B, half, s_):
        for e in range(2):
            idx = (2*half + e)*20 + s_; d = ZR + (s_ % 3)*8 + 4*e
            B(f'ds_read_b128 {v(d,4)}, {"v1" if idx < 64 else "v4"} offset:{(idx % 64)*1024}')
    def gstep(B, half, s_):
        for e in range(2):
            for t in range(4):
                acc = ACC + ((2*half + e)*4 + t)*4
                B(f'{MF} {v(acc,4)}, {R(wreg(s_,t),4)}, {v(ZR+(s_%3)*8+4*e,4)}, {v(acc,4) if s_ else "0"}')
    A.wait_tag('z0'); A('s_barrier')
    zread(A, 0, 0); zread(A, 0, 1)
    M = Buf(); S = Buf()
    for s_ in range(6):
        zread(M, 0, s_+2); gstep(M, 0, s_)
    for j in range(8):
        if j == 4: S('s_add_u32 s56, s56, 4096')
        S(f'buffer_load_dwordx4 {v(SL4+4*j,4)}, v1, s[12:15], s56 offen offset:{1024*(j%4)} sc1')
        S(f'buffer_load_dwordx2 {v(SL2+2*j,2)}, v12, s[12:15], s57 offen offset:{512*j} sc1')
    S('s_mul_i32 s53, s43, 10240\ns_add_u32 s53, s53, s6\ns_add_u32 s53, s53, 40960')
    for i in range(10):
        if i % 4 == 0: S(f's_add_u32 m0, s53, {i*1024}\ns_add_u32 s58, s25, m0')
        S(f'buffer_load_dwordx4 v1, s[12:15], s58 offen offset:{(i%4)*1024} sc1 lds', tag='z2')
    merge(A, M, S, budget=1.0)
    A.wait_tag('z1'); A('s_barrier')
    M = Buf(); S = Buf()
    for s_ in range(6, 20):
        if s_ + 2 < 20: zread(M, 0, s_+2)
        gstep(M, 0, s_)
        i = s_ - 5
        if True:
            pass
    def w2stage(B, lo, hi):
        for i in range(lo, hi):
            if i % 4 == 0: B(f's_add_u32 m0, s27, {i*1024}')
            B(f'buffer_load_dwordx4 v1, s[12:15], s24 offen offset:{(i%4)*1024} sc1 lds', tag='w2l')
            if i % 4 == 3: B('s_add_u32 s24, s24, 4096')
        if hi == 15: B('s_add_u32 s24, s24, 3072')
    for j in range(1, 8):
        for k in range(4): S(f'v_add_f32 v{SL4+k}, v{SL4+k}, v{SL4+4*j+k}')
        for k in range(2): S(f'v_add_f32 v{SL2+k}, v{SL2+k}, v{SL2+2*j+k}')
    S(f'v_mov_b32 v{SL4+4}, v{SL2}\nv_mov_b32 v{SL4+5}, v{SL2+1}')
    w2stage(S, 0, 4)
    xgroup(S, 'v_add_f32', SL4, SL4+8, 6)
    w2stage(S, 4, 8)
    q = SL4
    for k in range(6): S(f'v_mul_f32 v{q+k}, s21, v{q+k}')
    t = SL4 + 8
    S(f'v_fma_f32 v{q+1}, -v{q}, v{q}, v{q+1}\nv_max_f32 v{q+1}, 0, v{q+1}\nv_add_f32 v{q+1}, s22, v{q+1}\nv_rsq_f32 v{t}, v{q+1}')
    S(f'v_fma_f32 v{q+2}, -v{q}, s38, v{q+2}')
    S(f'v_fma_f32 v{q+5}, -v{q}, s37, v{q+5}')
    S(f'v_mul_f32 v{t+1}, s36, v{q}\nv_fma_f32 v{t+1}, v{q+3}, -2.0, v{t+1}\nv_fma_f32 v{q+4}, v{q}, v{t+1}, v{q+4}')
    S(f'v_mul_f32 v{q+1}, v{q+1}, v{t}')
    S(f'v_fma_f32 v{q+2}, v{t}, v{q+2}, s42')
    S(f'v_mul_f32 v{q+4}, v{q+4}, v{t}\nv_fma_f32 v{q+4}, v{q+5}, 2.0, v{q+4}\nv_fma_f32 v{q+4}, v{q+4}, v{t}, s39')
    S(f'v_fma_f32 v{q+4}, -v{q+2}, v{q+2}, v{q+4}\nv_max_f32 v{q+4}, 0, v{q+4}\nv_add_f32 v{q+4}, s22, v{q+4}\nv_rsq_f32 v{t+1}, v{q+4}')
    w2stage(S, 8, 12)
    S(f'v_sub_f32 v{q}, 0, v{q}')
    S(f'v_mul_f32_e64 v{q+2}, -v{q+2}, v{q+1}')
    S(f'v_mul_f32 v{q+4}, v{q+4}, v{t+1}\nv_mul_f32 v{q+3}, v{q+4}, v{q+1}')
    S(f'v_mul_f32 v{t}, v{t}, v{t+1}')
    c0 = -2*0.7978845608028654*LOG2E
    k_ = SL4 + 12
    S(f'v_mul_f32 v{k_}, {fl(c0)}, v{t}\nv_mul_f32 v{k_+1}, v{t}, v{t}\nv_mul_f32 v{k_+1}, v{k_+1}, v{k_}\nv_mul_f32 v{k_+1}, {fl(0.044715)}, v{k_+1}\nv_mov_b32 v{k_+2}, v{q+3}\nv_mov_b32 v{k_+3}, 0')
    h_ = SL4 + 16
    S(f'v_cvt_pk_bf16_f32 v{h_}, v{q}, v{q+1}\nv_cvt_pk_bf16_f32 v{h_+1}, v{q+2}, v{q+3}')
    unpack(S, h_+4, h_); unpack(S, h_+6, h_+1)
    for k in range(4): S(f'v_sub_f32 v{h_+4+k}, v{q+k}, v{h_+4+k}')
    S(f'v_cvt_pk_bf16_f32 v{h_+2}, v{h_+4}, v{h_+5}\nv_cvt_pk_bf16_f32 v{h_+3}, v{h_+6}, v{h_+7}')
    f_ = SL4 + 24
    S('v_cmp_eq_u32 vcc, 0, v3\nv_cmp_eq_u32 s[28:29], 1, v3')
    S(f'v_cndmask_b32_e64 v{f_}, 0, v{h_+2}, s[28:29]\nv_cndmask_b32_e64 v{f_+1}, 0, v{h_+3}, s[28:29]')
    S(f'v_cndmask_b32 v{f_}, v{f_}, v{h_}, vcc\nv_cndmask_b32 v{f_+1}, v{f_+1}, v{h_+1}, vcc')
    S(f'v_cndmask_b32 v{f_+2}, 0, v{h_}, vcc\nv_cndmask_b32 v{f_+3}, 0, v{h_+1}, vcc')
    CFX = 81920
    S(f's_lshl_b32 s6, s3, 10\ns_add_u32 s6, s6, {CFX}\nv_add_u32 v12, s6, v1')
    S(f'ds_write_b128 v12, {v(f_,4)}\nds_write_b128 v12, {v(k_,4)} offset:4096')
    w2stage(S, 12, 15)
    merge(A, M, S, budget=2.0, start=8)
    st()
    A.wait_tag('z2'); A('s_waitcnt lgkmcnt(0)\ns_barrier')
    zread(A, 1, 0); zread(A, 1, 1)
    for T in range(4):
        A(f'ds_read_b128 {v(CF+4*T,4)}, v4 offset:{CFX-65536+1024*T}\nds_read_b128 {v(KC+4*T,4)}, v4 offset:{CFX-65536+4096+1024*T}')
    A(f's_mul_i32 s56, s4, {54*4096}\ns_lshl_b32 s57, s23, 13\ns_add_u32 s56, s56, s57\ns_add_u32 s56, s56, {HID}\ns_add_u32 s57, s56, 4096')
    A(f's_cmp_ge_u32 s3, 2\ns_cselect_b32 s6, {OOB}, 0\nv_add_u32 v13, s6, v1')
    def corr(B, T):
        for t in range(4):
            acc = ACC + (T*4 + t)*4
            B(f'{MF} {v(acc,4)}, {v(UF+4*t,4)}, {v(CF+4*T,4)}, {v(acc,4)}')
    G = 152
    def gelu_plain(B, T, e):
        b = ACC + (T*4 + 2*e)*4; g_ = G + ((T*2+e) & 1)*8; k = KC + 4*T
        for d in range(8): B(f'v_mul_f32 v{g_+d}, v{b+d}, v{b+d}')
        for d in range(8): B(f'v_fma_f32 v{g_+d}, v{g_+d}, v{k+1}, v{k}')
        for d in range(8): B(f'v_mul_f32 v{g_+d}, v{g_+d}, v{b+d}')
        for d in range(8): B(f'v_exp_f32 v{g_+d}, v{g_+d}')
        for d in range(8): B(f'v_fma_f32 v{g_+d}, v{g_+d}, v{k+2}, v{k+2}')
        for d in range(8): B(f'v_rcp_f32 v{g_+d}, v{g_+d}')
        for d in range(8): B(f'v_mul_f32 v{g_+d}, v{g_+d}, v{b+d}')
        for d in range(4): B(f'v_cvt_pk_bf16_f32 v{b+d}, v{g_+2*d}, v{g_+2*d+1}')
        B(f'buffer_store_dwordx4 {v(b,4)}, v11, s[12:15], s{56+e} offen offset:{1024*T} sc1', tag='h')
    def gelu_pk(B, T, e):
        b = ACC + (T*4 + 2*e)*4; g_ = G + ((T*2+e) & 1)*8; k = KC + 4*T
        for d in range(4): B(f'v_pk_mul_f32 {pr(g_+2*d)}, {pr(b+2*d)}, {pr(b+2*d)}')
        for d in range(4): B(f'v_pk_fma_f32 {pr(g_+2*d)}, {pr(g_+2*d)}, {pr(k)}, {pr(k)} op_sel:[0,1,0] op_sel_hi:[1,1,0]')
        for d in range(4): B(f'v_pk_mul_f32 {pr(g_+2*d)}, {pr(g_+2*d)}, {pr(b+2*d)}')
        for d in range(8): B(f'v_exp_f32 v{g_+d}, v{g_+d}')
        for d in range(4): B(f'v_pk_fma_f32 {pr(g_+2*d)}, {pr(g_+2*d)}, {pr(k+2)}, {pr(k+2)} op_sel_hi:[1,0,0]')
        for d in range(8): B(f'v_rcp_f32 v{g_+d}, v{g_+d}')
        for d in range(4): B(f'v_pk_mul_f32 {pr(g_+2*d)}, {pr(g_+2*d)}, {pr(b+2*d)}')
        for d in range(4): B(f'v_cvt_pk_bf16_f32 v{b+d}, v{g_+2*d}, v{g_+2*d+1}')
        B(f'buffer_store_dwordx4 {v(b,4)}, v11, s[12:15], s{56+e} offen offset:{1024*T} sc1', tag='h')
    w2i = [0]
    def w2load(B, n, limit):
        for _ in range(n):
            i = w2i[0]
            if i >= min(55, limit): return
            w2i[0] += 1
            B(f'buffer_load_dwordx4 {a(4*i,4)}, {"v13" if i >= 50 else "v1"}, s[12:15], s24 offen offset:{(i%4)*1024} sc1')
            if i % 4 == 3: B('s_add_u32 s24, s24, 4096')
    M = Buf(); S = Buf()
    for s_ in range(20):
        if s_ + 2 < 20: zread(M, 1, s_+2)
        gstep(M, 1, s_)
        if s_ == 0: corr(M, 0); corr(M, 1)
        w2load(M, 2 - (s_ % 3 == 2), 4*(s_+1))
    corr(M, 2); corr(M, 3)
    for T in range(2):
        for e in range(2): gelu_plain(S, T, e)
    merge(A, M, S, budget=2.0, start=18)
    st()
    for T in range(2, 4):
        for e in range(2):
            gelu_pk(A, T, e)
            w2load(A, 3, 55)
    st()
    w2load(A, 55, 55)
    publish(2, 'h')
    ACC = 16; GR, BR = 160, 170
    ld10(A, BR, 'v8', 'v9', 's[48:51]', 's7')
    A(f'v_add_u32 v12, {VEC}, v8\nv_add_u32 v4, {VEC}, v9')
    lv10(A, GR, 'v12', 'v4', 2560+160)
    A(f's_mul_i32 s25, s4, 54\ns_add_u32 s25, s25, s60\ns_lshl_b32 s25, s25, 12\ns_add_u32 s25, s25, {HID}')
    A(f'v_add_u32 v12, s27, v1')
    def w2reg(k, t):
        if k >= 3: return 256 + ((k-3)*5 + t)*4
        return 256 + 220 + ((k*5 + t) % 9)*4
    A.wait_tag('w2l')
    for i in range(9): A(f'ds_read_b128 {R(w2reg(i//5, i%5),4)}, v12 offset:{1024*i}')
    acquire(2)
    st()
    def hreg(k, T):
        i = k % 8
        return (192 + i*16 if i < 4 else 96 + (i-4)*16) + 4*T
    def hload(B, k):
        for T in range(4): B(f'buffer_load_dwordx4 {v(hreg(k,T),4)}, {"v13" if k == 13 else "v1"}, s[12:15], s25 offen offset:{1024*T} sc1')
        B('s_add_u32 s25, s25, 4096')
    HP = 3
    for k in range(HP): hload(A, k)
    hn = [HP]
    for k in range(14):
        for t in range(5):
            for T in range(4):
                acc = ACC + (T*5 + t)*4
                A(f'{MF} {v(acc,4)}, {R(w2reg(k,t),4)}, {v(hreg(k,T),4)}, {v(acc,4) if k else "0"}')
            i = k*5 + t + 9
            if i < 15: A(f'ds_read_b128 {R(w2reg(i//5, i%5),4)}, v12 offset:{1024*i}')
            if t in (0, 3) and hn[0] < 14 and hn[0] < k + 8 and (t == 0 or k < 5):
                hload(A, hn[0]); hn[0] += 1
    st()
    A('s_mul_i32 s6, s3, 20480\nv_add_u32 v12, s6, v1\ns_mul_i32 s6, s3, 5120\nv_add_u32 v13, s6, v1')
    for T in range(4):
        for t in range(5):
            A(f'ds_write_b128 v12, {v(ACC+(T*5+t)*4,4)} offset:{(T*5+t)*1024}')
    T = 96
    for d in range(10):
        unpack(A, T+6*d, RX+d); unpack(A, T+6*d+2, GR+d); unpack(A, T+6*d+4, BR+d)
    A('v_add_u32 v14, 40960, v13')
    A('s_waitcnt lgkmcnt(0)\ns_barrier')
    for w in range(4):
        for t in range(5):
            A(f'ds_read_b128 {v(ACC+(w*5+t)*4,4)}, {"v13" if w < 2 else "v14"} offset:{(w%2)*20480 + t*1024}')
    for w in range(4):
        for d in range(10):
            A(f'v_pk_add_f32 {pr(T+6*d+4)}, {pr(T+6*d+4)}, {pr(ACC+20*w+2*d)}')
    for d in range(10): A(f'v_pk_fma_f32 {pr(T+6*d)}, {pr(T+6*d+4)}, {pr(T+6*d+2)}, {pr(T+6*d)}')
    OP = 160
    for d in range(10): A(f'v_cvt_pk_bf16_f32 v{OP+d}, v{T+6*d}, v{T+6*d+1}')
    A(f'buffer_store_dwordx4 v[{OP}:{OP+3}], v6, s[16:19], s26 offen\nbuffer_store_dwordx4 v[{OP+4}:{OP+7}], v6, s[16:19], s26 offen offset:64\nbuffer_store_dwordx2 v[{OP+8}:{OP+9}], v7, s[16:19], s26 offen offset:128')
    st.flush()
    A.label('KP_END')
    A('s_endpgm')
    return khead(NAME + '_kernel') + A.finish() + kd(NAME + '_kernel', 512, 256, 102)

def build():
    hdr = '; persistent fused block: one workgroup per CU, hand-offs through d_ws\n'
    hdr += f'; @launch grid=(256,1,1) block=(256,1,1) lds={LDS_BYTES}\n'
    return hdr + '.amdgcn_target "amdgcn-amd-amdhsa--gfx950"\n' + kp()

if __name__ == '__main__':
    Cfg.STAMP = len(sys.argv) > 2
    open(sys.argv[1], 'w').write(build())
```

```python
import sys, struct
from asmlib import *

NAME = 'adaLN_cond__sliding_local_dilated__mixer_channel_mlp__prompt'
SZ = dict(x=2621440, wqkv=640*1920*2, wo=640*640*2, w1=640*1728*2, b1=1728*2, w2=1728*640*2, b2=1280, c=1280, wmod=640*3840*2, out=2621440)
MODB = 0
FLG  = 0x4000
WQ_F = 0x10000
WO_F = WQ_F + 8*4*20*4096
W1_F = WO_F + 8*20*5*1024
W2_F = W1_F + 27*20*4096
O_F  = W2_F + 8*54*5*1024
Z_F  = O_F + 32*4*20*1024
HID  = Z_F + 32*4*20*1024
STA  = HID + 32*54*4*1024
STB  = STA + 32*4*8*1024
MODP = STB + 32*4*8*512
MODT = MODP + 3840*16
WS_END = MODT + 3840*32
FLA = 0x8000
FLB = 0x8400
EPO = 0xC000
OOB = 0x70000000
OOBS = 0x6000000
LOG2E = 1.4426950408889634
def f2u(x): return struct.unpack('<I', struct.pack('<f', x))[0]
def hx(x): return '0x%08x' % (x & 0xffffffff)
def fl(x): return hx(f2u(x))

def srd(A, d, ptr, size):
    A(f's_mov_b32 s{d}, s{ptr}\ns_mov_b32 s{d+1}, s{ptr+1}\ns_mov_b32 s{d+2}, {size}\ns_mov_b32 s{d+3}, 0x20000')

class Cfg: STAMP = False
STAMP_OFF = 64 << 20
class St:
    def __init__(self, A, k, wsp=40): self.A, self.k, self.n, self.wsp = A, k, 0, wsp
    def __call__(self):
        if not Cfg.STAMP or self.n >= 27: return
        A = self.A
        A(('s_memtime' if Cfg.STAMP == 'cyc' else 's_memrealtime') + ' s[92:93]\ns_waitcnt lgkmcnt(0)')
        A(f's_mov_b32 s{64+self.n}, s92'); self.n += 1
        assert self.n <= 28
    def flush(self, n=None):
        if not Cfg.STAMP: return
        A = self.A
        A('s_waitcnt vmcnt(0)')
        if n is not None: self.n = n
        self()
        k = self.n
        A(f's_add_u32 s62, s{self.wsp}, {STAMP_OFF + self.k*256*8*128}\ns_addc_u32 s63, s{self.wsp+1}, 0')
        A('s_lshl_b32 s61, s2, 3\ns_add_u32 s61, s61, s3\ns_lshl_b32 s61, s61, 7\nv_mov_b32 v0, s61')
        for i in range(k):
            A(f'v_mov_b32 v1, s{64+i}\nglobal_store_dword v0, v1, s[62:63] offset:{4*i}')
        A(f'v_mov_b32 v1, {k}\nglobal_store_dword v0, v1, s[62:63] offset:120')
        A('v_mov_b32 v1, 0x57A3B001\nglobal_store_dword v0, v1, s[62:63] offset:124')

class Buf:
    def __init__(self): self.l = []
    def group(self, text, tag=None): self.l.append((text, tag))
    def __call__(self, text, tag=None):
        lines = [l.strip() for l in text.split('\n') if l.strip()]
        k = 0
        while k < len(lines):
            if lines[k].startswith('s_cmp'):
                g = [lines[k]]; k += 1
                while k < len(lines) and (lines[k].startswith('s_cselect') or lines[k].startswith('s_cmov')):
                    g.append(lines[k]); k += 1
                self.l.append(('\n'.join(g), tag))
            else:
                self.l.append((lines[k], tag)); k += 1

def cost(line):
    if '\n' in line: return min(1.0, sum(cost(l) for l in line.split('\n')))
    op = line.split()[0]
    if op.startswith('s_'): return 0.5
    if any(op.startswith(t) for t in TRANS) or op.startswith('v_permlane'): return 2
    return 1

def merge(A, main, side, budget=2.0, start=0):
    side = list(side.l); main = main.l
    k = 0; nm = 0; i = 0
    while i < len(main):
        line, tag = main[i]; A(line, tag); i += 1
        if line.startswith('v_mfma'):
            nm += 1
            used = 0
            j = i
            while j < len(main) and not main[j][0].startswith('v_mfma'):
                used += cost(main[j][0]); j += 1
            if nm > start:
                while k < len(side) and used + cost(side[k][0]) <= budget + 1e-9:
                    A(*side[k]); used += cost(side[k][0]); k += 1
    while k < len(side):
        A(*side[k]); k += 1

def pace(A, main, loads, every, start=0):
    side = list(loads.l); k = 0; nm = 0
    for line, tag in main.l:
        A(line, tag)
        if line.startswith('v_mfma'):
            nm += 1
            if nm > start and nm % every == 0:
                while k < len(side):
                    A(*side[k]); k += 1
                    if side[k-1][0].startswith('buffer_'): break
    while k < len(side):
        A(*side[k]); k += 1

def sprinkle(A, main, side, every):
    side = list(side.l); k = 0
    for n, (line, tag) in enumerate(main.l):
        A(line, tag)
        if n % every == every - 1 and k < len(side):
            A(*side[k]); k += 1
    while k < len(side):
        A(*side[k]); k += 1

def est(lines, t=0.0, mfree=0.0):
    for line in lines.split('\n'):
        op = line.split()[0]
        if op.startswith('v_mfma'):
            t = max(t, mfree); mfree = t + 16; t += 8
        elif op.startswith('v_pk_') or op.startswith('v_dot'):
            t = max(t, mfree) + 4.5
        elif any(op.startswith(x) for x in TRANS) or op.startswith('v_permlane'): t += 8.7
        elif op.startswith('v_'): t += 4.5
        elif op.startswith('ds_write'): t += 24 if 'b128' in op else 12
        else: t += 4
    return t, mfree

def timed(A, main, bg, interval, stop_before=0, first=None):
    tot = 0.0; mf = 0.0
    for line, _ in main.l: tot, mf = est(line, tot, mf)
    t = 0.0; mf = 0.0; nxt = interval if first is None else first
    for line, tag in main.l:
        A(line, tag)
        t, mf = est(line, t, mf)
        if t >= nxt and t <= tot - stop_before and not line.startswith('s_cmp'):
            bg(A); nxt += interval
```

```python
from common import *
MF = 'v_mfma_f32_16x16x32_bf16'
PA, PB = 672, 1312
LB = 112704
X4 = 102400; ZERO = X4 + 7680
MODF = 112704
VEC = 158720
LDS_BYTES = VEC + 5120
def unpack(A, dst, src):
    A(f'v_lshlrev_b32 v{dst}, 16, v{src}\nv_and_b32 v{dst+1}, 0xffff0000, v{src}')
def pr(r): return f'v[{r}:{r+1}]'
IF = 'inflight_ok'

LD = 216
SILU = 154688
def mod_proc(B, base, cg, q, npad, D):
    B(f'v_lshrrev_b32 v12, 2, v2\nv_lshlrev_b32 v12, 7, v12\nv_and_b32 v13, 3, v2\nv_lshl_add_u32 v12, v13, 3, v12\ns_lshl_b32 s6, s3, 5\ns_add_u32 s6, s6, {base}\nv_add_u32 v12, s6, v12')
    B(f's_mul_i32 s6, s{q}, 320\ns_add_u32 s6, s6, {SILU}\nv_lshl_add_u32 v13, v3, 3, s6')
    for s_ in range(5):
        B(f'ds_read_b64_tr_b16 {R(D+4*s_,2)}, v12 offset:{4096*s_}\nds_read_b64_tr_b16 {R(D+4*s_+2,2)}, v12 offset:{4096*s_+2048}')
        B(f'ds_read_b64 {R(D+20+4*s_,2)}, v13 offset:{64*s_}\nds_read_b64 {R(D+22+4*s_,2)}, v13 offset:{64*s_+32}')
    B(f'v_lshlrev_b32 v12, 6, v3\nv_cmp_eq_u32 vcc, 0, v5\nv_cndmask_b32 v13, v11, v12, vcc')
    B(f's_lshl_b32 s6, s{cg}, 10\ns_lshl_b32 s7, s{q}, 4\ns_add_u32 s6, s6, s7\ns_lshl_b32 s7, s3, 8\ns_add_u32 s6, s6, s7\ns_add_u32 s6, s6, {MODP}')
    B('v_mov_b32 v12, s94')
    for s_ in range(5):
        B(f'{MF} v[252:255], {R(D+4*s_,4)}, {R(D+20+4*s_,4)}, {"v[252:255]" if s_ else "0"}')
    for r in range(4):
        B(f's_mov_b32 s7, {hx(0x07060500 + r)}\nv_perm_b32 v{252+r}, v{252+r}, v12, s7')
    B(f'buffer_store_dwordx4 v[252:255], v13, s[12:15], s6 offen sc1')
    pad_st(B, npad - 1)
def pad_st(B, n):
    for _ in range(n): B('buffer_store_dword v11, v11, s[12:15], 0 offen')
def pad_ld(B, n):
    for _ in range(n): B('buffer_load_dword v0, v11, s[12:15], 0 offen', tag='touch')

def slotA_proc():
    B = Asm()
    B('s_cmp_eq_u32 s95, 0\ns_cbranch_scc1 PA_M')
    B(f'v_lshrrev_b32 v12, 2, v2\nv_mul_u32_u24 v12, {PA}, v12\nv_and_b32 v13, 3, v2\ns_mul_i32 s6, s3, 160\nv_add_u32 v12, s6, v12')
    B('v_mul_u32_u24 v14, 40, v13\nv_add_u32 v14, v14, v12\nv_lshl_add_u32 v12, v13, 3, v12')
    for t in range(5):
        d = LD + 4*t
        ad, off = ('v12', 40*t) if t < 4 else ('v14', 32)
        B(f'ds_read_b64_tr_b16 {v(d,2)}, {ad} offset:{off}\nds_read_b64_tr_b16 {v(d+2,2)}, {ad} offset:{off+16*PA}')
    B(f's_and_b32 s6, s57, 1\ns_lshl_b32 s6, s6, 2\ns_add_u32 s6, s6, s3\ns_mul_i32 s6, s6, {4*20*4096}\ns_lshl_b32 s7, s56, 12\ns_add_u32 s6, s6, s7\ns_add_u32 s6, s6, {WQ_F}')
    B(f's_lshr_b32 s7, s57, 1\ns_mul_i32 s24, s7, {20*4096}\ns_add_u32 s24, s24, s6\ns_lshl_b32 s7, s7, 10\ns_add_u32 s6, s6, s7')
    for t in range(4):
        B(f'buffer_store_dwordx4 {v(LD+4*t,4)}, v1, s[12:15], s6 offen sc1')
        if t < 3: B(f's_add_u32 s6, s6, {20*4096}')
    B(f'buffer_store_dwordx4 {v(LD+16,4)}, v1, s[12:15], s24 offen offset:3072 sc1')
    B('s_branch PA_END')
    B.label('PA_M')
    mod_proc(B, 0, 54, 55, 5, 256)
    B.label('PA_END')
    return B.finish()

def slotB_decode():
    B = Asm()
    B('s_and_b32 s20, s3, 1\ns_lshr_b32 s21, s3, 1')
    B(f's_mul_i32 s31, s3, {8*PB}\ns_add_u32 s31, s31, {LB}\ns_movk_i32 s34, {PB}\ns_mov_b32 s35, -1\ns_mov_b32 s50, 0xffff\ns_mov_b32 s51, 0\nv_mov_b32 v249, v1')
    B('s_mov_b32 s59, 0\ns_mov_b32 s61, 0\ns_mov_b32 s62, 0\ns_mov_b32 s63, 0')
    B('s_cmp_lt_u32 s2, 104\ns_cbranch_scc1 SB_M\ns_cmp_ge_u32 s2, 184\ns_cbranch_scc1 SB_W2')
    B('s_cmp_ge_u32 s2, 124\ns_cbranch_scc1 SB_W1')
    B('s_sub_u32 s59, s2, 104')
    srd(B, 96, 32, SZ['wo'])
    B('s_mul_i32 s7, s59, 40\ns_mul_i32 s22, s20, 20\ns_add_u32 s7, s7, s22\ns_lshl_b32 s22, s21, 2\ns_add_u32 s7, s7, s22')
    B('s_sub_u32 s6, s59, 16\ns_mul_i32 s6, s6, 160\ns_mul_i32 s22, s20, 80\ns_add_u32 s6, s6, s22\ns_mul_i32 s22, s21, 20\ns_add_u32 s6, s6, s22\ns_add_u32 s6, s6, 16')
    B(f's_cmp_ge_u32 s59, 16\ns_cselect_b32 s7, s6, s7\ns_mov_b32 s30, {5*1280}\ns_cmov_b32 s30, {37*1280}')
    B('s_mov_b32 s29, 1280\ns_mul_i32 s28, s7, 1280\ns_mov_b32 s58, 1')
    B(f's_mul_i32 s62, s59, 5120\ns_add_u32 s62, s62, {WO_F}\ns_mov_b32 s63, {20*5120}')
    B('s_branch SB_END')
    B.label('SB_W1')
    B('s_sub_u32 s6, s2, 124\ns_mul_i32 s59, s6, 43691\ns_lshr_b32 s59, s59, 17\ns_mul_i32 s61, s59, 3\ns_sub_u32 s61, s6, s61')
    srd(B, 96, 36, SZ['w1'])
    B('s_lshr_b32 s7, s59, 1\ns_mul_i32 s7, s7, 80\ns_and_b32 s22, s59, 1\ns_lshl_b32 s22, s22, 5\ns_add_u32 s7, s7, s22\ns_add_u32 s7, s7, s60')
    B('s_sub_u32 s6, s59, 16\ns_mul_i32 s6, s6, 160\ns_mul_i32 s22, s21, 80\ns_add_u32 s6, s6, s22\ns_lshl_b32 s22, s20, 3\ns_add_u32 s6, s6, s22\ns_add_u32 s6, s6, 64')
    B(f's_cmp_ge_u32 s59, 16\ns_cselect_b32 s7, s6, s7\ns_mov_b32 s30, {5*3456}\ns_cmov_b32 s30, 3456')
    B('s_mov_b32 s29, 3456\ns_mul_i32 s28, s7, 3456\ns_mul_i32 s22, s61, 1152\ns_add_u32 s28, s28, s22')
    B('s_mov_b32 s50, 0xff\ns_mov_b32 s58, 2')
    B('s_branch SB_END')
    B.label('SB_W2')
    B('s_sub_u32 s59, s2, 184')
    srd(B, 96, 40, SZ['w2'])
    B('s_lshl_b32 s7, s59, 5\ns_lshl_b32 s22, s3, 3\ns_add_u32 s7, s7, s22')
    B('s_mov_b32 s29, 1280\ns_mul_i32 s28, s7, 1280\ns_mov_b32 s30, 1280')
    B(f's_mul_i32 s62, s59, 5120\ns_add_u32 s62, s62, {W2_F}\ns_mov_b32 s63, {54*5120}')
    B('s_cmp_ge_u32 s2, 238\ns_cselect_b32 s58, 3, 1\ns_cselect_b32 s28, 0, s28\ns_cselect_b64 vcc, -1, 0\nv_cndmask_b32 v249, v1, v11, vcc')
    B('s_branch SB_END')
    B.label('SB_M')
    B('s_add_u32 s6, s2, 56\ns_mul_i32 s61, s6, 1639\ns_lshr_b32 s61, s61, 16\ns_mul_i32 s59, s61, 40\ns_sub_u32 s59, s6, s59\ns_add_u32 s59, s59, 20')
    srd(B, 96, 46, SZ['wmod'])
    B('s_mul_i32 s6, s61, 160\ns_mul_i32 s7, s3, 40\ns_add_u32 s6, s6, s7\ns_mul_i32 s6, s6, 7680\ns_lshl_b32 s7, s59, 7\ns_add_u32 s28, s6, s7')
    B('v_lshrrev_b32 v249, 3, v2\nv_mul_u32_u24 v249, 7680, v249\nv_and_b32 v12, 7, v2\nv_lshl_add_u32 v249, v12, 4, v249')
    B(f's_mul_i32 s31, s3, 5120\ns_add_u32 s31, s31, {LB}\ns_movk_i32 s34, 640\ns_mov_b32 s29, 38400\ns_mov_b32 s30, 38400\ns_movk_i32 s35, 0xff\ns_mov_b32 s50, 1\ns_movk_i32 s51, 20480')
    B('s_mov_b32 s58, 0')
    B.label('SB_END')
    return B.finish()

def slotB_proc():
    B = Asm()
    H = 16*PB; D = 216
    B(f'v_lshrrev_b32 v12, 2, v2\nv_mul_u32_u24 v12, {PB}, v12\nv_and_b32 v13, 3, v2\nv_add_u32 v12, {LB}, v12')
    B('v_mov_b32 v15, v11\ns_mov_b32 s96, 0\ns_mov_b32 s97, 0\ns_mov_b32 s98, 0\ns_mov_b32 s99, 0')
    B('s_cmp_eq_u32 s58, 0\ns_cbranch_scc1 PB_M\ns_cmp_eq_u32 s58, 3\ns_cbranch_scc1 PB_NONE')
    B('v_mov_b32 v15, v1\ns_cmp_eq_u32 s58, 2\ns_cbranch_scc1 PB_W1')
    B('s_mul_i32 s6, s3, 320\nv_add_u32 v12, s6, v12\nv_lshl_add_u32 v14, v13, 3, v12\nv_lshl_add_u32 v12, v13, 4, v12')
    for e in range(2):
        for t in range(5):
            d = D + (e*5 + t)*4
            ad, off = ('v12', 160*e + 64*(t >> 1) + 8*(t & 1)) if t < 4 else ('v14', 160*e + 128)
            B(f'ds_read_b64_tr_b16 {a(d,2)}, {ad} offset:{off}\nds_read_b64_tr_b16 {a(d+2,2)}, {ad} offset:{off+H}')
    B('s_mul_i32 s96, s3, s63\ns_lshl_b32 s96, s96, 1\ns_add_u32 s96, s96, s62\ns_movk_i32 s97, 1024\ns_sub_u32 s98, s63, 4096\ns_movk_i32 s99, 1024')
    B('s_waitcnt lgkmcnt(0)\ns_branch PB_NONE')
    B.label('PB_W1')
    B('s_lshl_b32 s6, s3, 5\nv_add_u32 v12, s6, v12\nv_lshl_add_u32 v12, v13, 3, v12')
    for i in range(9):
        d = D + i*4
        B(f'ds_read_b64_tr_b16 {a(d,2)}, v12 offset:{128*i}\nds_read_b64_tr_b16 {a(d+2,2)}, v12 offset:{128*i+H}')
    B(f's_mul_i32 s6, s61, {18*40960}\ns_lshl_b32 s7, s59, 11\ns_add_u32 s6, s6, s7\ns_lshr_b32 s7, s3, 1\ns_mul_i32 s7, s7, 40960\ns_add_u32 s6, s6, s7\ns_and_b32 s7, s3, 1\ns_lshl_b32 s7, s7, 10\ns_add_u32 s6, s6, s7\ns_add_u32 s96, s6, {W1_F}')
    B(f's_mov_b32 s97, 81920\ns_mov_b32 s98, 81920\ns_mov_b32 s99, {OOBS}')
    B('s_waitcnt lgkmcnt(0)')
    B.label('PB_NONE')
    pad_st(B, 1)
    B('s_branch PB_END')
    B.label('PB_M')
    mod_proc(B, LB, 59, 61, 1, 256+216)
    B.label('PB_END')
    return B.finish()

class P:
    NXF, NX0 = 0, 5
    XROT = True
    SYA_AT = 0
    SEQ = 'a x7 l0 x5 f x8 l1 b0 l2 b1 l3 m l4'
    W0, W1, BS0 = 6, 4, 3
    FINE = False
    WF = 'sc1'
    EXP1 = False
    NOLATE = False
    TLB = False
    FB_STEP, SB_ISSUE, SB_CHECK = 0, 8, 10
    ROT = True
WOL = 112704

def kp():
    A = Asm()
    KN = NAME + '_kernel'
    A('s_cmp_ge_u32 s2, 256\ns_cbranch_scc1 KP_END')
    A('s_load_dwordx16 s[28:43], s[0:1], 0\ns_load_dwordx8 s[44:51], s[0:1], 64\ns_load_dwordx2 s[52:53], s[0:1], 96')
    A('s_getpc_b64 s[20:21]')
    A.label('PC0', IF)
    A('s_lshr_b32 s7, s2, 3\ns_lshl_b32 s6, s7, 8\nv_add_u32 v1, s6, v0\nv_lshrrev_b32 v1, 4, v1\nv_lshlrev_b32 v1, 7, v1\nv_min_u32 v1, KP_END-PC0, v1')
    A('global_load_dword v243, v1, s[20:21]', tag='touch')
    A('s_and_b32 s6, s2, 7')
    A('s_lshr_b32 s4, s6, 1\ns_lshl_b32 s4, s4, 3\ns_lshr_b32 s5, s7, 2\ns_add_u32 s4, s4, s5')
    A('s_and_b32 s5, s6, 1\ns_lshl_b32 s5, s5, 2\ns_and_b32 s7, s7, 3\ns_add_u32 s5, s5, s7')
    A('v_lshrrev_b32 v1, 6, v0\nv_and_b32 v2, 63, v0\nv_readfirstlane_b32 s3, v1\nv_lshlrev_b32 v1, 4, v2')
    A('s_and_b32 s6, s3, 1\ns_lshl_b32 s60, s6, 4\ns_lshr_b32 s6, s3, 1\ns_lshl_b32 s6, s6, 2\ns_add_u32 s60, s60, s6')
    A('s_sub_u32 s6, s2, 80\ns_mul_i32 s56, s6, 10923\ns_lshr_b32 s56, s56, 16\ns_mul_i32 s57, s56, 6\ns_sub_u32 s57, s6, s57')
    A('s_mul_i32 s55, s2, 3277\ns_lshr_b32 s55, s55, 16\ns_mul_i32 s54, s55, 20\ns_sub_u32 s54, s2, s54')
    A('s_sub_u32 s22, s2, 180\ns_sub_u32 s23, s2, 220\ns_cmp_ge_u32 s2, 240\ns_cselect_b32 s22, s23, s22\ns_cselect_b32 s23, 1, 0')
    A('s_cmp_ge_u32 s2, 200\ns_cselect_b32 s54, s22, s54\ns_cselect_b32 s55, s23, s55')
    A('s_lshl_b32 s22, s56, 5\ns_add_u32 s22, s22, s60\ns_mul_i32 s22, s22, 3840\ns_mul_i32 s23, s57, 640\ns_add_u32 s22, s22, s23')
    A('s_mul_i32 s24, s55, 160\ns_mul_i32 s23, s3, 40\ns_add_u32 s24, s24, s23\ns_mul_i32 s24, s24, 7680\ns_lshl_b32 s23, s54, 7\ns_add_u32 s24, s24, s23')
    A('v_lshrrev_b32 v12, 3, v2\nv_mul_u32_u24 v12, 7680, v12\nv_and_b32 v13, 7, v2\nv_lshl_add_u32 v12, v13, 4, v12')
    A(f's_mov_b32 s25, 38400\ns_mov_b32 s26, 38400\ns_movk_i32 s27, 640\ns_mov_b32 s18, {SZ["wmod"]}\ns_mov_b32 s19, 0x20000')
    A(f's_cmp_lt_u32 s6, 120\ns_cselect_b32 s95, 1, 0\ns_cselect_b32 s24, s22, s24\ns_cmov_b32 s25, 3840\ns_cmov_b32 s26, 19200\ns_cmov_b32 s27, {PA}\ns_cmov_b32 s18, {SZ["wqkv"]}\ns_cselect_b64 vcc, -1, 0')
    A('v_cndmask_b32 v12, v12, v1, vcc\ns_mul_i32 s23, s3, s27\ns_lshl_b32 m0, s23, 3')
    A('v_lshlrev_b32 v13, 3, v0')
    XR, XN = 116, 16
    WAr = [4, 6, 7, 8, 9]
    A('v_lshrrev_b32 v3, 4, v2\ns_mul_i32 s6, s3, 20\nv_add_u32 v15, s6, v3')
    A('s_lshl_b32 s7, s4, 6\ns_sub_u32 s7, s7, 16\nv_add_u32 v14, s7, v15')
    A('s_movk_i32 s6, 1280\nv_mul_lo_u32 v14, v14, s6\nv_and_b32 v5, 15, v2\nv_lshl_add_u32 v14, v5, 4, v14')
    A('s_and_b32 s6, s5, 3' if P.XROT else 's_mov_b32 s6, 0')
    for i in range(5):
        A(f's_add_u32 s7, s6, {i}\ns_sub_u32 s22, s7, 5\ns_cmp_ge_u32 s7, 5\ns_cselect_b32 s7, s22, s7\ns_lshl_b32 s22, s7, 2\nv_add_u32 v{244+i}, s22, v15\ns_mul_i32 s7, s7, 5120\nv_add_u32 v{WAr[i]}, s7, v14')
    A(f's_mov_b32 s10, {SZ["x"]}\ns_mov_b32 s11, 0x20000')
    A('s_cmp_eq_u32 s95, 1\ns_waitcnt lgkmcnt(0)\ns_cselect_b32 s16, s30, s46\ns_cselect_b32 s17, s31, s47\ns_mov_b32 s8, s28\ns_mov_b32 s9, s29')
    st = St(A, 0); st()
    xl = [(i, m) for i in range(5) for m in range(5)]
    xn = [0]
    def xload(B, n):
        for i, m in xl[xn[0]:xn[0]+n]:
            B(f'buffer_load_dwordx4 {v(XR+(i*5+m)*4,4)}, v{WAr[i]}, s[8:11], 0 offen offset:{256*m}')
        xn[0] += n
    xload(A, P.NXF)
    A('s_mov_b32 exec_hi, 0xff')
    for i in range(8):
        A('buffer_load_dwordx4 v12, s[16:19], s24 offen nt lds')
        if i < 7: A(f's_add_u32 s24, s24, s{26 if i == 3 else 25}\ns_add_u32 m0, m0, s27')
    A('s_mov_b64 exec, -1')
    srd(A, 96, 44, SZ['c'])
    A('buffer_load_dwordx2 v[240:241], v13, s[96:99], 0 offen')
    A(f's_load_dword s94, s[52:53], {EPO}')
    srd(A, 12, 52, WS_END)
    xload(A, P.NX0)
    A(f'v_mov_b32 v11, {OOB}\nv_cmp_eq_u32 vcc, 0, v0\nv_cndmask_b32_e64 v10, v11, 0, vcc')
    A(f'v_add_u32 v242, {SILU}, v13')
    A('v_and_b32 v12, 7, v2')
    for i in range(5):
        t0, t1, t2, t3, t4 = 244+i, 250, 251, 252, 253
        A(f'v_and_b32 v{t1}, 1, v{t0}')
        A(f'v_lshrrev_b32 v{t2}, 1, v{t0}\nv_lshlrev_b32 v{t3}, 3, v{t1}\nv_sub_u32 v{t2}, v{t2}, v{t3}\nv_add_u32 v{t2}, 8, v{t2}')
        A(f'v_subrev_u32 v{t3}, 16, v{t0}\nv_lshrrev_b32 v{t4}, 5, v{t3}\nv_lshl_add_u32 v{t4}, v{t1}, 1, v{t4}\nv_add_u32 v{t4}, 1, v{t4}')
        A(f'v_bfe_u32 v{t3}, v{t3}, 1, 4')
        A(f'v_cmp_gt_u32 vcc, 16, v{t0}')
        A(f'v_cndmask_b32 v{t3}, v{t3}, v{t2}, vcc\nv_cndmask_b32_e64 v{t4}, v{t4}, 0, vcc')
        A(f'v_xor_b32 v{t3}, v{t3}, v12\nv_lshlrev_b32 v{t3}, 4, v{t3}\nv_mul_u32_u24 v{t4}, 20480, v{t4}\nv_lshl_add_u32 v{t3}, v5, 8, v{t3}\nv_add_u32 v{t0}, v{t3}, v{t4}')
    A.raw(slotB_decode())
    A(f's_mul_i32 s94, s94, 0x2c9277b5\ns_add_u32 s94, s94, 0xac564b05')
    A('s_mov_b32 s100, 0x3f803f80')
    S0 = 14; T = 13
    def lnrows(B, i):
        a_, b_ = S0, S0+1
        B(f'v_mov_b32 v{a_}, 0\nv_mov_b32 v{b_}, 0')
        for d in range(20):
            r = XR + i*20 + d
            B(f'v_dot2_f32_bf16 v{a_}, v{r}, s100, v{a_}\nv_dot2c_f32_bf16 v{b_}, v{r}, v{r}')
        for k, n in enumerate((8, 4, 2, 1)):
            B(f'v_add_f32_dpp v{a_}, v{a_}, v{a_} row_ror:{n} row_mask:0xf bank_mask:0xf\nv_add_f32_dpp v{b_}, v{b_}, v{b_} row_ror:{n} row_mask:0xf bank_mask:0xf')
            for d in range(5): unpack(B, XN + i*40 + 2*(5*k + d), XR + i*20 + 5*k + d)
        B(f'v_mul_f32 v{a_}, {fl(1/640)}, v{a_}\nv_mul_f32 v{b_}, {fl(1/640)}, v{b_}\nv_fma_f32 v{b_}, -v{a_}, v{a_}, v{b_}')
        B(f'v_max_f32 v{b_}, 0, v{b_}\nv_add_f32 v{b_}, {fl(1e-5)}, v{b_}\nv_rsq_f32 v{T}, v{b_}')
        B(f'v_mul_f32_e64 v{b_}, -v{a_}, v{T}\nv_mov_b32 v{a_}, v{T}')
        for d in range(20):
            t = XN + i*40 + 2*d
            B(f'v_pk_fma_f32 {pr(t)}, {pr(t)}, {pr(a_)}, {pr(a_)} op_sel:[0,0,1] op_sel_hi:[1,0,1]')
    M0 = 216
    def mtload(B):
        for i in range(5):
            B.group(f's_add_u32 s6, s23, {4096*i}\nbuffer_load_dwordx4 {v(M0+4*i,4)}, v1, s[12:15], s6 offen sc1', 'mt')
    moved = [False]
    def loads(tok):
        L = Buf()
        for t_ in tok.split('+'):
            if t_[0] == 'x': xload(L, int(t_[1:]))
            elif t_[0] == 'b':
                tail = int(t_[1])
                for i in range(8):
                    pre = ''
                    if i == 0: pre = 's_mov_b32 s20, s28\n' + ('s_add_u32 m0, s31, s51\n' if tail else 's_mov_b32 m0, s31\n')
                    pre += 's_mov_b32 exec_lo, s50\ns_mov_b32 exec_hi, 0\n' if tail else 's_mov_b32 exec_hi, s35\n'
                    post = '\ns_mov_b64 exec, -1' + (f'\ns_add_u32 s20, s20, s{30 if i == 3 else 29}\ns_add_u32 m0, m0, s34' if i < 7 else '')
                    L.group(pre + f'buffer_load_dwordx4 v249, s[96:99], s20 offen offset:{1024*tail} nt lds' + post, 'sb')
            elif t_ == 'm':
                L.group(f's_lshl_b32 s23, s3, 10\ns_add_u32 s23, s23, {MODP}')
                mtload(L)
        return L
    for step in P.SEQ.split():
        if xn[0] >= 25 and not moved[0]:
            for i in range(5): A(f'v_mov_b32 v{WAr[i]}, v{244+i}')
            moved[0] = True
        if step[0] == 'l':
            i = int(step[1]); assert xn[0] >= 5*i + 5
            M = Buf(); lnrows(M, i)
            L = loads(step[3:]) if len(step) > 2 else Buf()
            sprinkle(A, M, L, max(1, 116 // max(1, len(L.l))))
        elif step == 'a':
            A(f's_mov_b32 s6, {fl(-LOG2E)}')
            unpack(A, 236, 240); unpack(A, 238, 241)
            st()
            for k in range(4): A(f'v_mul_f32 v{250+k}, s6, v{236+k}')
            for k in range(4): A(f'v_exp_f32 v{250+k}, v{250+k}')
            for k in range(4): A(f'v_add_f32 v{250+k}, 1.0, v{250+k}')
            for k in range(4): A(f'v_rcp_f32 v{250+k}, v{250+k}')
            for k in range(4): A(f'v_mul_f32 v{236+k}, v{236+k}, v{250+k}')
            A('v_cvt_pk_bf16_f32 v240, v236, v237\nv_cvt_pk_bf16_f32 v241, v238, v239')
            A(f'ds_write_b64 v242, v[240:241]')
            A('s_waitcnt lgkmcnt(0)\ns_barrier')
            A.raw(slotA_proc(), nvm=5, tag='sa')
        elif step == 'f':
            A(f's_sub_u32 s6, s2, 80\ns_and_b32 s7, s6, 1\ns_lshl_b32 s7, s7, 8\ns_lshr_b32 s6, s6, 1\ns_lshl_b32 s6, s6, 2\ns_add_u32 s6, s6, s7\ns_add_u32 s6, s6, {FLA}')
            A('s_cmp_eq_u32 s95, 1\ns_cselect_b32 s6, s6, s14\nv_mov_b32 v12, s94')
            A.wait_tag('sa'); A('s_barrier')
            A('buffer_store_dword v12, v10, s[12:15], s6 offen sc1')
            if not P.FINE: st()
        else:
            for l_, t_ in loads(step).l: A(l_, t_)
        if P.FINE: st()
    A(f's_mov_b32 s20, 0x3f803f80\ns_mov_b32 s21, {fl(1/640)}\ns_mov_b32 s22, {fl(1e-5)}')
    if not P.FINE: st()
    A('s_mov_b32 s7, 0\ns_mov_b32 s25, 0x0c0c0400\ns_mov_b32 s26, 0x05040100')
    A('v_and_b32 v12, 3, v2\nv_cmp_eq_u32 s[32:33], 1, v12\nv_cmp_eq_u32 s[36:37], 2, v12\nv_cmp_eq_u32 s[40:41], 3, v12')
    A.wait_tag('mt')
    A.label('SYM', IF)
    for i in range(5):
        r = M0 + 4*i
        A(f'v_perm_b32 v236, v{r+1}, v{r}, s25\nv_perm_b32 v237, v{r+3}, v{r+2}, s25\nv_perm_b32 v236, v237, v236, s26')
        A(f'v_xor_b32 v13, s94, v236' if i == 0 else f'v_xor_b32 v236, s94, v236\nv_or_b32 v13, v13, v236')
    A('v_cmp_ne_u32 vcc, 0, v13\ns_nop 3'); A('s_cbranch_vccz SYM_DONE', IF)
    Bk = Asm(); L = Buf(); mtload(L)
    Bk('s_sleep 2')
    for l_, t_ in L.l: Bk(l_, t_)
    Bk('s_waitcnt vmcnt(0)')
    A.ins.append(Ins('s_nop 0')); A.ins[-1].kind = 'label'; A.ins[-1].op = '.raw'; A.ins[-1].text = Bk.finish().rstrip('\n')
    A('s_add_u32 s7, s7, 1\ns_cmp_lt_u32 s7, 0x40000'); A('s_cbranch_scc1 SYM', IF)
    A.label('SYM_DONE', IF)
    st()
    def quadsum(B, r, n, masks):
        for perm in ('[1,0,3,2]', '[2,3,0,1]'):
            for k in range(4*n): B(f'v_add_f32_dpp v{r+k}, v{r+k}, v{r+k} quad_perm:{perm} row_mask:0xf bank_mask:0xf')
        for i in range(n):
            for k in range(1, 4): B(f'v_cndmask_b32_e64 v{r+4*i}, v{r+4*i}, v{r+4*i+k}, {masks[k-1]}')
    def modfin(B, r, plus1):
        B(f'v_cvt_pk_bf16_f32 v{r}, v{r}, v{r}\nv_and_b32 v{r}, 0xffff0000, v{r}')
        if plus1:
            B(f'v_add_f32 v{r+1}, 1.0, v{r}\nv_cvt_pk_bf16_f32 v{r+1}, v{r+1}, v{r+1}\nv_and_b32 v{r+1}, 0xffff0000, v{r+1}')
            B(f'v_mov_b32 v{r}, v{r+1}' if plus1 == 1 else f'v_cndmask_b32 v{r}, v{r}, v{r+1}, vcc')
    def modsum(B, r, plus1):
        B(f'v_add_f32 v{r}, v{r}, v{r+1}\nv_add_f32 v{r+2}, v{r+2}, v{r+3}\nv_add_f32 v{r}, v{r}, v{r+2}')
        modfin(B, r, plus1)
    A('s_cmp_ge_u32 s3, 2\ns_cselect_b64 vcc, -1, 0')
    MODF2 = VEC
    A(f's_lshl_b32 s6, s3, 8\ns_add_u32 s6, s6, {MODF2}\nv_lshl_add_u32 v12, v2, 2, s6')
    quadsum(A, M0, 5, ['s[32:33]', 's[36:37]', 's[40:41]'])
    for i in range(5):
        r = M0 + 4*i
        modfin(A, r, [0, 0, 2, 1, 1][i])
        A(f'ds_write_b32 v12, v{r} offset:{1024*i}')
    A(f'v_mov_b32 v12, 0\nv_mov_b32 v13, 0\nv_mov_b32 v14, {ZERO}\nds_write_b64 v14, v[12:13]')
    A(f'v_min_u32 v251, 59, v2\nv_lshlrev_b32 v251, 2, v251\ns_cmp_eq_u32 s3, 0\ns_cselect_b32 s6, 0, {OOB}\nv_add_u32 v251, s6, v251')
    A(f's_lshr_b32 s23, s5, 2\ns_lshl_b32 s23, s23, 8\ns_add_u32 s23, s23, {FLA}')
    A('buffer_load_dword v250, v251, s[12:15], s23 offen sc1')
    A.wait_tag('sb'); A('s_waitcnt lgkmcnt(0)\ns_barrier')
    A.raw(slotB_proc(), nvm=1, tag='pb')
    st()
    bi = [0]
    def bstore(B, n=1):
        for _ in range(n):
            i = bi[0]
            if i >= 10: return
            bi[0] += 1
            B(f'buffer_store_dwordx4 {a(216+4*i,4)}, v15, s[12:15], s96 offen sc1', tag='pb')
            if i < 9: B(f's_add_u32 s96, s96, s{98 if i == 4 else (99 if i == 8 else 97)}')
    A(f'v_lshlrev_b32 v12, 5, v5\nv_add_u32 v12, {MODF2}, v12')
    def mread(m):
        d = M0 + (m & 1)*16
        A(f'ds_read_b128 {v(d,4)}, v12 offset:{512*m}\nds_read_b128 {v(d+4,4)}, v12 offset:{512*m+16}')
        A(f'ds_read_b128 {v(d+8,4)}, v12 offset:{2560+512*m}\nds_read_b128 {v(d+12,4)}, v12 offset:{2560+512*m+16}')
    mread(0)
    A('s_and_b32 s58, s4, 1' if P.ROT else 's_mov_b32 s58, 0')
    A(f's_lshl_b32 s24, s5, 2\ns_add_u32 s24, s24, s3\ns_mul_i32 s24, s24, {20*4096}\ns_mul_i32 s6, s58, 40960\ns_add_u32 s24, s24, s6\ns_add_u32 s24, s24, {WQ_F}')
    A('s_mul_i32 s26, s58, 81920')
    WV = 192
    def wreg(s_, t): return 256 + s_*16 + t*4 if s_ < 16 else WV + (s_-16)*16 + t*4
    wl = [(s_, t) for s_ in range(20) for t in range(4)]
    wi = [0]
    A(f's_cmp_eq_u32 s3, 3\ns_cselect_b32 s27, {OOB}, 0\nv_add_u32 v0, s27, v1')
    def wload(n=1, B=None):
        B = B or A
        for _ in range(n):
            if wi[0] >= len(wl): return
            s_, t = wl[wi[0]]; wi[0] += 1
            B(f'buffer_load_dwordx4 {R(wreg(s_, t), 4)}, {"v0" if t == 3 else "v1"}, s[12:15], s24 offen offset:{1024*t} sc1')
            if t == 3: B('s_add_u32 s24, s24, 4096')
            if t == 3 and s_ == 9: B('s_sub_u32 s24, s24, s26')
    srd(A, 16, 48, SZ['out']); srd(A, 44, 38, SZ['b1']); srd(A, 48, 42, SZ['b2'])
    A('s_mov_b32 s40, s52\ns_mov_b32 s41, s53')
    A(f's_lshl_b32 s52, s4, 7\ns_add_u32 s52, s52, {FLG}\ns_add_u32 s54, s40, s52\ns_addc_u32 s55, s41, 0')
    A(f's_lshl_b32 s6, s5, 2\ns_add_u32 s52, s52, s6')
    def chk4(r):
        A(f'v_xor_b32 v{r}, s94, v{r}\nv_xor_b32 v{r+1}, s94, v{r+1}\nv_xor_b32 v{r+2}, s94, v{r+2}\nv_xor_b32 v{r+3}, s94, v{r+3}')
        A(f'v_or3_b32 v{r}, v{r}, v{r+1}, v{r+2}\nv_or_b32 v{r}, v{r}, v{r+3}\nv_cmp_ne_u32 vcc, 0, v{r}')
    for m in range(5):
        if m < 4: mread(m+1)
        d0 = M0 + (m & 1)*16
        for i in range(5):
            n = m*5 + i
            if n == P.SYA_AT:
                A('v_cmp_ne_u32 vcc, s94, v250\ns_mov_b32 s7, 0\ns_cmp_lg_u32 s3, 0'); A('s_cbranch_scc1 SYA_DONE', IF)
                A.label('SYA', IF)
                A('s_nop 3'); A('s_cbranch_vccz SYA_DONE', IF)
                Bk = Asm()
                Bk('buffer_load_dword v250, v251, s[12:15], s23 offen sc1\ns_waitcnt vmcnt(0)\nv_cmp_ne_u32 vcc, s94, v250')
                A.ins.append(Ins('s_nop 0')); A.ins[-1].kind = 'label'; A.ins[-1].op = '.raw'; A.ins[-1].text = Bk.finish().rstrip('\n')
                A('s_add_u32 s7, s7, 1\ns_cmp_lt_u32 s7, 0x40000'); A('s_cbranch_scc1 SYA', IF)
                A.label('SYA_DONE', IF)
                A('s_barrier')
                st()
                wload(P.W0)
            b = XN + i*40 + 8*m
            for d in range(4): A(f'v_pk_fma_f32 {pr(b+2*d)}, {pr(b+2*d)}, {pr(d0+8+2*d)}, {pr(d0+2*d)}')
            for d in range(4): A(f'v_cvt_pk_bf16_f32 v{b+d}, v{b+2*d}, v{b+2*d+1}')
            A(f'ds_write_b128 v{WAr[i]}, {v(b,4)} offset:{4096*m}')
            if bi[0] < 10 and (n < P.SYA_AT or n % 2 == 0): bstore(A, 1)
            elif n >= P.SYA_AT: wload(1)
    bstore(A, 10)
    A('v_xor_b32 v12, v5, v3\nv_lshlrev_b32 v12, 4, v12\nv_lshl_add_u32 v12, v3, 8, v12\ns_mul_i32 s6, s58, 10240\nv_add_u32 v12, s6, v12')
    A('v_xor_b32 v13, 64, v12')
    A('v_add_u32 v8, 61440, v12\nv_add_u32 v9, 61440, v13')
    A('s_mul_i32 s23, s58, 20480\ns_sub_u32 s23, 10240, s23')
    A('v_mov_b32 v14, s94')
    A('s_waitcnt lgkmcnt(0)\ns_barrier')
    st()
    if P.EXP1:
        bstore(A, 10); wload(80); A('s_waitcnt vmcnt(0)\ns_barrier'); st()
    ACC = 16
    accQ = lambda T: ACC + (T-1)*4
    accK = lambda T: ACC + 16 + T*4
    accV = lambda T: ACC + 36 + T*4
    acc4 = lambda T: ACC + 56 + T*4
    AF = 92
    def aread(B, s_, T):
        if s_ == 10 and T == 0:
            B('v_add_u32 v12, s23, v12\nv_add_u32 v13, s23, v13\nv_add_u32 v8, s23, v8\nv_add_u32 v9, s23, v9')
        ad = (12 + (s_ & 1)) if T < 3 else (8 + (s_ & 1))
        d = AF + (s_ & 1)*20 + T*4
        B(f'ds_read_b128 v[{d}:{d+3}], v{ad} offset:{((T % 3)*20 + s_ % 10)*1024}')
    for T in range(5): aread(A, 0, T)
    w1l = [(s_, 2*e + t) for e in range(2) for s_ in range(20) for t in range(2)]
    w1i = [0]
    def w1load(B, n, limit=20):
        for _ in range(n):
            if w1i[0] >= 80: return
            s_, t = w1l[w1i[0]]
            if s_ >= limit: return
            w1i[0] += 1
            so, vo = ('s53', 'v11') if t < 2 else ('s43', 'v15')
            B(f'buffer_load_dwordx4 {R(wreg(s_, t), 4)}, {vo}, s[12:15], {so} offen offset:{2048*(s_ & 1) + 1024*(t & 1)} sc1')
            if (s_ & 1) and (t & 1): B(f's_add_u32 {so}, {so}, 4096')
    woi = [0]
    def woload(B, n, limit=25):
        for _ in range(n):
            i = woi[0]
            if i >= limit: return
            woi[0] += 1
            B(f's_add_u32 m0, s56, {WOL + 4096*i if i < 9 else 4096*(i-9)}')
            B(f'buffer_load_dwordx4 v1, s[12:15], s57 offen sc1 lds', tag='wo')
            B('s_add_u32 s57, s57, 4096')
            if i == 14: B('s_sub_u32 s57, s57, s42')
    def g1step(B, s_, late):
        for T in range(5):
            af = v(AF + (s_ & 1)*20 + T*4, 4)
            def mm(acc, a_, b_):
                B(f'{MF} {v(acc,4)}, {a_}, {b_}, {v(acc,4) if s_ else "0"}')
            if T > 0: mm(accQ(T), R(wreg(s_, 0), 4), af)
            mm(accK(T), R(wreg(s_, 1), 4), af)
            if s_ < 19: aread(B, s_+1, T)
            mm(accV(T), af, R(wreg(s_, 2), 4))
            mm(acc4(T), R(wreg(s_, 3), 4), af)
            if T > 0:
                if wi[0] < 80: wload(1, B)
                elif late and not P.NOLATE:
                    if woi[0] < 9: woload(B, 1, 9)
                    else: w1load(B, 1, s_)
    SB_ISSUE, SB_CHECK = P.SB_ISSUE, P.SB_CHECK
    for s_ in range(P.FB_STEP):
        g1step(A, s_, False)
        if s_ < 2: bstore(A, 2)
    assert bi[0] == 10
    A.wait_tag('pb'); A('s_barrier')
    A('s_lshl_b32 s6, s2, 2\ns_add_u32 s6, s6, %d\nbuffer_store_dword v14, v10, s[12:15], s6 offen sc1' % FLB)
    PV = 184
    QF, KF, VS, V4 = 92, 108, 132, 144
    BC, BP, BH = 156, 160, 164
    AD = 168
    M = Buf(); S = Buf()
    for s_ in range(P.FB_STEP, SB_CHECK):
        g1step(M, s_, False)
        if s_ == SB_ISSUE:
            M(f's_mov_b32 s6, {FLB}\nbuffer_load_dwordx4 {v(PV,4)}, v1, s[12:15], s6 offen sc1')
    S('v_lshlrev_b32 v4, 3, v2')
    S(f's_mul_i32 s7, s3, 2560\ns_add_u32 s7, s7, {X4}\ns_cmp_eq_u32 s3, 3\ns_cselect_b32 s7, {ZERO+64}, s7\nv_add_u32 v{AD+10}, s7, v4')
    S(f'v_lshlrev_b32 v7, 2, v3\nv_sub_u32 v7, v5, v7')
    S(f'v_mov_b32 v6, {fl(-1e30)}')
    for r in range(4):
        S(f'v_subrev_u32 v{AD}, {r}, v7')
        S(f'v_cmp_gt_u32 vcc, 8, v{AD}\nv_cmp_gt_i32 s[36:37], -8, v{AD}')
        S(f'v_cndmask_b32_e64 v{BC+r}, v6, 0, vcc\nv_cndmask_b32_e64 v{BP+r}, v6, 0, s[36:37]')
    S('v_cmp_gt_i32 s[36:37], -5, v7')
    S('s_cmp_eq_u32 s4, 0\ns_cselect_b64 s[38:39], -1, 0')
    for r in range(4): S(f'v_cndmask_b32_e64 v{BH+r}, v{BP+r}, v6, s[38:39]')
    S(f'v_cmp_eq_u32 vcc, s3, v3')
    S(f'v_add_u32 v{AD+5}, {X4}, v4')
    S(f'v_xor_b32 v{AD}, 64, v{AD+5}')
    S(f'v_lshrrev_b32 v{AD+8}, 2, v2\nv_lshlrev_b32 v{AD+8}, 3, v{AD+8}\ns_lshl_b32 s7, s3, 7\ns_add_u32 s7, s7, {X4+5120}\nv_add_u32 v{AD+8}, s7, v{AD+8}\nv_xor_b32 v{AD+9}, 64, v{AD+8}')
    S(f'v_mov_b32 v6, {ZERO}')
    for T in range(1, 5):
        S(f'v_add_u32 v7, {512*T}, v{AD+5}\nv_cndmask_b32 v{AD+T}, v6, v7, vcc')
    S(f'v_and_b32 v6, 1, v3\nv_mul_u32_u24 v6, 20480, v6\nv_lshrrev_b32 v7, 1, v3\nv_lshl_add_u32 v6, v7, 8, v6\nv_lshl_add_u32 v{AD+11}, v5, 4, v6')
    S(f'v_mul_u32_u24 v7, 20480, v3\nv_lshl_add_u32 v{AD+12}, v5, 4, v7')
    S('v_cmp_eq_u32 s[30:31], 1, v3\nv_cmp_eq_u32 s[32:33], 2, v3\nv_cmp_eq_u32 s[34:35], 3, v3')
    S('s_mul_i32 s60, s5, 7\ns_mul_i32 s7, s5, 6\ns_add_u32 s7, s7, 6\ns_cmp_ge_u32 s5, 6\ns_cselect_b32 s60, s7, s60\ns_cselect_b32 s101, 6, 7')
    for e, (so, vo, sp) in enumerate((('s53', 'v11', 's98'), ('s43', 'v15', 's99'))):
        S(f's_xor_b32 s7, s58, {e}\ns_lshl_b32 {sp}, s3, 1\ns_add_u32 s7, s7, {sp}\ns_add_u32 {sp}, s7, s60')
        S(f's_cmp_lt_u32 s7, s101\ns_cselect_b32 s7, 0, {OOB}')
        S(f'v_add_u32 {vo}, s7, v1\ns_mul_i32 {so}, {sp}, 40960\ns_add_u32 {so}, {so}, {W1_F}')
    S(f's_lshl_b32 s56, s3, 10\ns_mul_i32 s57, s5, {100*1024}\ns_add_u32 s57, s57, s56\ns_mul_i32 s7, s58, 40960\ns_add_u32 s57, s57, s7\ns_add_u32 s57, s57, {WO_F}\ns_mul_i32 s42, s58, 102400')
    merge(A, M, S, budget=2.0)
    A('s_mov_b32 s59, 0')
    chk4(PV)
    A('s_nop 3'); A('s_cbranch_vccz SYB_DONE', IF)
    A.label('SYB', IF)
    Bk = Asm()
    Bk(f's_sleep 4\nbuffer_load_dwordx4 {v(PV,4)}, v1, s[12:15], s6 offen sc1\ns_waitcnt vmcnt(0)')
    A.ins.append(Ins('s_nop 0')); A.ins[-1].kind = 'label'; A.ins[-1].op = '.raw'; A.ins[-1].text = Bk.finish().rstrip('\n')
    chk4(PV)
    A('s_add_u32 s59, s59, 1\ns_cmp_gt_u32 s59, 0x40000'); A('s_cbranch_scc1 SYB_DONE', IF)
    A('s_nop 3'); A('s_cbranch_vccnz SYB', IF)
    A.label('SYB_DONE', IF)
    st()
    M = Buf(); S = Buf()
    S(f's_cmp_eq_u32 s2, 0\ns_cselect_b32 s6, {EPO}, s14\nbuffer_store_dword v14, v10, s[12:15], s6 offen sc1')
    VL = 132
    S(f's_lshl_b32 s6, s3, 10\ns_add_u32 s6, s6, {MODP + 1920*16}')
    for i in range(5):
        S(f'buffer_load_dwordx4 {v(VL+4*i,4)}, v1, s[12:15], s6 offen sc1')
        if i < 4: S('s_add_u32 s6, s6, 4096')
    S('s_lshl_b32 s6, s3, 6\nv_add_u32 v4, s6, v2')
    S(f'v_mov_b32 v6, {(3200-80-1280)*16}\nv_cmp_le_u32 vcc, 80, v4\nv_cndmask_b32 v6, 0, v6, vcc\nv_lshl_add_u32 v6, v4, 4, v6')
    S(f's_mul_i32 s6, s5, {80*16}\ns_add_u32 s6, s6, {MODP + 1280*16}')
    S(f'buffer_load_dwordx4 {v(VL+20,4)}, v6, s[12:15], s6 offen sc1')
    S(f'v_mov_b32 v{PV}, s20\nv_mov_b32 v{PV+1}, s20\nv_lshlrev_b32 v6, 3, v4\nv_add_u32 v6, {VEC}, v6\nds_write_b64 v6, {v(PV,2)} offset:3072')
    S(f'v_lshlrev_b32 v6, 1, v4\nv_add_u32 v6, {VEC}, v6')
    for s_ in range(SB_CHECK, 15): g1step(M, s_, True)
    merge(A, M, S, budget=2.0)
    M = Buf(); S = Buf()
    S('s_cmp_ge_u32 s3, 2\ns_cselect_b64 vcc, -1, 0')
    S('v_and_b32 v4, 3, v2\nv_cmp_eq_u32 s[28:29], 1, v4\nv_cmp_eq_u32 s[62:63], 2, v4\nv_cmp_eq_u32 s[96:97], 3, v4')
    quadsum(S, VL, 6, ['s[28:29]', 's[62:63]', 's[96:97]'])
    for i in range(6):
        modfin(S, VL+4*i, [0, 0, 2, 1, 1, 0][i])
        S(f'ds_write_b16_d16_hi v6, v{VL+4*i} offset:{512*i}')
    S(f's_lshl_b32 s6, s5, 2\ns_add_u32 s6, s6, s3')
    S(f's_mul_i32 s7, s4, {4*20*1024}\ns_add_u32 s7, s7, {O_F}')
    S(f's_lshl_b32 s96, s6, 9\ns_add_u32 s96, s96, s7\ns_add_u32 s97, s96, {2*20480}')
    S(f's_lshr_b32 s95, s6, 1\ns_lshl_b32 s95, s95, 8\ns_and_b32 s6, s6, 1\ns_lshl_b32 s6, s6, 3\ns_add_u32 s95, s95, s6\ns_add_u32 s95, s95, s7\ns_add_u32 s95, s95, {16*1024}')
    S(f's_mov_b32 s20, {fl(20**-0.5 * LOG2E)}')
    for s_ in range(15, 20): g1step(M, s_, True)
    merge(A, M, S, budget=2.0)
    st()
    def cvt2(d, c): A(f'v_cvt_pk_bf16_f32 v{d}, v{c}, v{c+1}\nv_cvt_pk_bf16_f32 v{d+1}, v{c+2}, v{c+3}')
    for T in range(5):
        cvt2(acc4(T), acc4(T))
        A(f'ds_write_b64 v{AD+10}, {v(acc4(T),2)} offset:{512*T}')
    for T in range(5): cvt2(KF+T*4, accK(T))
    A('s_waitcnt lgkmcnt(0)\ns_barrier')
    vpos = {0: 0, 1: 2, 2: 4, 3: 8, 4: 10}
    for T in range(1, 5):
        A(f'ds_read_b64 {v(QF+(T-1)*4+2,2)}, v{AD+T}')
        if T == 1: A(f'ds_read_b64 {v(KF+2,2)}, v{AD+5} offset:2560')
        if T == 3: A(f'ds_read_b64 {v(KF+22,2)}, v{AD} offset:2560')
        A(f'ds_read_b64 {v(KF+T*4+2,2)}, v{AD+5} offset:{2560+512*T}')
    for T in range(5): A(f'ds_read_b64_tr_b16 {v(V4+vpos[T],2)}, v{AD+8} offset:{512*T}')
    A(f'ds_read_b64_tr_b16 {v(V4+6,2)}, v{AD+9}')
    woload(A, 9, 9)
    woload(A, 3)
    for T in range(1, 5): cvt2(QF+(T-1)*4, accQ(T))
    for d in range(2): A(f'v_mov_b32_dpp v{KF+20+d}, v{KF+d} row_ror:8 row_mask:0xf bank_mask:0xf')
    SC, SP = 16, 32
    prevK = {1: 0, 2: 1, 3: 5, 4: 3}
    M = Buf(); S = Buf()
    for T in range(1, 5):
        q = v(QF+(T-1)*4, 4)
        M(f'{MF} {v(SC+(T-1)*4,4)}, {v(KF+T*4,4)}, {q}, {v(BC,4)}')
        M(f'{MF} {v(SP+(T-1)*4,4)}, {v(KF+prevK[T]*4,4)}, {q}, {v(BH if T in (1,3) else BP,4)}')
    for T in range(5):
        c = accV(T); S(f'v_cvt_pk_bf16_f32 v{VS+vpos[T]}, v{c}, v{c+1}\nv_cvt_pk_bf16_f32 v{VS+vpos[T]+1}, v{c+2}, v{c+3}')
    for d in range(2): S(f'v_mov_b32 v{VS+6+d}, v{VS+d}\nv_mov_b32 v{AD+6+d}, v{VS+d}')
    for d in range(2): S(f'v_permlane32_swap_b32 v{VS+6+d}, v{AD+6+d}')
    merge(A, M, S, budget=2.0)
    MX, M2 = 48, 52
    woload(A, 2)
    for t in range(4):
        for r in range(4): A(f'v_max_f32 v{SC+4*t+r}, v{SC+4*t+r}, v{SP+4*t+r}')
    for t in range(4):
        A(f'v_max3_f32 v{MX+t}, v{SC+4*t}, v{SC+4*t+1}, v{SC+4*t+2}\nv_max_f32 v{MX+t}, v{MX+t}, v{SC+4*t+3}')
    def xgroup(B, op, base, tmp, n=4):
        for sw in ('v_permlane32_swap_b32', 'v_permlane16_swap_b32'):
            for t in range(n): B(f'v_mov_b32 v{tmp+t}, v{base+t}')
            for t in range(n): B(f'{sw} v{base+t}, v{tmp+t}')
            for t in range(n): B(f'{op} v{base+t}, v{base+t}, v{tmp+t}')
    woload(A, 2)
    xgroup(A, 'v_max_f32', MX, M2)
    woload(A, 2)
    for t in range(4): A(f'v_mul_f32 v{MX+t}, s20, v{MX+t}')
    for t in range(4):
        for r in range(4): A(f'v_fma_f32 v{SC+4*t+r}, v{SC+4*t+r}, s20, -v{MX+t}')
    woload(A, 2)
    for t in range(4):
        for r in range(4): A(f'v_exp_f32 v{SC+4*t+r}, v{SC+4*t+r}')
    woload(A, 2)
    PF = 56
    for t in range(4): cvt2(SP+2*t, SC+4*t)
    for t in range(4):
        for d in range(2):
            A(f'v_cndmask_b32_e64 v{PF+4*t+d}, 0, v{SP+2*t+d}, s[36:37]')
            A(f'v_cndmask_b32_e64 v{PF+4*t+2+d}, v{SP+2*t+d}, 0, s[36:37]')
    OM, O4, OS = 72, 92, 108
    win = {0: 0, 1: 2, 2: 6, 3: 8}
    for k in range(4): A(f'v_mov_b32 v{124+k}, s100')
    for t in range(4):
        A(f'{MF} {v(OS+4*t,4)}, v[124:127], {v(PF+4*t,4)}, 0')
    for t in range(4):
        A(f'{MF} {v(OM+4*t,4)}, {v(VS+win[t],4)}, {v(PF+4*t,4)}, 0')
    for t in range(4):
        A(f'{MF} {v(O4+4*t,4)}, {v(V4+win[t],4)}, {v(PF+4*t,4)}, 0')
        A(f'v_rcp_f32 v{MX+t}, v{OS+4*t}')
    for t in range(4):
        for r in range(4): A(f'v_mul_f32 v{OM+4*t+r}, v{OM+4*t+r}, v{MX+t}')
    for p_ in range(2):
        cvt2(32+4*p_, OM+8*p_); cvt2(34+4*p_, OM+8*p_+4)
    for p_ in range(2):
        o = 32 + 4*p_
        A(f'v_permlane16_swap_b32 v{o}, v{o+2}\nv_permlane16_swap_b32 v{o+1}, v{o+3}')
        A(f'buffer_store_dwordx4 v[{o}:{o+3}], v{AD+11}, s[12:15], s{96+p_} offen sc1', tag='o')
    for t in range(1, 4):
        for r in range(4): A(f'v_cndmask_b32_e64 v{O4+r}, v{O4+r}, v{O4+4*t+r}, s[{28+2*t}:{29+2*t}]')
        A(f'v_cndmask_b32_e64 v{MX}, v{MX}, v{MX+t}, s[{28+2*t}:{29+2*t}]')
    for r in range(4): A(f'v_mul_f32 v{O4+r}, v{O4+r}, v{MX}')
    cvt2(O4, O4)
    A(f'buffer_store_dwordx2 v[{O4}:{O4+1}], v{AD+12}, s[12:15], s95 offen sc1', tag='o')
    st()
    def publish(ph, tag):
        A.wait_tag(tag); A('s_barrier')
        A(f's_add_u32 s6, s52, {4096*ph}\nbuffer_store_dword v14, v10, s[12:15], s6 offen sc1')
    def acquire(ph):
        A('s_waitcnt lgkmcnt(0)\ns_mov_b32 s59, 0\ns_cmp_lg_u32 s3, 0'); A(f's_cbranch_scc1 ACQ{ph}_DONE', IF)
        A.label(f'ACQ{ph}', IF)
        A(f's_load_dwordx8 s[28:35], s[54:55], {4096*ph} glc')
        A('s_waitcnt lgkmcnt(0)')
        for k in range(8): A(f's_xor_b32 s{28+k}, s{28+k}, s94')
        A('s_or_b64 s[28:29], s[28:29], s[30:31]\ns_or_b64 s[32:33], s[32:33], s[34:35]\ns_or_b64 s[28:29], s[28:29], s[32:33]\ns_or_b32 s28, s28, s29')
        A('s_add_u32 s59, s59, 1\ns_cmp_gt_u32 s59, 0x40000'); A(f's_cbranch_scc1 ACQ{ph}_DONE', IF)
        A('s_cmp_lg_u32 s28, 0'); A(f's_cbranch_scc1 ACQ{ph}', IF)
        A.label(f'ACQ{ph}_DONE', IF)
        A('s_barrier')
    woload(A, 25)
    w1load(A, 4)
    OF, WB, ACC, RG, RA, RB, RX = 16, 96, 132, 152, 162, 172, 182
    NB = 9
    A('s_lshl_b32 s6, s4, 6\ns_and_b32 s7, s3, 1\ns_lshl_b32 s7, s7, 5\ns_add_u32 s6, s6, s7\ns_lshr_b32 s7, s3, 1\ns_add_u32 s6, s6, s7')
    A('s_mul_i32 s6, s6, 1280\ns_mul_i32 s7, s5, 160\ns_add_u32 s26, s6, s7')
    A('v_mul_u32_u24 v6, 2560, v5\nv_lshl_add_u32 v7, v3, 3, v6\nv_lshl_add_u32 v6, v3, 4, v6')
    A('v_lshlrev_b32 v8, 4, v3\nv_lshlrev_b32 v9, 3, v3')
    publish(0, 'o')
    def ld10(B, d, va, vb, sr, so, off=0):
        B(f'buffer_load_dwordx4 v[{d}:{d+3}], {va}, {sr}, {so} offen offset:{off}\nbuffer_load_dwordx4 v[{d+4}:{d+7}], {va}, {sr}, {so} offen offset:{off+64}\nbuffer_load_dwordx2 v[{d+8}:{d+9}], {vb}, {sr}, {so} offen offset:{off+128}')
    def lv10(B, d, va, vb, off):
        B(f'ds_read_b128 {v(d,4)}, {va} offset:{off}\nds_read_b128 {v(d+4,4)}, {va} offset:{off+64}\nds_read_b64 {v(d+8,2)}, {vb} offset:{off+128}')
    ld10(A, RX, 'v6', 'v7', 's[8:11]', 's26')
    w1load(A, 10)
    A(f'v_add_u32 v12, {VEC}, v8\nv_add_u32 v13, {VEC}, v9')
    lv10(A, RG, 'v12', 'v13', 2560)
    A('v_add_u32 v12, s7, v12\nv_add_u32 v13, s7, v13')
    lv10(A, RB, 'v12', 'v13', 0)
    lv10(A, RA, 'v12', 'v13', 1280)
    A(f's_lshl_b32 s24, s4, 2\ns_add_u32 s24, s24, s3\ns_mul_i32 s24, s24, 20480\ns_add_u32 s25, s24, {Z_F}\ns_add_u32 s24, s24, {O_F}')
    A('s_lshl_b32 s6, s58, 13\ns_add_u32 s24, s24, s6\ns_mul_i32 s27, s58, 20480')
    A(f'v_add_u32 v4, {WOL}, v1')
    A.wait_tag('wo')
    acquire(0)
    st()
    M = Buf(); S = Buf()
    def oload(B, s_):
        B(f'buffer_load_dwordx4 {v(OF+4*s_,4)}, v1, s[12:15], s24 offen offset:{1024*(s_%4)} sc1')
        if s_ % 4 == 3: B('s_add_u32 s24, s24, 4096')
        if s_ == 11: B('s_sub_u32 s24, s24, s27')
    for s_ in range(11): oload(A, s_)
    items = [(s_, t) for s_ in range(20) for t in range(5)]
    def rd(B, k):
        d = WB + (k % NB)*4
        B(f'ds_read_b128 v[{d}:{d+3}], ' + (f'v4 offset:{k*1024}' if k < 36 else f'v1 offset:{(k-36)*1024}'))
    for k in range(NB-1): rd(A, k)
    for k, (s_, t) in enumerate(items):
        M(f'{MF} {v(ACC+4*t,4)}, {v(WB+(k%NB)*4,4)}, {v(OF+4*s_,4)}, {v(ACC+4*t,4) if s_ else "0"}')
        if k + NB - 1 < 100: rd(M, k + NB - 1)
        if t == 0:
            if s_ + 11 < 20: oload(M, s_ + 11)
            else: w1load(M, 1)
    XU, GU, AU, BU = 16, 36, 56, 76
    for d in range(10): unpack(S, XU+2*d, RX+d)
    for d in range(10): unpack(S, GU+2*d, RG+d)
    merge(A, M, S, budget=2.0, start=52)
    for d in range(10): unpack(A, AU+2*d, RA+d)
    st()
    ZU = 96
    for d in range(10): A(f'v_pk_fma_f32 {pr(XU+2*d)}, {pr(ACC+2*d)}, {pr(GU+2*d)}, {pr(XU+2*d)}')
    for d in range(10): A(f'v_pk_mul_f32 {pr(ZU+2*d)}, {pr(XU+2*d)}, {pr(AU+2*d)}')
    ZP = 116
    for d in range(10): A(f'v_cvt_pk_bf16_f32 v{ZP+d}, v{ZU+2*d}, v{ZU+2*d+1}')
    A('s_lshl_b32 s6, s5, 11\ns_add_u32 s6, s6, s25')
    A(f's_lshr_b32 s27, s5, 1\ns_lshl_b32 s27, s27, 10\ns_add_u32 s27, s27, s25\ns_and_b32 s24, s5, 1\ns_lshl_b32 s24, s24, 3\ns_add_u32 s27, s27, s24\ns_add_u32 s27, s27, {16*1024}')
    A(f'buffer_store_dwordx4 v[{ZP}:{ZP+3}], v1, s[12:15], s6 offen sc1\nbuffer_store_dwordx4 v[{ZP+4}:{ZP+7}], v1, s[12:15], s6 offen offset:1024 sc1', tag='z')
    A(f'buffer_store_dwordx2 v[{ZP+8}:{ZP+9}], v1, s[12:15], s27 offen sc1', tag='z')
    for d in range(10): unpack(A, BU+2*d, RB+d)
    SS = 132
    for d in range(10):
        x_, z_, a_, b_ = pr(XU+2*d), pr(ZU+2*d), pr(AU+2*d), pr(BU+2*d)
        if d == 0:
            A(f'v_pk_add_f32 {pr(SS)}, {x_}, {pr(XU+2)}\nv_pk_mul_f32 {pr(SS+2)}, {x_}, {x_}\nv_pk_add_f32 {pr(SS+4)}, {z_}, {pr(ZU+2)}')
            A(f'v_pk_mul_f32 {pr(SS+6)}, {z_}, {a_}\nv_pk_mul_f32 {pr(SS+8)}, {z_}, {z_}\nv_pk_mul_f32 {pr(SS+10)}, {z_}, {b_}')
        else:
            if d > 1: A(f'v_pk_add_f32 {pr(SS)}, {pr(SS)}, {x_}')
            A(f'v_pk_fma_f32 {pr(SS+2)}, {x_}, {x_}, {pr(SS+2)}')
            if d > 1: A(f'v_pk_add_f32 {pr(SS+4)}, {pr(SS+4)}, {z_}')
            A(f'v_pk_fma_f32 {pr(SS+6)}, {z_}, {a_}, {pr(SS+6)}\nv_pk_fma_f32 {pr(SS+8)}, {z_}, {z_}, {pr(SS+8)}\nv_pk_fma_f32 {pr(SS+10)}, {z_}, {b_}, {pr(SS+10)}')
    for k in range(6): A(f'v_add_f32 v{144+k}, v{SS+2*k}, v{SS+2*k+1}')
    A(f's_lshl_b32 s6, s4, 2\ns_add_u32 s6, s6, s3\ns_lshl_b32 s6, s6, 3')
    A(f's_lshl_b32 s56, s6, 10\ns_add_u32 s56, s56, {STA}\ns_lshl_b32 s57, s6, 9\ns_add_u32 s57, s57, {STB}')
    A(f's_lshl_b32 s6, s5, 10\ns_add_u32 s6, s6, s56\ns_lshl_b32 s27, s5, 9\ns_add_u32 s27, s27, s57')
    A('v_lshlrev_b32 v150, 3, v2')
    A('buffer_store_dwordx4 v[144:147], v1, s[12:15], s6 offen sc1\nbuffer_store_dwordx2 v[148:149], v150, s[12:15], s27 offen sc1', tag='z')
    for d in range(10): A(f'v_cvt_pk_bf16_f32 v{RX+d}, v{XU+2*d}, v{XU+2*d+1}')
    st()
    print('w1 issued before U:', w1i[0], file=sys.stderr)
    w1load(A, max(8, 40 - w1i[0]))
    MFR = 16
    A('v_and_b32 v12, 3, v2')
    A(f'v_mov_b32 v13, {VEC+3072}\nv_cmp_eq_u32 vcc, 0, v12\nv_mov_b32 v4, {VEC+1280}\nv_cndmask_b32 v13, v13, v4, vcc')
    A(f'v_cmp_eq_u32 vcc, 1, v12\nv_mov_b32 v4, {VEC}\nv_cndmask_b32 v13, v13, v4, vcc')
    A('v_add_u32 v12, v13, v8\nv_add_u32 v13, v13, v9')
    B1R = 96
    for s_ in range(16): A(f'ds_read_b128 {v(MFR+4*s_,4)}, v12 offset:{160*(s_>>1)+64*(s_&1)}')
    for s_ in range(16, 20):
        for h in range(2): A(f'ds_read_b64 {v(MFR+4*s_+2*h,2)}, v13 offset:{320*(s_-16)+160*h+128}')
    UA, GA = 100, 116
    for s_ in range(20):
        for t in range(2): A(f'{MF} {v(UA+4*t,4)}, {v(MFR+4*s_,4)}, {R(wreg(s_,t),4)}, {v(UA+4*t,4) if s_ else "0"}')
    publish(1, 'z')
    A('v_lshlrev_b32 v4, 1, v5\ns_lshl_b32 s6, s98, 6\ns_lshl_b32 s27, s99, 6')
    for t in range(4): A(f'v_mov_b32 v{B1R+t}, 0')
    for t in range(4): A(f'buffer_load_short_d16_hi v{B1R+t}, v4, s[44:47], s{6 if t < 2 else 27} offen offset:{32*(t&1)}')
    M = Buf(); S = Buf()
    for s_ in range(20): M(f'{MF} {v(GA,4)}, {v(MFR+4*s_,4)}, {v(MFR+4*s_,4)}, {v(GA,4) if s_ else "0"}')
    w1load(S, 80)
    merge(A, M, S, budget=1.5)
    for s_ in range(20):
        for t in range(2, 4): A(f'{MF} {v(UA+4*t,4)}, {v(MFR+4*s_,4)}, {R(wreg(s_,t),4)}, {v(UA+4*t,4) if s_ else "0"}')
    W2L = 90112
    A('s_mul_i32 s60, s3, 14\ns_cmp_eq_u32 s3, 3\ns_cselect_b32 s60, 41, s60\ns_mul_i32 s6, s58, 7\ns_add_u32 s60, s60, s6')
    A(f's_mul_i32 s24, s5, 54\ns_add_u32 s24, s24, s60\ns_mul_i32 s24, s24, 5120\ns_add_u32 s24, s24, {W2_F}')
    A(f's_mul_i32 s27, s3, 15360\ns_add_u32 s27, s27, {W2L}')
    UF = 16
    for r in range(3): A(f'v_mul_f32 v{GA+r}, s21, v{GA+r}')
    for t in range(4):
        u = UA + 4*t; d = UF + 4*t
        A(f'v_cvt_pk_bf16_f32 v{d}, v{u}, v{u+1}\nv_cvt_pk_bf16_f32 v{d+1}, v{u+2}, v{B1R+t}')
        A(f'v_lshlrev_b32 v120, 16, v{d}\nv_and_b32 v121, 0xffff0000, v{d}\nv_lshlrev_b32 v122, 16, v{d+1}')
        A(f'v_sub_f32 v120, v{u}, v120\nv_sub_f32 v121, v{u+1}, v121\nv_sub_f32 v122, v{u+2}, v122')
        A(f'v_cvt_pk_bf16_f32 v{d+2}, v120, v121\nv_cvt_pk_bf16_f32 v{d+3}, v122, 0')
    A(f'v_readlane_b32 s36, v{GA}, 0\nv_readlane_b32 s37, v{GA+1}, 0\nv_readlane_b32 s38, v{GA+2}, 0\nv_readlane_b32 s39, v{GA+1}, 1\nv_readlane_b32 s42, v{GA+2}, 1')
    A(f's_mul_i32 s25, s4, {4*20480}\ns_add_u32 s25, s25, {Z_F}')
    A('s_and_b32 s6, s3, 1\ns_mul_i32 s6, s6, 20480\ns_lshr_b32 s43, s3, 1')
    st()
    acquire(1)
    st()
    def zdma(B, base, n, tag):
        for i in range(n):
            if i % 4 == 0: B(f's_add_u32 m0, s{base}, {i*1024}\ns_add_u32 s95, s25, m0')
            B(f'buffer_load_dwordx4 v1, s[12:15], s95 offen offset:{(i%4)*1024} sc1 lds', tag=tag)
    A('s_lshl_b32 s53, s43, 12\ns_add_u32 s53, s53, s6'); zdma(A, 53, 4, 'z0')
    A('s_mul_i32 s53, s43, 6144\ns_add_u32 s53, s53, s6\ns_add_u32 s53, s53, 8192'); zdma(A, 53, 6, 'z1')
    CF, KC, ACC, ZR = 32, 48, 64, 128
    SL4, SL2 = 96, 152
    A('v_lshlrev_b32 v12, 3, v2')
    A('v_add_u32 v4, 0x10000, v1')
    def zread(B, half, s_):
        for e in range(2):
            idx = (2*half + e)*20 + s_; d = ZR + (s_ % 3)*8 + 4*e
            B(f'ds_read_b128 {v(d,4)}, {"v1" if idx < 64 else "v4"} offset:{(idx % 64)*1024}')
    def gstep(B, half, s_):
        for e in range(2):
            for t in range(4):
                acc = ACC + ((2*half + e)*4 + t)*4
                B(f'{MF} {v(acc,4)}, {R(wreg(s_,t),4)}, {v(ZR+(s_%3)*8+4*e,4)}, {v(acc,4) if s_ else "0"}')
    A.wait_tag('z0'); A('s_barrier')
    zread(A, 0, 0); zread(A, 0, 1)
    M = Buf()
    for s_ in range(6):
        zread(M, 0, s_+2); gstep(M, 0, s_)
    L = Buf()
    for j in range(8):
        if j == 4: L('s_add_u32 s56, s56, 4096')
        L(f'buffer_load_dwordx4 {v(SL4+4*j,4)}, v1, s[12:15], s56 offen offset:{1024*(j%4)} sc1')
        L(f'buffer_load_dwordx2 {v(SL2+2*j,2)}, v12, s[12:15], s57 offen offset:{512*j} sc1')
    pace(A, M, L, 3)
    A.wait_tag('z1'); A('s_barrier')
    M = Buf(); S = Buf(); L = Buf()
    for s_ in range(6, 20):
        if s_ + 2 < 20: zread(M, 0, s_+2)
        gstep(M, 0, s_)
    L('s_mul_i32 s53, s43, 10240\ns_add_u32 s53, s53, s6\ns_add_u32 s53, s53, 40960')
    zdma(L, 53, 10, 'z2')
    for i in range(15):
        if i % 4 == 0: L(f's_add_u32 m0, s27, {i*1024}')
        L(f'buffer_load_dwordx4 v1, s[12:15], s24 offen offset:{(i%4)*1024} sc1 lds', tag='w2l')
        if i % 4 == 3: L('s_add_u32 s24, s24, 4096')
    L('s_add_u32 s24, s24, 3072')
    M2_ = Buf(); pace(M2_, M, L, 4)
    for j in range(1, 8):
        for k in range(4): S(f'v_add_f32 v{SL4+k}, v{SL4+k}, v{SL4+4*j+k}')
        for k in range(2): S(f'v_add_f32 v{SL2+k}, v{SL2+k}, v{SL2+2*j+k}')
    S(f'v_mov_b32 v{SL4+4}, v{SL2}\nv_mov_b32 v{SL4+5}, v{SL2+1}')
    xgroup(S, 'v_add_f32', SL4, SL4+8, 6)
    q = SL4
    for k in range(6): S(f'v_mul_f32 v{q+k}, s21, v{q+k}')
    t = SL4 + 8
    S(f'v_fma_f32 v{q+1}, -v{q}, v{q}, v{q+1}\nv_max_f32 v{q+1}, 0, v{q+1}\nv_add_f32 v{q+1}, s22, v{q+1}\nv_rsq_f32 v{t}, v{q+1}')
    S(f'v_fma_f32 v{q+2}, -v{q}, s38, v{q+2}')
    S(f'v_fma_f32 v{q+5}, -v{q}, s37, v{q+5}')
    S(f'v_mul_f32 v{t+1}, s36, v{q}\nv_fma_f32 v{t+1}, v{q+3}, -2.0, v{t+1}\nv_fma_f32 v{q+4}, v{q}, v{t+1}, v{q+4}')
    S(f'v_mul_f32 v{q+1}, v{q+1}, v{t}')
    S(f'v_fma_f32 v{q+2}, v{t}, v{q+2}, s42')
    S(f'v_mul_f32 v{q+4}, v{q+4}, v{t}\nv_fma_f32 v{q+4}, v{q+5}, 2.0, v{q+4}\nv_fma_f32 v{q+4}, v{q+4}, v{t}, s39')
    S(f'v_fma_f32 v{q+4}, -v{q+2}, v{q+2}, v{q+4}\nv_max_f32 v{q+4}, 0, v{q+4}\nv_add_f32 v{q+4}, s22, v{q+4}\nv_rsq_f32 v{t+1}, v{q+4}')
    S(f'v_sub_f32 v{q}, 0, v{q}')
    S(f'v_mul_f32_e64 v{q+2}, -v{q+2}, v{q+1}')
    S(f'v_mul_f32 v{q+4}, v{q+4}, v{t+1}\nv_mul_f32 v{q+3}, v{q+4}, v{q+1}')
    S(f'v_mul_f32 v{t}, v{t}, v{t+1}')
    c0 = -2*0.7978845608028654*LOG2E
    k_ = SL4 + 12
    S(f'v_mul_f32 v{k_}, {fl(c0)}, v{t}\nv_mul_f32 v{k_+1}, v{t}, v{t}\nv_mul_f32 v{k_+1}, v{k_+1}, v{k_}\nv_mul_f32 v{k_+1}, {fl(0.044715)}, v{k_+1}\nv_mov_b32 v{k_+2}, v{q+3}\nv_mov_b32 v{k_+3}, 0')
    h_ = SL4 + 16
    S(f'v_cvt_pk_bf16_f32 v{h_}, v{q}, v{q+1}\nv_cvt_pk_bf16_f32 v{h_+1}, v{q+2}, v{q+3}')
    unpack(S, h_+4, h_); unpack(S, h_+6, h_+1)
    for k in range(4): S(f'v_sub_f32 v{h_+4+k}, v{q+k}, v{h_+4+k}')
    S(f'v_cvt_pk_bf16_f32 v{h_+2}, v{h_+4}, v{h_+5}\nv_cvt_pk_bf16_f32 v{h_+3}, v{h_+6}, v{h_+7}')
    f_ = SL4 + 24
    S('v_cmp_eq_u32 vcc, 0, v3\nv_cmp_eq_u32 s[28:29], 1, v3')
    S(f'v_cndmask_b32_e64 v{f_}, 0, v{h_+2}, s[28:29]\nv_cndmask_b32_e64 v{f_+1}, 0, v{h_+3}, s[28:29]')
    S(f'v_cndmask_b32 v{f_}, v{f_}, v{h_}, vcc\nv_cndmask_b32 v{f_+1}, v{f_+1}, v{h_+1}, vcc')
    S(f'v_cndmask_b32 v{f_+2}, 0, v{h_}, vcc\nv_cndmask_b32 v{f_+3}, 0, v{h_+1}, vcc')
    CFX = 81920
    S(f's_lshl_b32 s30, s3, 10\ns_add_u32 s30, s30, {CFX}\nv_add_u32 v12, s30, v1')
    S(f'ds_write_b128 v12, {v(f_,4)}\nds_write_b128 v12, {v(k_,4)} offset:4096')
    merge(A, M2_, S, budget=2.0, start=16)
    st()
    A.wait_tag('z2'); A('s_waitcnt lgkmcnt(0)\ns_barrier')
    zread(A, 1, 0); zread(A, 1, 1)
    for T in range(4):
        A(f'ds_read_b128 {v(CF+4*T,4)}, v4 offset:{CFX-65536+1024*T}\nds_read_b128 {v(KC+4*T,4)}, v4 offset:{CFX-65536+4096+1024*T}')
    A(f's_mul_i32 s6, s4, {54*4096}\ns_add_u32 s6, s6, {HID}\ns_lshl_b32 s56, s98, 12\ns_add_u32 s56, s56, s6\ns_lshl_b32 s57, s99, 12\ns_add_u32 s57, s57, s6')
    A(f's_cmp_ge_u32 s3, 2\ns_cselect_b32 s6, {OOB}, 0\ns_mul_i32 s30, s6, s58\ns_sub_u32 s6, s6, s30\nv_add_u32 v13, s6, v1\nv_add_u32 v0, s30, v1')
    A(f's_mul_i32 s96, s58, {14*5120}\ns_mul_i32 s97, s58, {14*4096}')
    def corr(B, T):
        for t in range(4):
            acc = ACC + (T*4 + t)*4
            B(f'{MF} {v(acc,4)}, {v(UF+4*t,4)}, {v(CF+4*T,4)}, {v(acc,4)}')
    G = 152
    def gelu_plain(B, T, e):
        b = ACC + (T*4 + 2*e)*4; g_ = G + ((T*2+e) & 1)*8; k = KC + 4*T
        for d in range(8): B(f'v_mul_f32 v{g_+d}, v{b+d}, v{b+d}')
        for d in range(8): B(f'v_fma_f32 v{g_+d}, v{g_+d}, v{k+1}, v{k}')
        for d in range(8): B(f'v_mul_f32 v{g_+d}, v{g_+d}, v{b+d}')
        for d in range(8): B(f'v_exp_f32 v{g_+d}, v{g_+d}')
        for d in range(8): B(f'v_fma_f32 v{g_+d}, v{g_+d}, v{k+2}, v{k+2}')
        for d in range(8): B(f'v_rcp_f32 v{g_+d}, v{g_+d}')
        for d in range(8): B(f'v_mul_f32 v{g_+d}, v{g_+d}, v{b+d}')
        for d in range(4): B(f'v_cvt_pk_bf16_f32 v{b+d}, v{g_+2*d}, v{g_+2*d+1}')
        B(f'buffer_store_dwordx4 {v(b,4)}, {"v15" if e else "v11"}, s[12:15], s{56+e} offen offset:{1024*T} sc1', tag='h')
    def gelu_pk(B, T, e):
        b = ACC + (T*4 + 2*e)*4; g_ = G + ((T*2+e) & 1)*8; k = KC + 4*T
        for d in range(4): B(f'v_pk_mul_f32 {pr(g_+2*d)}, {pr(b+2*d)}, {pr(b+2*d)}')
        for d in range(4): B(f'v_pk_fma_f32 {pr(g_+2*d)}, {pr(g_+2*d)}, {pr(k)}, {pr(k)} op_sel:[0,1,0] op_sel_hi:[1,1,0]')
        for d in range(4): B(f'v_pk_mul_f32 {pr(g_+2*d)}, {pr(g_+2*d)}, {pr(b+2*d)}')
        for d in range(8): B(f'v_exp_f32 v{g_+d}, v{g_+d}')
        for d in range(4): B(f'v_pk_fma_f32 {pr(g_+2*d)}, {pr(g_+2*d)}, {pr(k+2)}, {pr(k+2)} op_sel_hi:[1,0,0]')
        for d in range(8): B(f'v_rcp_f32 v{g_+d}, v{g_+d}')
        for d in range(4): B(f'v_pk_mul_f32 {pr(g_+2*d)}, {pr(g_+2*d)}, {pr(b+2*d)}')
        for d in range(4): B(f'v_cvt_pk_bf16_f32 v{b+d}, v{g_+2*d}, v{g_+2*d+1}')
        B(f'buffer_store_dwordx4 {v(b,4)}, {"v15" if e else "v11"}, s[12:15], s{56+e} offen offset:{1024*T} sc1', tag='h')
    def voff(k): return 'v13' if k == 13 else ('v0' if k == 6 else 'v1')
    w2i = [0]
    def w2load(B, n, limit=55):
        for _ in range(n):
            i = w2i[0]
            if i >= min(55, limit): return
            w2i[0] += 1
            B(f'buffer_load_dwordx4 {a(4*i,4)}, {voff(3 + i//5)}, s[12:15], s24 offen offset:{(i%4)*1024} sc1')
            if i % 4 == 3: B('s_add_u32 s24, s24, 4096')
            if i == 19: B('s_sub_u32 s24, s24, s96')
    M = Buf(); S = Buf()
    for s_ in range(20):
        if s_ + 2 < 20: zread(M, 1, s_+2)
        gstep(M, 1, s_)
        if s_ == 0: corr(M, 0); corr(M, 1)
        w2load(M, 1 + (s_ % 2), 4*(s_+1))
    corr(M, 2); corr(M, 3)
    for T in range(2):
        for e in range(2): gelu_plain(S, T, e)
    merge(A, M, S, budget=2.0, start=18)
    st()
    for T in range(2, 4):
        for e in range(2):
            gelu_pk(A, T, e)
            if (T, e) != (3, 1): w2load(A, 2)
    st()
    w2load(A, 8)
    publish(2, 'h')
    w2load(A, 55)
    ACC = 16; GR, BR = 160, 170
    ld10(A, BR, 'v8', 'v9', 's[48:51]', 's7')
    A(f'v_add_u32 v12, {VEC}, v8\nv_add_u32 v4, {VEC}, v9')
    lv10(A, GR, 'v12', 'v4', 2560+160)
    A(f's_mul_i32 s25, s4, 54\ns_add_u32 s25, s25, s60\ns_lshl_b32 s25, s25, 12\ns_add_u32 s25, s25, {HID}')
    for T in range(4): A(f's_add_u32 s6, s3, {T}\ns_and_b32 s6, s6, 3\ns_lshl_b32 s{36+T}, s6, 10')
    A(f'v_add_u32 v12, s27, v1')
    def w2reg(k, t):
        if k >= 3: return 256 + ((k-3)*5 + t)*4
        return 256 + 220 + ((k*5 + t) % 9)*4
    A.wait_tag('w2l')
    for i in range(9): A(f'ds_read_b128 {R(w2reg(i//5, i%5),4)}, v12 offset:{1024*i}')
    for T in range(1, 4): A(f's_mul_i32 s6, s{36+T}, 15\nv_add_u32 v{179+T if T < 3 else 15}, s6, v1')
    A('s_mul_i32 s6, s36, 15\nv_add_u32 v11, s6, v1')
    acquire(2)
    st()
    def hreg(k, T):
        i = k % 8
        return (192 + i*16 if i < 4 else 96 + (i-4)*16) + 4*T
    KT = 11
    order = [(k, T) for k in range(KT) for T in range(4)] + [(k, T) for T in (1, 2, 3, 0) for k in range(KT, 14)]
    hi_ = [0]
    def hload(B, n, kmax):
        for _ in range(n):
            if hi_[0] >= 56: return
            k, T = order[hi_[0]]
            if k >= kmax: return
            hi_[0] += 1
            kk = min(k, KT)
            B(f's_add_u32 s6, s25, s{36+T}')
            if k > KT: B(f's_add_u32 s6, s6, {4096*(k-KT)}')
            B(f'buffer_load_dwordx4 {v(hreg(k,T),4)}, {voff(k)}, s[12:15], s6 offen sc1')
            if k < KT and T == 3:
                B('s_add_u32 s25, s25, 4096')
                if k == 6: B('s_sub_u32 s25, s25, s97')
    hload(A, 11, 8)
    def mm4(k, t, T):
        acc = ACC + (T*5 + t)*4
        A(f'{MF} {v(acc,4)}, {R(w2reg(k,t),4)}, {v(hreg(k,T),4)}, {v(acc,4) if k else "0"}')
    for k in range(KT):
        for T in range(4):
            for t in range(5):
                mm4(k, t, T)
                if T == 3:
                    i = k*5 + t + 9
                    if i < 15: A(f'ds_read_b128 {R(w2reg(i//5, i%5),4)}, v12 offset:{1024*i}')
            hload(A, 1, k + 8)
    assert hi_[0] == 55, hi_
    hload(A, 1, 99)
    TU = 192
    wa = {1: 180, 2: 181, 3: 15}
    prevT = None
    for T in (1, 2, 3, 0):
        n = 0
        for k in range(KT, 14):
            for t in range(5):
                mm4(k, t, T); n += 1
                if prevT is not None and n % 3 == 0 and n >= 3:
                    tt = n//3 - 1
                    A(f'ds_write_b128 v{wa[prevT]}, {v(ACC+(prevT*5+tt)*4,4)} offset:{(prevT-1)*5120 + tt*1024}')
        prevT = T
    st()
    A('s_waitcnt lgkmcnt(0)\ns_barrier')
    for w in range(3):
        for t in range(5):
            A(f'ds_read_b128 {v(ACC+20+(w*5+t)*4,4)}, v11 offset:{w*5120 + t*1024}')
    for d in range(10):
        unpack(A, TU+6*d, RX+d); unpack(A, TU+6*d+2, GR+d); unpack(A, TU+6*d+4, BR+d)
    for w in range(4):
        for d in range(10):
            A(f'v_pk_add_f32 {pr(TU+6*d+4)}, {pr(TU+6*d+4)}, {pr(ACC+20*w+2*d)}')
    for d in range(10): A(f'v_pk_fma_f32 {pr(TU+6*d)}, {pr(TU+6*d+4)}, {pr(TU+6*d+2)}, {pr(TU+6*d)}')
    OP = 160
    for d in range(10): A(f'v_cvt_pk_bf16_f32 v{OP+d}, v{TU+6*d}, v{TU+6*d+1}')
    A(f'buffer_store_dwordx4 v[{OP}:{OP+3}], v6, s[16:19], s26 offen\nbuffer_store_dwordx4 v[{OP+4}:{OP+7}], v6, s[16:19], s26 offen offset:64\nbuffer_store_dwordx2 v[{OP+8}:{OP+9}], v7, s[16:19], s26 offen offset:128')
    st.flush()
    A.label('KP_END')
    A('s_endpgm')
    return khead(KN) + A.finish() + kd(KN, 512, 256, 102)

def build():
    hdr = '; persistent fused block: one workgroup per CU, hand-offs through d_ws\n'
    hdr += f'; @launch grid=(256,1,1) block=(256,1,1) lds={LDS_BYTES}\n'
    return hdr + '.amdgcn_target "amdgcn-amd-amdhsa--gfx950"\n' + kp()

if __name__ == '__main__':
    Cfg.STAMP = sys.argv[2] if len(sys.argv) > 2 and sys.argv[2] != '-' else False
    for kv in sys.argv[3:]:
        k_, v_ = kv.split('='); setattr(P, k_, eval(v_))
    open(sys.argv[1], 'w').write(build())
```

```python
from common import *
MF = 'v_mfma_f32_16x16x32_bf16'
PA, PB = 672, 1312
LB = 112704
X4 = 102400; ZERO = X4 + 7680
MODF = 112704
VEC = 158720
LDS_BYTES = VEC + 5120
def unpack(A, dst, src):
    A(f'v_lshlrev_b32 v{dst}, 16, v{src}\nv_and_b32 v{dst+1}, 0xffff0000, v{src}')
def pr(r): return f'v[{r}:{r+1}]'
IF = 'inflight_ok'

LD = 216
SILU = 154688
def mod_proc(B, base, cg, q, npad, D):
    B(f'v_lshrrev_b32 v12, 2, v2\nv_lshlrev_b32 v12, 7, v12\nv_and_b32 v13, 3, v2\nv_lshl_add_u32 v12, v13, 3, v12\ns_lshl_b32 s6, s3, 5\ns_add_u32 s6, s6, {base}\nv_add_u32 v12, s6, v12')
    B(f's_mul_i32 s6, s{q}, 320\ns_add_u32 s6, s6, {SILU}\nv_lshl_add_u32 v13, v3, 3, s6')
    for s_ in range(5):
        B(f'ds_read_b64_tr_b16 {R(D+4*s_,2)}, v12 offset:{4096*s_}\nds_read_b64_tr_b16 {R(D+4*s_+2,2)}, v12 offset:{4096*s_+2048}')
        B(f'ds_read_b64 {R(D+20+4*s_,2)}, v13 offset:{64*s_}\nds_read_b64 {R(D+22+4*s_,2)}, v13 offset:{64*s_+32}')
    B(f'v_lshlrev_b32 v12, 6, v3\nv_cmp_eq_u32 vcc, 0, v5\nv_cndmask_b32 v13, v11, v12, vcc')
    B(f's_lshl_b32 s6, s{cg}, 10\ns_lshl_b32 s7, s{q}, 4\ns_add_u32 s6, s6, s7\ns_lshl_b32 s7, s3, 8\ns_add_u32 s6, s6, s7\ns_add_u32 s6, s6, {MODP}')
    B('v_mov_b32 v12, s94')
    for s_ in range(5):
        B(f'{MF} v[252:255], {R(D+4*s_,4)}, {R(D+20+4*s_,4)}, {"v[252:255]" if s_ else "0"}')
    for r in range(4):
        B(f's_mov_b32 s7, {hx(0x07060500 + r)}\nv_perm_b32 v{252+r}, v{252+r}, v12, s7')
    B(f'buffer_store_dwordx4 v[252:255], v13, s[12:15], s6 offen sc1')
    pad_st(B, npad - 1)
def pad_st(B, n):
    for _ in range(n): B('buffer_store_dword v11, v11, s[12:15], 0 offen')
def pad_ld(B, n):
    for _ in range(n): B('buffer_load_dword v0, v11, s[12:15], 0 offen', tag='touch')

def slotA_proc():
    B = Asm()
    B('s_cmp_eq_u32 s95, 0\ns_cbranch_scc1 PA_M')
    B(f'v_lshrrev_b32 v12, 2, v2\nv_mul_u32_u24 v12, {PA}, v12\nv_and_b32 v13, 3, v2\ns_mul_i32 s6, s3, 160\nv_add_u32 v12, s6, v12')
    B('v_mul_u32_u24 v14, 40, v13\nv_add_u32 v14, v14, v12\nv_lshl_add_u32 v12, v13, 3, v12')
    for t in range(5):
        d = LD + 4*t
        ad, off = ('v12', 40*t) if t < 4 else ('v14', 32)
        B(f'ds_read_b64_tr_b16 {v(d,2)}, {ad} offset:{off}\nds_read_b64_tr_b16 {v(d+2,2)}, {ad} offset:{off+16*PA}')
    B(f's_and_b32 s6, s57, 1\ns_lshl_b32 s6, s6, 2\ns_add_u32 s6, s6, s3\ns_mul_i32 s6, s6, {4*20*4096}\ns_lshl_b32 s7, s56, 12\ns_add_u32 s6, s6, s7\ns_add_u32 s6, s6, {WQ_F}')
    B(f's_lshr_b32 s7, s57, 1\ns_mul_i32 s24, s7, {20*4096}\ns_add_u32 s24, s24, s6\ns_lshl_b32 s7, s7, 10\ns_add_u32 s6, s6, s7')
    for t in range(4):
        B(f'buffer_store_dwordx4 {v(LD+4*t,4)}, v1, s[12:15], s6 offen sc1')
        if t < 3: B(f's_add_u32 s6, s6, {20*4096}')
    B(f'buffer_store_dwordx4 {v(LD+16,4)}, v1, s[12:15], s24 offen offset:3072 sc1')
    B('s_branch PA_END')
    B.label('PA_M')
    mod_proc(B, 0, 54, 55, 5, 256)
    B.label('PA_END')
    return B.finish()

def slotB_decode():
    B = Asm()
    B('s_and_b32 s20, s3, 1\ns_lshr_b32 s21, s3, 1')
    B(f's_mul_i32 s31, s3, {8*PB}\ns_add_u32 s31, s31, {LB}\ns_movk_i32 s34, {PB}\ns_mov_b32 s35, -1\ns_mov_b32 s50, 0xffff\ns_mov_b32 s51, 0\nv_mov_b32 v249, v1')
    B('s_mov_b32 s59, 0\ns_mov_b32 s61, 0\ns_mov_b32 s62, 0\ns_mov_b32 s63, 0')
    B('s_cmp_lt_u32 s2, 104\ns_cbranch_scc1 SB_M\ns_cmp_ge_u32 s2, 184\ns_cbranch_scc1 SB_W2')
    B('s_cmp_ge_u32 s2, 124\ns_cbranch_scc1 SB_W1')
    B('s_sub_u32 s59, s2, 104')
    srd(B, 96, 32, SZ['wo'])
    B('s_mul_i32 s7, s59, 40\ns_mul_i32 s22, s20, 20\ns_add_u32 s7, s7, s22\ns_lshl_b32 s22, s21, 2\ns_add_u32 s7, s7, s22')
    B('s_sub_u32 s6, s59, 16\ns_mul_i32 s6, s6, 160\ns_mul_i32 s22, s20, 80\ns_add_u32 s6, s6, s22\ns_mul_i32 s22, s21, 20\ns_add_u32 s6, s6, s22\ns_add_u32 s6, s6, 16')
    B(f's_cmp_ge_u32 s59, 16\ns_cselect_b32 s7, s6, s7\ns_mov_b32 s30, {5*1280}\ns_cmov_b32 s30, {37*1280}')
    B('s_mov_b32 s29, 1280\ns_mul_i32 s28, s7, 1280\ns_mov_b32 s58, 1')
    B(f's_mul_i32 s62, s59, 5120\ns_add_u32 s62, s62, {WO_F}\ns_mov_b32 s63, {20*5120}')
    B('s_branch SB_END')
    B.label('SB_W1')
    B('s_sub_u32 s6, s2, 124\ns_mul_i32 s59, s6, 43691\ns_lshr_b32 s59, s59, 17\ns_mul_i32 s61, s59, 3\ns_sub_u32 s61, s6, s61')
    srd(B, 96, 36, SZ['w1'])
    B('s_lshr_b32 s7, s59, 1\ns_mul_i32 s7, s7, 80\ns_and_b32 s22, s59, 1\ns_lshl_b32 s22, s22, 5\ns_add_u32 s7, s7, s22\ns_add_u32 s7, s7, s60')
    B('s_sub_u32 s6, s59, 16\ns_mul_i32 s6, s6, 160\ns_mul_i32 s22, s21, 80\ns_add_u32 s6, s6, s22\ns_lshl_b32 s22, s20, 3\ns_add_u32 s6, s6, s22\ns_add_u32 s6, s6, 64')
    B(f's_cmp_ge_u32 s59, 16\ns_cselect_b32 s7, s6, s7\ns_mov_b32 s30, {5*3456}\ns_cmov_b32 s30, 3456')
    B('s_mov_b32 s29, 3456\ns_mul_i32 s28, s7, 3456\ns_mul_i32 s22, s61, 1152\ns_add_u32 s28, s28, s22')
    B('s_mov_b32 s50, 0xff\ns_mov_b32 s58, 2')
    B('s_branch SB_END')
    B.label('SB_W2')
    B('s_sub_u32 s59, s2, 184')
    srd(B, 96, 40, SZ['w2'])
    B('s_lshl_b32 s7, s59, 5\ns_lshl_b32 s22, s3, 3\ns_add_u32 s7, s7, s22')
    B('s_mov_b32 s29, 1280\ns_mul_i32 s28, s7, 1280\ns_mov_b32 s30, 1280')
    B(f's_mul_i32 s62, s59, 5120\ns_add_u32 s62, s62, {W2_F}\ns_mov_b32 s63, {54*5120}')
    B('s_cmp_ge_u32 s2, 238\ns_cselect_b32 s58, 3, 1\ns_cselect_b32 s28, 0, s28\ns_cselect_b64 vcc, -1, 0\nv_cndmask_b32 v249, v1, v11, vcc')
    B('s_branch SB_END')
    B.label('SB_M')
    B('s_add_u32 s6, s2, 56\ns_mul_i32 s61, s6, 1639\ns_lshr_b32 s61, s61, 16\ns_mul_i32 s59, s61, 40\ns_sub_u32 s59, s6, s59\ns_add_u32 s59, s59, 20')
    srd(B, 96, 46, SZ['wmod'])
    B('s_mul_i32 s6, s61, 160\ns_mul_i32 s7, s3, 40\ns_add_u32 s6, s6, s7\ns_mul_i32 s6, s6, 7680\ns_lshl_b32 s7, s59, 7\ns_add_u32 s28, s6, s7')
    B('v_lshrrev_b32 v249, 3, v2\nv_mul_u32_u24 v249, 7680, v249\nv_and_b32 v12, 7, v2\nv_lshl_add_u32 v249, v12, 4, v249')
    B(f's_mul_i32 s31, s3, 5120\ns_add_u32 s31, s31, {LB}\ns_movk_i32 s34, 640\ns_mov_b32 s29, 38400\ns_mov_b32 s30, 38400\ns_movk_i32 s35, 0xff\ns_mov_b32 s50, 1\ns_movk_i32 s51, 20480')
    B('s_mov_b32 s58, 0')
    B.label('SB_END')
    return B.finish()

def slotB_proc():
    B = Asm()
    H = 16*PB; D = 216
    B(f'v_lshrrev_b32 v12, 2, v2\nv_mul_u32_u24 v12, {PB}, v12\nv_and_b32 v13, 3, v2\nv_add_u32 v12, {LB}, v12')
    B('v_mov_b32 v15, v11\ns_mov_b32 s96, 0\ns_mov_b32 s97, 0\ns_mov_b32 s98, 0\ns_mov_b32 s99, 0')
    B('s_cmp_eq_u32 s58, 0\ns_cbranch_scc1 PB_M\ns_cmp_eq_u32 s58, 3\ns_cbranch_scc1 PB_NONE')
    B('v_mov_b32 v15, v1\ns_cmp_eq_u32 s58, 2\ns_cbranch_scc1 PB_W1')
    B('s_mul_i32 s6, s3, 320\nv_add_u32 v12, s6, v12\nv_lshl_add_u32 v14, v13, 3, v12\nv_lshl_add_u32 v12, v13, 4, v12')
    for e in range(2):
        for t in range(5):
            d = D + (e*5 + t)*4
            ad, off = ('v12', 160*e + 64*(t >> 1) + 8*(t & 1)) if t < 4 else ('v14', 160*e + 128)
            B(f'ds_read_b64_tr_b16 {a(d,2)}, {ad} offset:{off}\nds_read_b64_tr_b16 {a(d+2,2)}, {ad} offset:{off+H}')
    B('s_mul_i32 s96, s3, s63\ns_lshl_b32 s96, s96, 1\ns_add_u32 s96, s96, s62\ns_movk_i32 s97, 1024\ns_sub_u32 s98, s63, 4096\ns_movk_i32 s99, 1024')
    B('s_waitcnt lgkmcnt(0)\ns_branch PB_NONE')
    B.label('PB_W1')
    B('s_lshl_b32 s6, s3, 5\nv_add_u32 v12, s6, v12\nv_lshl_add_u32 v12, v13, 3, v12')
    for i in range(9):
        d = D + i*4
        B(f'ds_read_b64_tr_b16 {a(d,2)}, v12 offset:{128*i}\nds_read_b64_tr_b16 {a(d+2,2)}, v12 offset:{128*i+H}')
    B(f's_mul_i32 s6, s61, {18*40960}\ns_lshl_b32 s7, s59, 11\ns_add_u32 s6, s6, s7\ns_lshr_b32 s7, s3, 1\ns_mul_i32 s7, s7, 40960\ns_add_u32 s6, s6, s7\ns_and_b32 s7, s3, 1\ns_lshl_b32 s7, s7, 10\ns_add_u32 s6, s6, s7\ns_add_u32 s96, s6, {W1_F}')
    B(f's_mov_b32 s97, 81920\ns_mov_b32 s98, 81920\ns_mov_b32 s99, {OOBS}')
    B('s_waitcnt lgkmcnt(0)')
    B.label('PB_NONE')
    pad_st(B, 1)
    B('s_branch PB_END')
    B.label('PB_M')
    mod_proc(B, LB, 59, 61, 1, 256+216)
    B.label('PB_END')
    return B.finish()

class P:
    NXF, NX0 = 0, 13
    XROT = True
    SYA_AT = 0
    SEQ = 'a x12 l0 f b0 l1 l2 b1 m l3 l4'
    W0, W1, BS0 = 6, 4, 3
    FINE = False
    PREW = True
    IV = 80
    WF = 'sc1'
    EXP1 = False
    NOLATE = False
    TLB = False
    FB_STEP, SB_ISSUE, SB_CHECK = 2, 9, 12
    ROT = True
WOL = 112704

def kp():
    A = Asm()
    KN = NAME + '_kernel'
    A('s_cmp_ge_u32 s2, 256\ns_cbranch_scc1 KP_END')
    A('s_load_dwordx16 s[28:43], s[0:1], 0\ns_load_dwordx8 s[44:51], s[0:1], 64\ns_load_dwordx2 s[52:53], s[0:1], 96')
    A('s_getpc_b64 s[20:21]')
    A.label('PC0', IF)
    A('s_lshr_b32 s7, s2, 3\ns_lshl_b32 s6, s7, 8\nv_add_u32 v1, s6, v0\nv_lshrrev_b32 v1, 4, v1\nv_lshlrev_b32 v1, 7, v1\nv_min_u32 v1, KP_END-PC0, v1')
    A('global_load_dword v243, v1, s[20:21]', tag='touch')
    A('s_and_b32 s6, s2, 7')
    A('s_lshr_b32 s4, s6, 1\ns_lshl_b32 s4, s4, 3\ns_lshr_b32 s5, s7, 2\ns_add_u32 s4, s4, s5')
    A('s_and_b32 s5, s6, 1\ns_lshl_b32 s5, s5, 2\ns_and_b32 s7, s7, 3\ns_add_u32 s5, s5, s7')
    A('v_lshrrev_b32 v1, 6, v0\nv_and_b32 v2, 63, v0\nv_readfirstlane_b32 s3, v1\nv_lshlrev_b32 v1, 4, v2')
    A('s_and_b32 s6, s3, 1\ns_lshl_b32 s60, s6, 4\ns_lshr_b32 s6, s3, 1\ns_lshl_b32 s6, s6, 2\ns_add_u32 s60, s60, s6')
    A('s_sub_u32 s6, s2, 80\ns_mul_i32 s56, s6, 10923\ns_lshr_b32 s56, s56, 16\ns_mul_i32 s57, s56, 6\ns_sub_u32 s57, s6, s57')
    A('s_mul_i32 s55, s2, 3277\ns_lshr_b32 s55, s55, 16\ns_mul_i32 s54, s55, 20\ns_sub_u32 s54, s2, s54')
    A('s_sub_u32 s22, s2, 180\ns_sub_u32 s23, s2, 220\ns_cmp_ge_u32 s2, 240\ns_cselect_b32 s22, s23, s22\ns_cselect_b32 s23, 1, 0')
    A('s_cmp_ge_u32 s2, 200\ns_cselect_b32 s54, s22, s54\ns_cselect_b32 s55, s23, s55')
    A('s_lshl_b32 s22, s56, 5\ns_add_u32 s22, s22, s60\ns_mul_i32 s22, s22, 3840\ns_mul_i32 s23, s57, 640\ns_add_u32 s22, s22, s23')
    A('s_mul_i32 s24, s55, 160\ns_mul_i32 s23, s3, 40\ns_add_u32 s24, s24, s23\ns_mul_i32 s24, s24, 7680\ns_lshl_b32 s23, s54, 7\ns_add_u32 s24, s24, s23')
    A('v_lshrrev_b32 v12, 3, v2\nv_mul_u32_u24 v12, 7680, v12\nv_and_b32 v13, 7, v2\nv_lshl_add_u32 v12, v13, 4, v12')
    A(f's_mov_b32 s25, 38400\ns_mov_b32 s26, 38400\ns_movk_i32 s27, 640\ns_mov_b32 s18, {SZ["wmod"]}\ns_mov_b32 s19, 0x20000')
    A(f's_cmp_lt_u32 s6, 120\ns_cselect_b32 s95, 1, 0\ns_cselect_b32 s24, s22, s24\ns_cmov_b32 s25, 3840\ns_cmov_b32 s26, 19200\ns_cmov_b32 s27, {PA}\ns_cmov_b32 s18, {SZ["wqkv"]}\ns_cselect_b64 vcc, -1, 0')
    A('v_cndmask_b32 v12, v12, v1, vcc\ns_mul_i32 s23, s3, s27\ns_lshl_b32 m0, s23, 3')
    A('v_lshlrev_b32 v13, 3, v0')
    XR, XN = 116, 16
    WAr = [4, 6, 7, 8, 9]
    A('v_lshrrev_b32 v3, 4, v2\ns_mul_i32 s6, s3, 20\nv_add_u32 v15, s6, v3')
    A('s_lshl_b32 s7, s4, 6\ns_sub_u32 s7, s7, 16\nv_add_u32 v14, s7, v15')
    A('s_movk_i32 s6, 1280\nv_mul_lo_u32 v14, v14, s6\nv_and_b32 v5, 15, v2\nv_lshl_add_u32 v14, v5, 4, v14')
    A('s_and_b32 s6, s5, 3' if P.XROT else 's_mov_b32 s6, 0')
    for i in range(5):
        A(f's_add_u32 s7, s6, {i}\ns_sub_u32 s22, s7, 5\ns_cmp_ge_u32 s7, 5\ns_cselect_b32 s7, s22, s7\ns_lshl_b32 s22, s7, 2\nv_add_u32 v{244+i}, s22, v15\ns_mul_i32 s7, s7, 5120\nv_add_u32 v{WAr[i]}, s7, v14')
    A(f's_mov_b32 s10, {SZ["x"]}\ns_mov_b32 s11, 0x20000')
    A('s_cmp_eq_u32 s95, 1\ns_waitcnt lgkmcnt(0)\ns_cselect_b32 s16, s30, s46\ns_cselect_b32 s17, s31, s47\ns_mov_b32 s8, s28\ns_mov_b32 s9, s29')
    st = St(A, 0); st()
    xl = [(i, m) for i in range(5) for m in range(5)]
    xn = [0]
    def xload(B, n):
        for i, m in xl[xn[0]:xn[0]+n]:
            B(f'buffer_load_dwordx4 {v(XR+(i*5+m)*4,4)}, v{WAr[i]}, s[8:11], 0 offen offset:{256*m}')
        xn[0] += n
    xload(A, P.NXF)
    A('s_mov_b32 exec_hi, 0xff')
    for i in range(8):
        A('buffer_load_dwordx4 v12, s[16:19], s24 offen nt lds')
        if i < 7: A(f's_add_u32 s24, s24, s{26 if i == 3 else 25}\ns_add_u32 m0, m0, s27')
    A('s_mov_b64 exec, -1')
    srd(A, 96, 44, SZ['c'])
    A('buffer_load_dwordx2 v[240:241], v13, s[96:99], 0 offen')
    A(f's_load_dword s94, s[52:53], {EPO}')
    srd(A, 12, 52, WS_END)
    xload(A, P.NX0)
    A(f'v_mov_b32 v11, {OOB}\nv_cmp_eq_u32 vcc, 0, v0\nv_cndmask_b32_e64 v10, v11, 0, vcc')
    A(f'v_add_u32 v242, {SILU}, v13')
    A('v_and_b32 v12, 7, v2')
    for i in range(5):
        t0, t1, t2, t3, t4 = 244+i, 250, 251, 252, 253
        A(f'v_and_b32 v{t1}, 1, v{t0}')
        A(f'v_lshrrev_b32 v{t2}, 1, v{t0}\nv_lshlrev_b32 v{t3}, 3, v{t1}\nv_sub_u32 v{t2}, v{t2}, v{t3}\nv_add_u32 v{t2}, 8, v{t2}')
        A(f'v_subrev_u32 v{t3}, 16, v{t0}\nv_lshrrev_b32 v{t4}, 5, v{t3}\nv_lshl_add_u32 v{t4}, v{t1}, 1, v{t4}\nv_add_u32 v{t4}, 1, v{t4}')
        A(f'v_bfe_u32 v{t3}, v{t3}, 1, 4')
        A(f'v_cmp_gt_u32 vcc, 16, v{t0}')
        A(f'v_cndmask_b32 v{t3}, v{t3}, v{t2}, vcc\nv_cndmask_b32_e64 v{t4}, v{t4}, 0, vcc')
        A(f'v_xor_b32 v{t3}, v{t3}, v12\nv_lshlrev_b32 v{t3}, 4, v{t3}\nv_mul_u32_u24 v{t4}, 20480, v{t4}\nv_lshl_add_u32 v{t3}, v5, 8, v{t3}\nv_add_u32 v{t0}, v{t3}, v{t4}')
    A.raw(slotB_decode())
    A(f's_mul_i32 s94, s94, 0x2c9277b5\ns_add_u32 s94, s94, 0xac564b05')
    A('s_mov_b32 s100, 0x3f803f80')
    S0 = 14; T = 13
    def lnrows(B, i):
        a_, b_ = S0, S0+1
        B(f'v_mov_b32 v{a_}, 0\nv_mov_b32 v{b_}, 0')
        for d in range(20):
            r = XR + i*20 + d
            B(f'v_dot2_f32_bf16 v{a_}, v{r}, s100, v{a_}\nv_dot2c_f32_bf16 v{b_}, v{r}, v{r}')
        for k, n in enumerate((8, 4, 2, 1)):
            B(f'v_add_f32_dpp v{a_}, v{a_}, v{a_} row_ror:{n} row_mask:0xf bank_mask:0xf\nv_add_f32_dpp v{b_}, v{b_}, v{b_} row_ror:{n} row_mask:0xf bank_mask:0xf')
            for d in range(5): unpack(B, XN + i*40 + 2*(5*k + d), XR + i*20 + 5*k + d)
        B(f'v_mul_f32 v{a_}, {fl(1/640)}, v{a_}\nv_mul_f32 v{b_}, {fl(1/640)}, v{b_}\nv_fma_f32 v{b_}, -v{a_}, v{a_}, v{b_}')
        B(f'v_max_f32 v{b_}, 0, v{b_}\nv_add_f32 v{b_}, {fl(1e-5)}, v{b_}\nv_rsq_f32 v{T}, v{b_}')
        B(f'v_mul_f32_e64 v{b_}, -v{a_}, v{T}\nv_mov_b32 v{a_}, v{T}')
        for d in range(20):
            t = XN + i*40 + 2*d
            B(f'v_pk_fma_f32 {pr(t)}, {pr(t)}, {pr(a_)}, {pr(a_)} op_sel:[0,0,1] op_sel_hi:[1,0,1]')
    M0 = 216
    def mtload(B):
        for i in range(5):
            B.group(f's_add_u32 s6, s23, {4096*i}\nbuffer_load_dwordx4 {v(M0+4*i,4)}, v1, s[12:15], s6 offen sc1', 'mt')
    moved = [False]
    def loads(tok):
        L = Buf()
        for t_ in tok.split('+'):
            if t_[0] == 'x': xload(L, int(t_[1:]))
            elif t_[0] == 'b':
                tail = int(t_[1])
                for i in range(8):
                    pre = ''
                    if i == 0: pre = 's_mov_b32 s20, s28\n' + ('s_add_u32 m0, s31, s51\n' if tail else 's_mov_b32 m0, s31\n')
                    pre += 's_mov_b32 exec_lo, s50\ns_mov_b32 exec_hi, 0\n' if tail else 's_mov_b32 exec_hi, s35\n'
                    post = '\ns_mov_b64 exec, -1' + (f'\ns_add_u32 s20, s20, s{30 if i == 3 else 29}\ns_add_u32 m0, m0, s34' if i < 7 else '')
                    L.group(pre + f'buffer_load_dwordx4 v249, s[96:99], s20 offen offset:{1024*tail} nt lds' + post, 'sb')
            elif t_ == 'm':
                L.group(f's_lshl_b32 s23, s3, 10\ns_add_u32 s23, s23, {MODP}')
                mtload(L)
        return L
    for step in P.SEQ.split():
        if xn[0] >= 25 and not moved[0]:
            for i in range(5): A(f'v_mov_b32 v{WAr[i]}, v{244+i}')
            moved[0] = True
        if step[0] == 'l':
            i = int(step[1]); assert xn[0] >= 5*i + 5
            M = Buf(); lnrows(M, i)
            L = loads(step[3:]) if len(step) > 2 else Buf()
            sprinkle(A, M, L, max(1, 116 // max(1, len(L.l))))
        elif step == 'a':
            A(f's_mov_b32 s6, {fl(-LOG2E)}')
            unpack(A, 236, 240); unpack(A, 238, 241)
            st()
            for k in range(4): A(f'v_mul_f32 v{250+k}, s6, v{236+k}')
            for k in range(4): A(f'v_exp_f32 v{250+k}, v{250+k}')
            for k in range(4): A(f'v_add_f32 v{250+k}, 1.0, v{250+k}')
            for k in range(4): A(f'v_rcp_f32 v{250+k}, v{250+k}')
            for k in range(4): A(f'v_mul_f32 v{236+k}, v{236+k}, v{250+k}')
            A('v_cvt_pk_bf16_f32 v240, v236, v237\nv_cvt_pk_bf16_f32 v241, v238, v239')
            A(f'ds_write_b64 v242, v[240:241]')
            A('s_waitcnt lgkmcnt(0)\ns_barrier')
            A.raw(slotA_proc(), nvm=5, tag='sa')
        elif step == 'f':
            A(f's_sub_u32 s6, s2, 80\ns_and_b32 s7, s6, 1\ns_lshl_b32 s7, s7, 8\ns_lshr_b32 s6, s6, 1\ns_lshl_b32 s6, s6, 2\ns_add_u32 s6, s6, s7\ns_add_u32 s6, s6, {FLA}')
            A('s_cmp_eq_u32 s95, 1\ns_cselect_b32 s6, s6, s14\nv_mov_b32 v12, s94')
            A.wait_tag('sa'); A('s_barrier')
            A('buffer_store_dword v12, v10, s[12:15], s6 offen sc1')
            if not P.FINE: st()
        else:
            for l_, t_ in loads(step).l: A(l_, t_)
        if P.FINE: st()
    A(f's_mov_b32 s20, 0x3f803f80\ns_mov_b32 s21, {fl(1/640)}\ns_mov_b32 s22, {fl(1e-5)}')
    if not P.FINE: st()
    A('s_mov_b32 s7, 0\ns_mov_b32 s25, 0x0c0c0400\ns_mov_b32 s26, 0x05040100')
    A('v_and_b32 v12, 3, v2\nv_cmp_eq_u32 s[32:33], 1, v12\nv_cmp_eq_u32 s[36:37], 2, v12\nv_cmp_eq_u32 s[40:41], 3, v12')
    A.wait_tag('mt')
    A.label('SYM', IF)
    for i in range(5):
        r = M0 + 4*i
        A(f'v_perm_b32 v236, v{r+1}, v{r}, s25\nv_perm_b32 v237, v{r+3}, v{r+2}, s25\nv_perm_b32 v236, v237, v236, s26')
        A(f'v_xor_b32 v13, s94, v236' if i == 0 else f'v_xor_b32 v236, s94, v236\nv_or_b32 v13, v13, v236')
    A('v_cmp_ne_u32 vcc, 0, v13\ns_nop 3'); A('s_cbranch_vccz SYM_DONE', IF)
    Bk = Asm(); L = Buf(); mtload(L)
    Bk('s_sleep 2')
    for l_, t_ in L.l: Bk(l_, t_)
    Bk('s_waitcnt vmcnt(0)')
    A.ins.append(Ins('s_nop 0')); A.ins[-1].kind = 'label'; A.ins[-1].op = '.raw'; A.ins[-1].text = Bk.finish().rstrip('\n')
    A('s_add_u32 s7, s7, 1\ns_cmp_lt_u32 s7, 0x40000'); A('s_cbranch_scc1 SYM', IF)
    A.label('SYM_DONE', IF)
    st()
    def quadsum(B, r, n, masks):
        for perm in ('[1,0,3,2]', '[2,3,0,1]'):
            for k in range(4*n): B(f'v_add_f32_dpp v{r+k}, v{r+k}, v{r+k} quad_perm:{perm} row_mask:0xf bank_mask:0xf')
        for i in range(n):
            for k in range(1, 4): B(f'v_cndmask_b32_e64 v{r+4*i}, v{r+4*i}, v{r+4*i+k}, {masks[k-1]}')
    def modfin(B, r, plus1):
        B(f'v_cvt_pk_bf16_f32 v{r}, v{r}, v{r}\nv_and_b32 v{r}, 0xffff0000, v{r}')
        if plus1:
            B(f'v_add_f32 v{r+1}, 1.0, v{r}\nv_cvt_pk_bf16_f32 v{r+1}, v{r+1}, v{r+1}\nv_and_b32 v{r+1}, 0xffff0000, v{r+1}')
            B(f'v_mov_b32 v{r}, v{r+1}' if plus1 == 1 else f'v_cndmask_b32 v{r}, v{r}, v{r+1}, vcc')
    def modsum(B, r, plus1):
        B(f'v_add_f32 v{r}, v{r}, v{r+1}\nv_add_f32 v{r+2}, v{r+2}, v{r+3}\nv_add_f32 v{r}, v{r}, v{r+2}')
        modfin(B, r, plus1)
    A('s_cmp_ge_u32 s3, 2\ns_cselect_b64 vcc, -1, 0')
    MODF2 = VEC
    A(f's_lshl_b32 s6, s3, 8\ns_add_u32 s6, s6, {MODF2}\nv_lshl_add_u32 v12, v2, 2, s6')
    quadsum(A, M0, 5, ['s[32:33]', 's[36:37]', 's[40:41]'])
    for i in range(5):
        r = M0 + 4*i
        modfin(A, r, [0, 0, 2, 1, 1][i])
        A(f'ds_write_b32 v12, v{r} offset:{1024*i}')
    A(f'v_mov_b32 v12, 0\nv_mov_b32 v13, 0\nv_mov_b32 v14, {ZERO}\nds_write_b64 v14, v[12:13]')
    A(f'v_min_u32 v251, 59, v2\nv_lshlrev_b32 v251, 2, v251\ns_cmp_eq_u32 s3, 0\ns_cselect_b32 s6, 0, {OOB}\nv_add_u32 v251, s6, v251')
    A(f's_lshr_b32 s23, s5, 2\ns_lshl_b32 s23, s23, 8\ns_add_u32 s23, s23, {FLA}')
    A('buffer_load_dword v250, v251, s[12:15], s23 offen sc1')
    A.wait_tag('sb'); A('s_waitcnt lgkmcnt(0)\ns_barrier')
    A.raw(slotB_proc(), nvm=1, tag='pb')
    st()
    bi = [0]
    def bstore(B, n=1):
        for _ in range(n):
            i = bi[0]
            if i >= 10: return
            bi[0] += 1
            B(f'buffer_store_dwordx4 {a(216+4*i,4)}, v15, s[12:15], s96 offen sc1', tag='pb')
            if i < 9: B(f's_add_u32 s96, s96, s{98 if i == 4 else (99 if i == 8 else 97)}')
    A(f'v_lshlrev_b32 v12, 5, v5\nv_add_u32 v12, {MODF2}, v12')
    def mread(m):
        d = M0 + (m & 1)*16
        A(f'ds_read_b128 {v(d,4)}, v12 offset:{512*m}\nds_read_b128 {v(d+4,4)}, v12 offset:{512*m+16}')
        A(f'ds_read_b128 {v(d+8,4)}, v12 offset:{2560+512*m}\nds_read_b128 {v(d+12,4)}, v12 offset:{2560+512*m+16}')
    mread(0)
    A('s_and_b32 s58, s4, 1' if P.ROT else 's_mov_b32 s58, 0')
    A(f's_lshl_b32 s24, s5, 2\ns_add_u32 s24, s24, s3\ns_mul_i32 s24, s24, {20*4096}\ns_mul_i32 s6, s58, 40960\ns_add_u32 s24, s24, s6\ns_add_u32 s24, s24, {WQ_F}')
    A('s_mul_i32 s26, s58, 81920')
    WV = 192
    def wreg(s_, t): return 256 + s_*16 + t*4 if s_ < 16 else WV + (s_-16)*16 + t*4
    wl = [(s_, t) for s_ in range(20) for t in range(4)]
    wi = [0]
    A(f's_cmp_eq_u32 s3, 3\ns_cselect_b32 s27, {OOB}, 0\nv_add_u32 v0, s27, v1')
    def wload(n=1, B=None):
        B = B or A
        for _ in range(n):
            if wi[0] >= len(wl): return
            s_, t = wl[wi[0]]; wi[0] += 1
            B(f'buffer_load_dwordx4 {R(wreg(s_, t), 4)}, {"v0" if t == 3 else "v1"}, s[12:15], s24 offen offset:{1024*t} sc1')
            if t == 3: B('s_add_u32 s24, s24, 4096')
            if t == 3 and s_ == 9: B('s_sub_u32 s24, s24, s26')
    srd(A, 16, 48, SZ['out']); srd(A, 44, 38, SZ['b1']); srd(A, 48, 42, SZ['b2'])
    A('s_mov_b32 s40, s52\ns_mov_b32 s41, s53')
    A(f's_lshl_b32 s52, s4, 7\ns_add_u32 s52, s52, {FLG}\ns_add_u32 s54, s40, s52\ns_addc_u32 s55, s41, 0')
    A(f's_lshl_b32 s6, s5, 2\ns_add_u32 s52, s52, s6')
    def chk4(r):
        A(f'v_xor_b32 v{r}, s94, v{r}\nv_xor_b32 v{r+1}, s94, v{r+1}\nv_xor_b32 v{r+2}, s94, v{r+2}\nv_xor_b32 v{r+3}, s94, v{r+3}')
        A(f'v_or3_b32 v{r}, v{r}, v{r+1}, v{r+2}\nv_or_b32 v{r}, v{r}, v{r+3}\nv_cmp_ne_u32 vcc, 0, v{r}')
    for m in range(5):
        if m < 4: mread(m+1)
        d0 = M0 + (m & 1)*16
        for i in range(5):
            n = m*5 + i
            if n == P.SYA_AT:
                A('v_cmp_ne_u32 vcc, s94, v250\ns_mov_b32 s7, 0\ns_cmp_lg_u32 s3, 0'); A('s_cbranch_scc1 SYA_DONE', IF)
                A.label('SYA', IF)
                A('s_nop 3'); A('s_cbranch_vccz SYA_DONE', IF)
                Bk = Asm()
                Bk('buffer_load_dword v250, v251, s[12:15], s23 offen sc1\ns_waitcnt vmcnt(0)\nv_cmp_ne_u32 vcc, s94, v250')
                A.ins.append(Ins('s_nop 0')); A.ins[-1].kind = 'label'; A.ins[-1].op = '.raw'; A.ins[-1].text = Bk.finish().rstrip('\n')
                A('s_add_u32 s7, s7, 1\ns_cmp_lt_u32 s7, 0x40000'); A('s_cbranch_scc1 SYA', IF)
                A.label('SYA_DONE', IF)
                A('s_barrier')
                st()
                wload(P.W0)
            b = XN + i*40 + 8*m
            for d in range(4): A(f'v_pk_fma_f32 {pr(b+2*d)}, {pr(b+2*d)}, {pr(d0+8+2*d)}, {pr(d0+2*d)}')
            for d in range(4): A(f'v_cvt_pk_bf16_f32 v{b+d}, v{b+2*d}, v{b+2*d+1}')
            A(f'ds_write_b128 v{WAr[i]}, {v(b,4)} offset:{4096*m}')
            if bi[0] < 10 and (n < P.SYA_AT or n % 2 == 0): bstore(A, 1)
            elif n >= P.SYA_AT: wload(1)
    bstore(A, 10)
    if P.PREW:
        for k in range(4): A(f'v_mov_b32 v{216+k}, 0')
        A(f's_and_b32 s6, s5, 3\ns_lshl_b32 s7, s4, 2\ns_add_u32 s6, s6, s7\ns_mul_i32 s6, s6, 20480\ns_lshl_b32 s7, s3, 10\ns_add_u32 s6, s6, s7')
        A(f's_lshr_b32 s7, s5, 2\ns_mul_i32 s7, s7, {Z_F-O_F}\ns_add_u32 s6, s6, s7\ns_add_u32 s6, s6, {O_F+16384}')
        A('buffer_store_dwordx4 v[216:219], v1, s[12:15], s6 offen sc1', tag='pb')
        A(f'v_lshrrev_b32 v220, 3, v2\nv_lshlrev_b32 v220, 12, v220\nv_and_b32 v221, 7, v2\nv_lshl_add_u32 v220, v221, 4, v220\nv_cmp_gt_u32 vcc, 32, v2\nv_cndmask_b32 v220, v11, v220, vcc')
        A(f's_lshl_b32 s6, s4, 7\ns_add_u32 s6, s6, {FLG}\ns_or_b32 s7, s5, s3\ns_cmp_eq_u32 s7, 0\ns_cselect_b32 s6, s6, s14')
        A('buffer_store_dwordx4 v[216:219], v220, s[12:15], s6 offen sc1', tag='pb')
    A('v_xor_b32 v12, v5, v3\nv_lshlrev_b32 v12, 4, v12\nv_lshl_add_u32 v12, v3, 8, v12\ns_mul_i32 s6, s58, 10240\nv_add_u32 v12, s6, v12')
    A('v_xor_b32 v13, 64, v12')
    A('v_add_u32 v8, 61440, v12\nv_add_u32 v9, 61440, v13')
    A('s_mul_i32 s23, s58, 20480\ns_sub_u32 s23, 10240, s23')
    A('v_mov_b32 v14, s94')
    A('s_waitcnt lgkmcnt(0)\ns_barrier')
    st()
    if P.EXP1:
        bstore(A, 10); wload(80); A('s_waitcnt vmcnt(0)\ns_barrier'); st()
    ACC = 16
    accQ = lambda T: ACC + (T-1)*4
    accK = lambda T: ACC + 16 + T*4
    accV = lambda T: ACC + 36 + T*4
    acc4 = lambda T: ACC + 56 + T*4
    AF = 92
    def aread(B, s_, T):
        if s_ == 10 and T == 0:
            B('v_add_u32 v12, s23, v12\nv_add_u32 v13, s23, v13\nv_add_u32 v8, s23, v8\nv_add_u32 v9, s23, v9')
        ad = (12 + (s_ & 1)) if T < 3 else (8 + (s_ & 1))
        d = AF + (s_ & 1)*20 + T*4
        B(f'ds_read_b128 v[{d}:{d+3}], v{ad} offset:{((T % 3)*20 + s_ % 10)*1024}')
    for T in range(5): aread(A, 0, T)
    w1l = [(s_, 2*e + t) for e in range(2) for s_ in range(20) for t in range(2)]
    w1i = [0]
    def w1load(B, n, limit=20):
        for _ in range(n):
            if w1i[0] >= 80: return
            s_, t = w1l[w1i[0]]
            if s_ >= limit: return
            w1i[0] += 1
            so, vo = ('s53', 'v11') if t < 2 else ('s43', 'v15')
            B(f'buffer_load_dwordx4 {R(wreg(s_, t), 4)}, {vo}, s[12:15], {so} offen offset:{2048*(s_ & 1) + 1024*(t & 1)} sc1')
            if (s_ & 1) and (t & 1): B(f's_add_u32 {so}, {so}, 4096')
    woi = [0]
    def woload(B, n, limit=25):
        for _ in range(n):
            i = woi[0]
            if i >= limit: return
            woi[0] += 1
            B(f's_add_u32 m0, s56, {WOL + 4096*i if i < 9 else 4096*(i-9)}')
            B(f'buffer_load_dwordx4 v1, s[12:15], s57 offen sc1 lds', tag='wo')
            B('s_add_u32 s57, s57, 4096')
            if i == 14: B('s_sub_u32 s57, s57, s42')
    def g1step(B, s_, late):
        for T in range(5):
            af = v(AF + (s_ & 1)*20 + T*4, 4)
            def mm(acc, a_, b_):
                B(f'{MF} {v(acc,4)}, {a_}, {b_}, {v(acc,4) if s_ else "0"}')
            if T > 0: mm(accQ(T), R(wreg(s_, 0), 4), af)
            mm(accK(T), R(wreg(s_, 1), 4), af)
            if s_ < 19: aread(B, s_+1, T)
            mm(accV(T), af, R(wreg(s_, 2), 4))
            mm(acc4(T), R(wreg(s_, 3), 4), af)
            if T > 0:
                if wi[0] < 80: wload(1, B)
                elif late and not P.NOLATE:
                    if woi[0] < 9: woload(B, 1, 9)
                    else: w1load(B, 1, s_)
    SB_ISSUE, SB_CHECK = P.SB_ISSUE, P.SB_CHECK
    for s_ in range(P.FB_STEP):
        g1step(A, s_, False)
        if s_ < 2: bstore(A, 2)
    assert bi[0] == 10
    A.wait_tag('pb'); A('s_barrier')
    A('s_lshl_b32 s6, s2, 2\ns_add_u32 s6, s6, %d\nbuffer_store_dword v14, v10, s[12:15], s6 offen sc1' % FLB)
    PV = 184
    QF, KF, VS, V4 = 92, 108, 132, 144
    BC, BP, BH = 156, 160, 164
    AD = 168
    M = Buf(); S = Buf()
    for s_ in range(P.FB_STEP, SB_CHECK):
        g1step(M, s_, False)
        if s_ == SB_ISSUE:
            M(f's_mov_b32 s6, {FLB}\nbuffer_load_dwordx4 {v(PV,4)}, v1, s[12:15], s6 offen sc1')
    S('v_lshlrev_b32 v4, 3, v2')
    S(f's_mul_i32 s7, s3, 2560\ns_add_u32 s7, s7, {X4}\ns_cmp_eq_u32 s3, 3\ns_cselect_b32 s7, {ZERO+64}, s7\nv_add_u32 v{AD+10}, s7, v4')
    S(f'v_lshlrev_b32 v7, 2, v3\nv_sub_u32 v7, v5, v7')
    S(f'v_mov_b32 v6, {fl(-1e30)}')
    for r in range(4):
        S(f'v_subrev_u32 v{AD}, {r}, v7')
        S(f'v_cmp_gt_u32 vcc, 8, v{AD}\nv_cmp_gt_i32 s[36:37], -8, v{AD}')
        S(f'v_cndmask_b32_e64 v{BC+r}, v6, 0, vcc\nv_cndmask_b32_e64 v{BP+r}, v6, 0, s[36:37]')
    S('v_cmp_gt_i32 s[36:37], -5, v7')
    S('s_cmp_eq_u32 s4, 0\ns_cselect_b64 s[38:39], -1, 0')
    for r in range(4): S(f'v_cndmask_b32_e64 v{BH+r}, v{BP+r}, v6, s[38:39]')
    S(f'v_cmp_eq_u32 vcc, s3, v3')
    S(f'v_add_u32 v{AD+5}, {X4}, v4')
    S(f'v_xor_b32 v{AD}, 64, v{AD+5}')
    S(f'v_lshrrev_b32 v{AD+8}, 2, v2\nv_lshlrev_b32 v{AD+8}, 3, v{AD+8}\ns_lshl_b32 s7, s3, 7\ns_add_u32 s7, s7, {X4+5120}\nv_add_u32 v{AD+8}, s7, v{AD+8}\nv_xor_b32 v{AD+9}, 64, v{AD+8}')
    S(f'v_mov_b32 v6, {ZERO}')
    for T in range(1, 5):
        S(f'v_add_u32 v7, {512*T}, v{AD+5}\nv_cndmask_b32 v{AD+T}, v6, v7, vcc')
    S(f'v_and_b32 v6, 1, v3\nv_mul_u32_u24 v6, 20480, v6\nv_lshrrev_b32 v7, 1, v3\nv_lshl_add_u32 v6, v7, 8, v6\nv_lshl_add_u32 v{AD+11}, v5, 4, v6')
    S(f'v_mul_u32_u24 v7, 20480, v3\nv_lshl_add_u32 v{AD+12}, v5, 4, v7')
    S('v_cmp_eq_u32 s[30:31], 1, v3\nv_cmp_eq_u32 s[32:33], 2, v3\nv_cmp_eq_u32 s[34:35], 3, v3')
    S('s_mul_i32 s60, s5, 7\ns_mul_i32 s7, s5, 6\ns_add_u32 s7, s7, 6\ns_cmp_ge_u32 s5, 6\ns_cselect_b32 s60, s7, s60\ns_cselect_b32 s101, 6, 7')
    for e, (so, vo, sp) in enumerate((('s53', 'v11', 's98'), ('s43', 'v15', 's99'))):
        S(f's_xor_b32 s7, s58, {e}\ns_lshl_b32 {sp}, s3, 1\ns_add_u32 s7, s7, {sp}\ns_add_u32 {sp}, s7, s60')
        S(f's_cmp_lt_u32 s7, s101\ns_cselect_b32 s7, 0, {OOB}')
        S(f'v_add_u32 {vo}, s7, v1\ns_mul_i32 {so}, {sp}, 40960\ns_add_u32 {so}, {so}, {W1_F}')
    S(f's_lshl_b32 s56, s3, 10\ns_mul_i32 s57, s5, {100*1024}\ns_add_u32 s57, s57, s56\ns_mul_i32 s7, s58, 40960\ns_add_u32 s57, s57, s7\ns_add_u32 s57, s57, {WO_F}\ns_mul_i32 s42, s58, 102400')
    merge(A, M, S, budget=2.0)
    A('s_mov_b32 s59, 0')
    chk4(PV)
    A('s_nop 3'); A('s_cbranch_vccz SYB_DONE', IF)
    A.label('SYB', IF)
    Bk = Asm()
    Bk(f's_sleep 4\nbuffer_load_dwordx4 {v(PV,4)}, v1, s[12:15], s6 offen sc1\ns_waitcnt vmcnt(0)')
    A.ins.append(Ins('s_nop 0')); A.ins[-1].kind = 'label'; A.ins[-1].op = '.raw'; A.ins[-1].text = Bk.finish().rstrip('\n')
    chk4(PV)
    A('s_add_u32 s59, s59, 1\ns_cmp_gt_u32 s59, 0x40000'); A('s_cbranch_scc1 SYB_DONE', IF)
    A('s_nop 3'); A('s_cbranch_vccnz SYB', IF)
    A.label('SYB_DONE', IF)
    st()
    M = Buf(); S = Buf()
    S(f's_cmp_eq_u32 s2, 0\ns_cselect_b32 s6, {EPO}, s14\nbuffer_store_dword v14, v10, s[12:15], s6 offen sc1')
    VL = 132
    S(f's_lshl_b32 s6, s3, 10\ns_add_u32 s6, s6, {MODP + 1920*16}')
    for i in range(5):
        S(f'buffer_load_dwordx4 {v(VL+4*i,4)}, v1, s[12:15], s6 offen sc1')
        if i < 4: S('s_add_u32 s6, s6, 4096')
    S('s_lshl_b32 s6, s3, 6\nv_add_u32 v4, s6, v2')
    S(f'v_mov_b32 v6, {(3200-80-1280)*16}\nv_cmp_le_u32 vcc, 80, v4\nv_cndmask_b32 v6, 0, v6, vcc\nv_lshl_add_u32 v6, v4, 4, v6')
    S(f's_mul_i32 s6, s5, {80*16}\ns_add_u32 s6, s6, {MODP + 1280*16}')
    S(f'buffer_load_dwordx4 {v(VL+20,4)}, v6, s[12:15], s6 offen sc1')
    S(f'v_mov_b32 v{PV}, s20\nv_mov_b32 v{PV+1}, s20\nv_lshlrev_b32 v6, 3, v4\nv_add_u32 v6, {VEC}, v6\nds_write_b64 v6, {v(PV,2)} offset:3072')
    S(f'v_lshlrev_b32 v6, 1, v4\nv_add_u32 v6, {VEC}, v6')
    for s_ in range(SB_CHECK, 16): g1step(M, s_, True)
    merge(A, M, S, budget=2.0)
    M = Buf(); S = Buf()
    S('s_cmp_ge_u32 s3, 2\ns_cselect_b64 vcc, -1, 0')
    S('v_and_b32 v4, 3, v2\nv_cmp_eq_u32 s[28:29], 1, v4\nv_cmp_eq_u32 s[62:63], 2, v4\nv_cmp_eq_u32 s[96:97], 3, v4')
    quadsum(S, VL, 6, ['s[28:29]', 's[62:63]', 's[96:97]'])
    for i in range(6):
        modfin(S, VL+4*i, [0, 0, 2, 1, 1, 0][i])
        S(f'ds_write_b16_d16_hi v6, v{VL+4*i} offset:{512*i}')
    S(f's_lshl_b32 s6, s5, 2\ns_add_u32 s6, s6, s3')
    S(f's_mul_i32 s7, s4, {4*20*1024}\ns_add_u32 s7, s7, {O_F}')
    S(f's_lshl_b32 s96, s6, 9\ns_add_u32 s96, s96, s7\ns_add_u32 s97, s96, {2*20480}')
    S(f's_lshr_b32 s95, s6, 1\ns_lshl_b32 s95, s95, 8\ns_and_b32 s6, s6, 1\ns_lshl_b32 s6, s6, 3\ns_add_u32 s95, s95, s6\ns_add_u32 s95, s95, s7\ns_add_u32 s95, s95, {16*1024}')
    S(f's_mov_b32 s20, {fl(20**-0.5 * LOG2E)}')
    for s_ in range(16, 20): g1step(M, s_, True)
    merge(A, M, S, budget=2.0)
    st()
    def bg(B, n=1):
        for _ in range(n):
            if woi[0] < 25: woload(B, 1)
            else: w1load(B, 1)
    def cvt2(B, d, c): B(f'v_cvt_pk_bf16_f32 v{d}, v{c}, v{c+1}\nv_cvt_pk_bf16_f32 v{d+1}, v{c+2}, v{c+3}')
    def spread4(B, q, t):
        B(f'v_mov_b32 v{t}, v{q}\nv_permlane16_swap_b32 v{q}, v{t}\nv_mov_b32 v{t+1}, v{q}\nv_mov_b32 v{t+2}, v{t}')
        B(f'v_permlane32_swap_b32 v{q}, v{t+1}\nv_permlane32_swap_b32 v{t}, v{t+2}')
    for T in range(5):
        cvt2(A, acc4(T), acc4(T))
        A(f'ds_write_b64 v{AD+10}, {v(acc4(T),2)} offset:{512*T}')
    for T in range(5): cvt2(A, KF+T*4, accK(T))
    w1load(A, 2)
    A('s_waitcnt lgkmcnt(0)\ns_barrier')
    X = Buf()
    vpos = {0: 0, 1: 2, 2: 4, 3: 8, 4: 10}
    for T in range(1, 5):
        X(f'ds_read_b64 {v(QF+(T-1)*4+2,2)}, v{AD+T}')
        if T == 1: X(f'ds_read_b64 {v(KF+2,2)}, v{AD+5} offset:2560')
        if T == 3: X(f'ds_read_b64 {v(KF+22,2)}, v{AD} offset:2560')
        X(f'ds_read_b64 {v(KF+T*4+2,2)}, v{AD+5} offset:{2560+512*T}')
    for T in range(5): X(f'ds_read_b64_tr_b16 {v(V4+vpos[T],2)}, v{AD+8} offset:{512*T}')
    X(f'ds_read_b64_tr_b16 {v(V4+6,2)}, v{AD+9}')
    for T in range(1, 5): cvt2(X, QF+(T-1)*4, accQ(T))
    for d in range(2): X(f'v_mov_b32_dpp v{KF+20+d}, v{KF+d} row_ror:8 row_mask:0xf bank_mask:0xf')
    SC, SP = 16, 32
    prevK = {1: 0, 2: 1, 3: 5, 4: 3}
    M = Buf(); S = Buf()
    for T in range(1, 5):
        q = v(QF+(T-1)*4, 4)
        M(f'{MF} {v(SC+(T-1)*4,4)}, {v(KF+T*4,4)}, {q}, {v(BC,4)}')
        M(f'{MF} {v(SP+(T-1)*4,4)}, {v(KF+prevK[T]*4,4)}, {q}, {v(BH if T in (1,3) else BP,4)}')
    for T in range(5): cvt2(S, VS+vpos[T], accV(T))
    for d in range(2): S(f'v_mov_b32 v{VS+6+d}, v{VS+d}\nv_mov_b32 v{AD+6+d}, v{VS+d}')
    for d in range(2): S(f'v_permlane32_swap_b32 v{VS+6+d}, v{AD+6+d}')
    merge(X, M, S, budget=2.0)
    MX, M2 = 48, 52
    for t in range(4):
        for r in range(4): X(f'v_max_f32 v{SC+4*t+r}, v{SC+4*t+r}, v{SP+4*t+r}')
        X(f'v_max3_f32 v{MX+t}, v{SC+4*t}, v{SC+4*t+1}, v{SC+4*t+2}\nv_max_f32 v{MX+t}, v{MX+t}, v{SC+4*t+3}')
    for k in range(4): X(f'v_mov_b32 v{124+k}, s100')
    X(f'v_permlane32_swap_b32 v{MX}, v{MX+1}\nv_permlane32_swap_b32 v{MX+2}, v{MX+3}')
    X(f'v_max_f32 v{MX}, v{MX}, v{MX+1}\nv_max_f32 v{MX+2}, v{MX+2}, v{MX+3}')
    X(f'v_permlane16_swap_b32 v{MX}, v{MX+2}\nv_max_f32 v{MX}, v{MX}, v{MX+2}\nv_mul_f32 v{MX}, s20, v{MX}')
    spread4(X, MX, M2)
    mxr = [MX, M2+1, M2, M2+2]
    PF = 56
    OM, O4, OS = 72, 92, 108
    win = {0: 0, 1: 2, 2: 6, 3: 8}
    for t in range(4):
        for r in range(4): X(f'v_fma_f32 v{SC+4*t+r}, v{SC+4*t+r}, s20, -v{mxr[t]}')
    for t in range(4):
        for r in range(4): X(f'v_exp_f32 v{SC+4*t+r}, v{SC+4*t+r}')
        if t > 0:
            u = t - 1
            for d in range(2):
                X(f'v_cndmask_b32_e64 v{PF+4*u+d}, 0, v{SP+2*u+d}, s[36:37]\nv_cndmask_b32_e64 v{PF+4*u+2+d}, v{SP+2*u+d}, 0, s[36:37]')
        cvt2(X, SP+2*t, SC+4*t)
        if t > 0:
            X(f'{MF} {v(OS+4*u,4)}, v[124:127], {v(PF+4*u,4)}, 0\n{MF} {v(OM+4*u,4)}, {v(VS+win[u],4)}, {v(PF+4*u,4)}, 0')
    u = 3
    for d in range(2):
        X(f'v_cndmask_b32_e64 v{PF+4*u+d}, 0, v{SP+2*u+d}, s[36:37]\nv_cndmask_b32_e64 v{PF+4*u+2+d}, v{SP+2*u+d}, 0, s[36:37]')
    X(f'v_rcp_f32 v{MX}, v{OS}\nv_rcp_f32 v{MX+1}, v{OS+4}')
    X(f'{MF} {v(OS+4*u,4)}, v[124:127], {v(PF+4*u,4)}, 0\n{MF} {v(OM+4*u,4)}, {v(VS+win[u],4)}, {v(PF+4*u,4)}, 0')
    M = Buf(); S = Buf()
    for t in range(4): M(f'{MF} {v(O4+4*t,4)}, {v(V4+win[t],4)}, {v(PF+4*t,4)}, 0')
    for t in range(2):
        for r in range(4): S(f'v_mul_f32 v{OM+4*t+r}, v{OM+4*t+r}, v{MX+t}')
    merge(X, M, S, budget=2.0)
    cvt2(X, 32, OM); cvt2(X, 34, OM+4)
    X(f'v_rcp_f32 v{MX+2}, v{OS+8}\nv_rcp_f32 v{MX+3}, v{OS+12}')
    X(f'v_permlane16_swap_b32 v32, v34\nv_permlane16_swap_b32 v33, v35')
    X(f'buffer_store_dwordx4 v[32:35], v{AD+11}, s[12:15], s96 offen sc1', tag='o')
    for t in range(2, 4):
        for r in range(4): X(f'v_mul_f32 v{OM+4*t+r}, v{OM+4*t+r}, v{MX+t}')
    cvt2(X, 36, OM+8); cvt2(X, 38, OM+12)
    for t in range(1, 4): X(f'v_cndmask_b32_e64 v{MX}, v{MX}, v{MX+t}, s[{28+2*t}:{29+2*t}]')
    X(f'v_permlane16_swap_b32 v36, v38\nv_permlane16_swap_b32 v37, v39')
    X(f'buffer_store_dwordx4 v[36:39], v{AD+11}, s[12:15], s97 offen sc1', tag='o')
    for t in range(1, 4):
        for r in range(4): X(f'v_cndmask_b32_e64 v{O4+r}, v{O4+r}, v{O4+4*t+r}, s[{28+2*t}:{29+2*t}]')
    for r in range(4): X(f'v_mul_f32 v{O4+r}, v{O4+r}, v{MX}')
    cvt2(X, O4, O4)
    X(f'buffer_store_dwordx2 v[{O4}:{O4+1}], v{AD+12}, s[12:15], s95 offen sc1', tag='o')
    timed(A, X, bg, P.IV - 15, stop_before=250, first=10)
    st()
    def publish(ph, tag):
        A.wait_tag(tag); A('s_barrier')
        A(f's_add_u32 s6, s52, {4096*ph}\nbuffer_store_dword v14, v10, s[12:15], s6 offen sc1')
    def poll_issue(ph):
        A('s_waitcnt lgkmcnt(0)\ns_cmp_lg_u32 s3, 0'); A(f's_cbranch_scc1 PI{ph}', IF)
        A(f's_load_dwordx8 s[28:35], s[54:55], {4096*ph} glc', tag='touch')
        A.label(f'PI{ph}', IF)
    def acquire(ph, issued=False):
        if not issued: poll_issue(ph)
        A('s_waitcnt lgkmcnt(0)\ns_mov_b32 s59, 0\ns_cmp_lg_u32 s3, 0'); A(f's_cbranch_scc1 ACQ{ph}_DONE', IF)
        A.label(f'ACQ{ph}', IF)
        for k in range(8): A(f's_xor_b32 s{28+k}, s{28+k}, s94')
        A('s_or_b64 s[28:29], s[28:29], s[30:31]\ns_or_b64 s[32:33], s[32:33], s[34:35]\ns_or_b64 s[28:29], s[28:29], s[32:33]')
        A(f's_cbranch_scc0 ACQ{ph}_DONE', IF)
        A(f's_load_dwordx8 s[28:35], s[54:55], {4096*ph} glc')
        A('s_waitcnt lgkmcnt(0)')
        A('s_add_u32 s59, s59, 1\ns_cmp_lt_u32 s59, 0x40000'); A(f's_cbranch_scc1 ACQ{ph}', IF)
        A.label(f'ACQ{ph}_DONE', IF)
        A('s_barrier')
    bg(A, P.N_OACK)
    OF, WB, ACC, RG, RA, RB, RX = 16, 96, 132, 152, 162, 172, 182
    NB = 9
    A('s_lshl_b32 s6, s4, 6\ns_and_b32 s7, s3, 1\ns_lshl_b32 s7, s7, 5\ns_add_u32 s6, s6, s7\ns_lshr_b32 s7, s3, 1\ns_add_u32 s6, s6, s7')
    A('s_mul_i32 s6, s6, 1280\ns_mul_i32 s7, s5, 160\ns_add_u32 s26, s6, s7')
    A('v_mul_u32_u24 v6, 2560, v5\nv_lshl_add_u32 v7, v3, 3, v6\nv_lshl_add_u32 v6, v3, 4, v6')
    A('v_lshlrev_b32 v8, 4, v3\nv_lshlrev_b32 v9, 3, v3')
    def ld10(B, d, va, vb, sr, so, off=0):
        B(f'buffer_load_dwordx4 v[{d}:{d+3}], {va}, {sr}, {so} offen offset:{off}\nbuffer_load_dwordx4 v[{d+4}:{d+7}], {va}, {sr}, {so} offen offset:{off+64}\nbuffer_load_dwordx2 v[{d+8}:{d+9}], {vb}, {sr}, {so} offen offset:{off+128}')
    def lv10(B, d, va, vb, off):
        B(f'ds_read_b128 {v(d,4)}, {va} offset:{off}\nds_read_b128 {v(d+4,4)}, {va} offset:{off+64}\nds_read_b64 {v(d+8,2)}, {vb} offset:{off+128}')
    A(f'v_add_u32 v12, {VEC}, v8\nv_add_u32 v13, {VEC}, v9')
    lv10(A, RG, 'v12', 'v13', 2560)
    A('v_add_u32 v12, s7, v12\nv_add_u32 v13, s7, v13')
    lv10(A, RB, 'v12', 'v13', 0)
    lv10(A, RA, 'v12', 'v13', 1280)
    A(f's_lshl_b32 s24, s4, 2\ns_add_u32 s24, s24, s3\ns_mul_i32 s24, s24, 20480\ns_add_u32 s25, s24, {Z_F}\ns_add_u32 s24, s24, {O_F}')
    A('s_lshl_b32 s6, s58, 13\ns_add_u32 s24, s24, s6\ns_mul_i32 s27, s58, 20480')
    A(f'v_add_u32 v4, {WOL}, v1')
    publish(0, 'o')
    assert woi[0] == 25
    ld10(A, RX, 'v6', 'v7', 's[8:11]', 's26')
    bg(A, P.N_OFLY)
    A.wait_tag('wo')
    acquire(0)
    st()
    M = Buf(); S = Buf()
    def oload(B, s_):
        B(f'buffer_load_dwordx4 {v(OF+4*s_,4)}, v1, s[12:15], s24 offen offset:{1024*(s_%4)} sc1')
        if s_ % 4 == 3: B('s_add_u32 s24, s24, 4096')
        if s_ == 11: B('s_sub_u32 s24, s24, s27')
    for s_ in range(11): oload(A, s_)
    items = [(s_, t) for s_ in range(20) for t in range(5)]
    def rd(B, k):
        d = WB + (k % NB)*4
        B(f'ds_read_b128 v[{d}:{d+3}], ' + (f'v4 offset:{k*1024}' if k < 36 else f'v1 offset:{(k-36)*1024}'))
    for k in range(NB-1): rd(A, k)
    for k, (s_, t) in enumerate(items):
        M(f'{MF} {v(ACC+4*t,4)}, {v(WB+(k%NB)*4,4)}, {v(OF+4*s_,4)}, {v(ACC+4*t,4) if s_ else "0"}')
        if k + NB - 1 < 100: rd(M, k + NB - 1)
        if t == 0:
            if s_ + 11 < 20: oload(M, s_ + 11)
            elif s_ < 17: w1load(M, 1)
    XU, GU, AU, BU = 16, 36, 56, 76
    for d in range(10): unpack(S, XU+2*d, RX+d)
    for d in range(10): unpack(S, GU+2*d, RG+d)
    S('s_lshl_b32 s6, s5, 11\ns_add_u32 s6, s6, s25')
    S(f's_lshr_b32 s95, s5, 1\ns_lshl_b32 s95, s95, 10\ns_add_u32 s95, s95, s25\ns_and_b32 s96, s5, 1\ns_lshl_b32 s96, s96, 3\ns_add_u32 s95, s95, s96\ns_add_u32 s95, s95, {16*1024}')
    merge(A, M, S, budget=2.0, start=52)
    for d in range(10): unpack(A, AU+2*d, RA+d)
    st()
    ZU = 96
    for d in range(10): A(f'v_pk_fma_f32 {pr(XU+2*d)}, {pr(ACC+2*d)}, {pr(GU+2*d)}, {pr(XU+2*d)}')
    for d in range(10): A(f'v_pk_mul_f32 {pr(ZU+2*d)}, {pr(XU+2*d)}, {pr(AU+2*d)}')
    ZP = 116
    for d in range(10): A(f'v_cvt_pk_bf16_f32 v{ZP+d}, v{ZU+2*d}, v{ZU+2*d+1}')
    A(f'buffer_store_dwordx4 v[{ZP}:{ZP+3}], v1, s[12:15], s6 offen sc1\nbuffer_store_dwordx4 v[{ZP+4}:{ZP+7}], v1, s[12:15], s6 offen offset:1024 sc1', tag='z')
    A(f'buffer_store_dwordx2 v[{ZP+8}:{ZP+9}], v1, s[12:15], s95 offen sc1', tag='z')
    for d in range(10): unpack(A, BU+2*d, RB+d)
    SS = 132
    for d in range(10):
        x_, z_, a_, b_ = pr(XU+2*d), pr(ZU+2*d), pr(AU+2*d), pr(BU+2*d)
        if d == 0:
            A(f'v_pk_add_f32 {pr(SS)}, {x_}, {pr(XU+2)}\nv_pk_mul_f32 {pr(SS+2)}, {x_}, {x_}\nv_pk_add_f32 {pr(SS+4)}, {z_}, {pr(ZU+2)}')
            A(f'v_pk_mul_f32 {pr(SS+6)}, {z_}, {a_}\nv_pk_mul_f32 {pr(SS+8)}, {z_}, {z_}\nv_pk_mul_f32 {pr(SS+10)}, {z_}, {b_}')
        else:
            if d > 1: A(f'v_pk_add_f32 {pr(SS)}, {pr(SS)}, {x_}')
            A(f'v_pk_fma_f32 {pr(SS+2)}, {x_}, {x_}, {pr(SS+2)}')
            if d > 1: A(f'v_pk_add_f32 {pr(SS+4)}, {pr(SS+4)}, {z_}')
            A(f'v_pk_fma_f32 {pr(SS+6)}, {z_}, {a_}, {pr(SS+6)}\nv_pk_fma_f32 {pr(SS+8)}, {z_}, {z_}, {pr(SS+8)}\nv_pk_fma_f32 {pr(SS+10)}, {z_}, {b_}, {pr(SS+10)}')
    for k in range(6): A(f'v_add_f32 v{144+k}, v{SS+2*k}, v{SS+2*k+1}')
    A(f's_lshl_b32 s6, s4, 2\ns_add_u32 s6, s6, s3\ns_lshl_b32 s57, s6, 12\ns_add_u32 s57, s57, {STB}\ns_lshl_b32 s27, s5, 9\ns_add_u32 s27, s27, s57')
    for k in range(3): A(f'v_permlane32_swap_b32 v{144+2*k}, v{145+2*k}')
    A('v_add_f32 v144, v144, v145\nv_add_f32 v146, v146, v147\nv_add_f32 v145, v148, v149\nv_add_f32 v147, v148, v149\nv_lshlrev_b32 v150, 3, v2')
    A('v_permlane16_swap_b32 v144, v146\nv_permlane16_swap_b32 v145, v147\nv_add_f32 v144, v144, v146\nv_add_f32 v145, v145, v147')
    A('buffer_store_dwordx2 v[144:145], v150, s[12:15], s27 offen sc1', tag='z')
    st()
    print('w1 issued before U:', w1i[0], file=sys.stderr)
    w1load(A, P.N_ZACK)
    assert w1i[0] >= 40
    for d in range(10): A(f'v_cvt_pk_bf16_f32 v{RX+d}, v{XU+2*d}, v{XU+2*d+1}')
    MFR = 16
    A('v_and_b32 v12, 3, v2')
    A(f'v_mov_b32 v13, {VEC+3072}\nv_cmp_eq_u32 vcc, 0, v12\nv_mov_b32 v4, {VEC+1280}\nv_cndmask_b32 v13, v13, v4, vcc')
    A(f'v_cmp_eq_u32 vcc, 1, v12\nv_mov_b32 v4, {VEC}\nv_cndmask_b32 v13, v13, v4, vcc')
    A('v_add_u32 v12, v13, v8\nv_add_u32 v13, v13, v9')
    B1R = 96
    for s_ in range(16): A(f'ds_read_b128 {v(MFR+4*s_,4)}, v12 offset:{160*(s_>>1)+64*(s_&1)}')
    for s_ in range(16, 20):
        for h in range(2): A(f'ds_read_b64 {v(MFR+4*s_+2*h,2)}, v13 offset:{320*(s_-16)+160*h+128}')
    UA, GA = 100, 116
    def umf(B, s_, t): B(f'{MF} {v(UA+4*t,4)}, {v(MFR+4*s_,4)}, {R(wreg(s_,t),4)}, {v(UA+4*t,4) if s_ else "0"}')
    for s_ in range(P.U0):
        for t in range(2): umf(A, s_, t)
    publish(1, 'z')
    A('v_lshlrev_b32 v4, 1, v5\ns_lshl_b32 s6, s98, 6\ns_lshl_b32 s27, s99, 6')
    for t in range(4): A(f'v_mov_b32 v{B1R+t}, 0')
    for t in range(4): A(f'buffer_load_short_d16_hi v{B1R+t}, v4, s[44:47], s{6 if t < 2 else 27} offen offset:{32*(t&1)}')
    W2L = 90112
    A('s_mul_i32 s60, s3, 14\ns_cmp_eq_u32 s3, 3\ns_cselect_b32 s60, 41, s60\ns_mul_i32 s6, s58, 7\ns_add_u32 s60, s60, s6')
    A(f's_mul_i32 s24, s5, 54\ns_add_u32 s24, s24, s60\ns_mul_i32 s24, s24, 5120\ns_add_u32 s24, s24, {W2_F}')
    A(f's_mul_i32 s27, s3, 15360\ns_add_u32 s27, s27, {W2L}')
    sti = [0]
    def w2stage(B, n=1):
        for _ in range(n):
            i = sti[0]
            if i >= 15: return
            sti[0] += 1
            B(f's_add_u32 m0, s27, {(i//4)*4096}\nbuffer_load_dwordx4 v1, s[12:15], s24 offen offset:{(i%4)*1024} sc1 lds', tag='w2l')
            if i % 4 == 3: B('s_add_u32 s24, s24, 4096')
            if i == 14: B('s_add_u32 s24, s24, 3072')
    def bg2(B):
        if w1i[0] < 80: w1load(B, 1)
        else: w2stage(B)
    M = Buf()
    for s_ in range(P.U0, 20):
        for t in range(2): umf(M, s_, t)
    for s_ in range(20): M(f'{MF} {v(GA,4)}, {v(MFR+4*s_,4)}, {v(MFR+4*s_,4)}, {v(GA,4) if s_ else "0"}')
    timed(A, M, bg2, 40, first=0)
    w1load(A, 80)
    A(f's_mul_i32 s25, s4, {4*20480}\ns_add_u32 s25, s25, {Z_F}')
    A('s_and_b32 s6, s3, 1\ns_mul_i32 s6, s6, 20480\ns_lshr_b32 s43, s3, 1')
    poll_issue(1)
    for s_ in range(P.U1):
        for t in range(2, 4): umf(A, s_, t)
    st()
    acquire(1, issued=True)
    st()
    def zdma(B, base, n, tag):
        for i in range(n):
            pre = f's_add_u32 m0, s{base}, {(i//4)*4096}\ns_add_u32 s95, s25, m0\n'
            B(pre + f'buffer_load_dwordx4 v1, s[12:15], s95 offen offset:{(i%4)*1024} sc1 lds', tag=tag)
    A('s_lshl_b32 s53, s43, 12\ns_add_u32 s53, s53, s6'); zdma(A, 53, 4, 'z0')
    A('s_mul_i32 s53, s43, 6144\ns_add_u32 s53, s53, s6\ns_add_u32 s53, s53, 8192'); zdma(A, 53, 6, 'z1')
    for s_ in range(P.U1, 20):
        for t in range(2, 4): umf(A, s_, t)
    UF = 16
    for r in range(3): A(f'v_mul_f32 v{GA+r}, s21, v{GA+r}')
    for t in range(4):
        u = UA + 4*t; d = UF + 4*t
        A(f'v_cvt_pk_bf16_f32 v{d}, v{u}, v{u+1}\nv_cvt_pk_bf16_f32 v{d+1}, v{u+2}, v{B1R+t}')
        A(f'v_lshlrev_b32 v120, 16, v{d}\nv_and_b32 v121, 0xffff0000, v{d}\nv_lshlrev_b32 v122, 16, v{d+1}')
        A(f'v_sub_f32 v120, v{u}, v120\nv_sub_f32 v121, v{u+1}, v121\nv_sub_f32 v122, v{u+2}, v122')
        A(f'v_cvt_pk_bf16_f32 v{d+2}, v120, v121\nv_cvt_pk_bf16_f32 v{d+3}, v122, 0')
    A(f'v_readlane_b32 s36, v{GA}, 0\nv_readlane_b32 s37, v{GA+1}, 0\nv_readlane_b32 s38, v{GA+2}, 0\nv_readlane_b32 s39, v{GA+1}, 1\nv_readlane_b32 s42, v{GA+2}, 1')
    CF, KC, ACC, ZR = 32, 48, 64, 128
    SL = 96
    A('v_lshlrev_b32 v12, 3, v2')
    A('v_add_u32 v4, 0x10000, v1')
    def zrd(B, half, s_, e):
        idx = (2*half + e)*20 + s_; d = ZR + (s_ % 3)*8 + 4*e
        B(f'ds_read_b128 {v(d,4)}, {"v1" if idx < 64 else "v4"} offset:{(idx % 64)*1024}')
    def gstep(B, half, s_):
        for e in range(2):
            for t in range(4):
                acc = ACC + ((2*half + e)*4 + t)*4
                B(f'{MF} {v(acc,4)}, {R(wreg(s_,t),4)}, {v(ZR+(s_%3)*8+4*e,4)}, {v(acc,4) if s_ else "0"}')
                if t == 1 and s_ + 2 < 20: zrd(B, half, s_+2, e)
    A.wait_tag('z0'); A('s_barrier')
    st()
    for s_ in range(2):
        for e in range(2): zrd(A, 0, s_, e)
    M = Buf()
    for s_ in range(6): gstep(M, 0, s_)
    L = Buf()
    for j in range(8): L(f'buffer_load_dwordx2 {v(SL+2*j,2)}, v12, s[12:15], s57 offen offset:{512*j} sc1')
    L('s_mul_i32 s53, s43, 10240\ns_add_u32 s53, s53, s6\ns_add_u32 s53, s53, 40960')
    pace(A, M, L, 4)
    A.wait_tag('z1'); A('s_barrier')
    M = Buf(); S = Buf(); L = Buf()
    for s_ in range(6, 20): gstep(M, 0, s_)
    zdma(L, 53, 10, 'z2')
    w2stage(L, 15)
    M2_ = Buf(); pace(M2_, M, L, 5)
    for stp in (4, 2, 1):
        for j in range(stp):
            for k in range(2): S(f'v_add_f32 v{SL+2*j+k}, v{SL+2*j+k}, v{SL+2*(j+stp)+k}')
    S(f'v_mul_f32 v{SL}, s21, v{SL}\nv_mul_f32 v{SL+1}, s21, v{SL+1}')
    q = SL + 8
    spread4(S, SL, SL+2)
    S(f'v_mov_b32 v{q+5}, v{SL+1}\nv_mov_b32 v{q}, v{SL}\nv_mov_b32 v{q+1}, v{SL+3}\nv_permlane32_swap_b32 v{SL+1}, v{q+5}')
    S(f'v_mov_b32 v{q+2}, v{SL+2}\nv_mov_b32 v{q+3}, v{SL+4}\nv_mov_b32 v{q+4}, v{SL+1}')
    t = SL
    S(f'v_fma_f32 v{q+1}, -v{q}, v{q}, v{q+1}\nv_max_f32 v{q+1}, 0, v{q+1}\nv_add_f32 v{q+1}, s22, v{q+1}\nv_rsq_f32 v{t}, v{q+1}')
    S(f'v_fma_f32 v{q+2}, -v{q}, s38, v{q+2}')
    S(f'v_fma_f32 v{q+5}, -v{q}, s37, v{q+5}')
    S(f'v_mul_f32 v{t+1}, s36, v{q}\nv_fma_f32 v{t+1}, v{q+3}, -2.0, v{t+1}\nv_fma_f32 v{q+4}, v{q}, v{t+1}, v{q+4}')
    S(f'v_mul_f32 v{q+1}, v{q+1}, v{t}')
    S(f'v_fma_f32 v{q+2}, v{t}, v{q+2}, s42')
    S(f'v_mul_f32 v{q+4}, v{q+4}, v{t}\nv_fma_f32 v{q+4}, v{q+5}, 2.0, v{q+4}\nv_fma_f32 v{q+4}, v{q+4}, v{t}, s39')
    S(f'v_fma_f32 v{q+4}, -v{q+2}, v{q+2}, v{q+4}\nv_max_f32 v{q+4}, 0, v{q+4}\nv_add_f32 v{q+4}, s22, v{q+4}\nv_rsq_f32 v{t+1}, v{q+4}')
    S(f'v_sub_f32 v{q}, 0, v{q}')
    S(f'v_mul_f32_e64 v{q+2}, -v{q+2}, v{q+1}')
    S(f'v_mul_f32 v{q+4}, v{q+4}, v{t+1}\nv_mul_f32 v{q+3}, v{q+4}, v{q+1}')
    S(f'v_mul_f32 v{t}, v{t}, v{t+1}')
    c0 = -2*0.7978845608028654*LOG2E
    k_ = SL + 4
    S(f'v_mul_f32 v{k_}, {fl(c0)}, v{t}\nv_mul_f32 v{k_+1}, v{t}, v{t}\nv_mul_f32 v{k_+1}, v{k_+1}, v{k_}\nv_mul_f32 v{k_+1}, {fl(0.044715)}, v{k_+1}\nv_mov_b32 v{k_+2}, v{q+3}\nv_mov_b32 v{k_+3}, 0')
    h_ = SL + 16
    S(f'v_cvt_pk_bf16_f32 v{h_}, v{q}, v{q+1}\nv_cvt_pk_bf16_f32 v{h_+1}, v{q+2}, v{q+3}')
    unpack(S, h_+4, h_); unpack(S, h_+6, h_+1)
    for k in range(4): S(f'v_sub_f32 v{h_+4+k}, v{q+k}, v{h_+4+k}')
    S(f'v_cvt_pk_bf16_f32 v{h_+2}, v{h_+4}, v{h_+5}\nv_cvt_pk_bf16_f32 v{h_+3}, v{h_+6}, v{h_+7}')
    f_ = SL + 24
    S('v_cmp_eq_u32 vcc, 0, v3\nv_cmp_eq_u32 s[28:29], 1, v3')
    S(f'v_cndmask_b32_e64 v{f_}, 0, v{h_+2}, s[28:29]\nv_cndmask_b32_e64 v{f_+1}, 0, v{h_+3}, s[28:29]')
    S(f'v_cndmask_b32 v{f_}, v{f_}, v{h_}, vcc\nv_cndmask_b32 v{f_+1}, v{f_+1}, v{h_+1}, vcc')
    S(f'v_cndmask_b32 v{f_+2}, 0, v{h_}, vcc\nv_cndmask_b32 v{f_+3}, 0, v{h_+1}, vcc')
    CFX = 81920
    S(f's_lshl_b32 s30, s3, 10\ns_add_u32 s30, s30, {CFX}\nv_add_u32 v12, s30, v1')
    S(f'ds_write_b128 v12, {v(f_,4)}\nds_write_b128 v12, {v(k_,4)} offset:4096')
    S(f's_mul_i32 s30, s4, {54*4096}\ns_add_u32 s30, s30, {HID}\ns_lshl_b32 s56, s98, 12\ns_add_u32 s56, s56, s30\ns_lshl_b32 s57, s99, 12\ns_add_u32 s57, s57, s30')
    S(f's_cmp_ge_u32 s3, 2\ns_cselect_b32 s31, {OOB}, 0\ns_mul_i32 s30, s31, s58\ns_sub_u32 s31, s31, s30\nv_add_u32 v13, s31, v1\nv_add_u32 v0, s30, v1')
    S(f's_mul_i32 s96, s58, {14*5120}\ns_mul_i32 s97, s58, {14*4096}')
    merge(A, M2_, S, budget=2.0, start=12)
    st()
    A.wait_tag('z2'); A('s_waitcnt lgkmcnt(0)\ns_barrier')
    for T in range(2): A(f'ds_read_b128 {v(CF+4*T,4)}, v4 offset:{CFX-65536+1024*T}')
    for s_ in range(2):
        for e in range(2): zrd(A, 1, s_, e)
    for T in range(4): A(f'ds_read_b128 {v(KC+4*T,4)}, v4 offset:{CFX-65536+4096+1024*T}')
    for T in range(2, 4): A(f'ds_read_b128 {v(CF+4*T,4)}, v4 offset:{CFX-65536+1024*T}')
    def corr(B, T):
        for t in range(4):
            acc = ACC + (T*4 + t)*4
            B(f'{MF} {v(acc,4)}, {v(UF+4*t,4)}, {v(CF+4*T,4)}, {v(acc,4)}')
    G = 152
    def gelu(B, T, e, pk, tag):
        b = ACC + (T*4 + 2*e)*4; g_ = G + ((T*2+e) & 1)*8; k = KC + 4*T
        if pk:
            for d in range(4): B(f'v_pk_mul_f32 {pr(g_+2*d)}, {pr(b+2*d)}, {pr(b+2*d)}')
            for d in range(4): B(f'v_pk_fma_f32 {pr(g_+2*d)}, {pr(g_+2*d)}, {pr(k)}, {pr(k)} op_sel:[0,1,0] op_sel_hi:[1,1,0]')
            for d in range(4): B(f'v_pk_mul_f32 {pr(g_+2*d)}, {pr(g_+2*d)}, {pr(b+2*d)}')
        else:
            for d in range(8): B(f'v_mul_f32 v{g_+d}, v{b+d}, v{b+d}')
            for d in range(8): B(f'v_fma_f32 v{g_+d}, v{g_+d}, v{k+1}, v{k}')
            for d in range(8): B(f'v_mul_f32 v{g_+d}, v{g_+d}, v{b+d}')
        for d in range(8): B(f'v_exp_f32 v{g_+d}, v{g_+d}')
        if pk:
            for d in range(4): B(f'v_pk_fma_f32 {pr(g_+2*d)}, {pr(g_+2*d)}, {pr(k+2)}, {pr(k+2)} op_sel_hi:[1,0,0]')
        else:
            for d in range(8): B(f'v_fma_f32 v{g_+d}, v{g_+d}, v{k+2}, v{k+2}')
        for d in range(8): B(f'v_rcp_f32 v{g_+d}, v{g_+d}')
        if pk:
            for d in range(4): B(f'v_pk_mul_f32 {pr(g_+2*d)}, {pr(g_+2*d)}, {pr(b+2*d)}')
        else:
            for d in range(8): B(f'v_mul_f32 v{g_+d}, v{g_+d}, v{b+d}')
        for d in range(4): B(f'v_cvt_pk_bf16_f32 v{b+d}, v{g_+2*d}, v{g_+2*d+1}')
        B(f'buffer_store_dwordx4 {v(b,4)}, {"v15" if e else "v11"}, s[12:15], s{56+e} offen offset:{1024*T} sc1', tag=tag)
    def voff(k): return 'v13' if k == 13 else ('v0' if k == 6 else 'v1')
    w2i = [0]
    def w2load(B, n, limit=55):
        for _ in range(n):
            i = w2i[0]
            if i >= min(55, limit): return
            w2i[0] += 1
            B(f'buffer_load_dwordx4 {a(4*i,4)}, {voff(3 + i//5)}, s[12:15], s24 offen offset:{(i%4)*1024} sc1')
            if i % 4 == 3: B('s_add_u32 s24, s24, 4096')
            if i == 19: B('s_sub_u32 s24, s24, s96')
    M = Buf(); S = Buf()
    corr(M, 0); corr(M, 1)
    for s_ in range(20):
        Gs = Buf(); gstep(Gs, 1, s_)
        n = 0
        for line, tag in Gs.l:
            M(line, tag)
            if line.startswith('v_mfma'):
                n += 1
                if n in (4, 8) and s_ > 0: w2load(M, 1, 4*s_)
    corr(M, 2); corr(M, 3)
    for T in range(2):
        for e in range(2): gelu(S, T, e, False, 'hA')
    merge(A, M, S, budget=P.GB, start=6)
    st()
    X = Buf()
    gelu(X, 2, 0, True, 'hB'); gelu(X, 2, 1, True, 'hB')
    timed(A, X, lambda B: w2load(B, 1), P.IV)
    publish(2, 'hA')
    X = Buf()
    gelu(X, 3, 0, True, 'hB'); gelu(X, 3, 1, True, 'hB')
    timed(A, X, lambda B: w2load(B, 1), P.IV, stop_before=200)
    st()
    w2load(A, 55)
    ACC = 16; GR, BR = 160, 170
    ld10(A, BR, 'v8', 'v9', 's[48:51]', 's7')
    A(f'v_add_u32 v12, {VEC}, v8\nv_add_u32 v4, {VEC}, v9')
    lv10(A, GR, 'v12', 'v4', 2560+160)
    A(f's_mul_i32 s25, s4, 54\ns_add_u32 s25, s25, s60\ns_lshl_b32 s25, s25, 12\ns_add_u32 s25, s25, {HID}\ns_mov_b32 s23, s25')
    A(f'v_add_u32 v12, s27, v1')
    def w2reg(k, t):
        if k >= 3: return 256 + ((k-3)*5 + t)*4
        i = k*5 + t
        return 256 + 220 + i*4 if i < 9 else 136 + (i-9)*4
    A.wait_tag('w2l')
    for i in range(15): A(f'ds_read_b128 {R(w2reg(i//5, i%5),4)}, v12 offset:{1024*i}')
    A('s_mul_i32 s6, s3, 5120\nv_add_u32 v12, s6, v1\nv_add_u32 v4, 40960, v12\ns_mul_i32 s6, s3, 20480\nv_add_u32 v11, s6, v1')
    poll_issue(2)
    publish(3, 'hB')
    acquire(2, issued=True)
    st()
    NH = 26
    def hreg(half, k, e):
        i = (half*28 + k*2 + e) % NH
        return 192 + 4*i if i < 16 else 96 + 4*(i-16)
    KT = 11
    order = [(0, k, e) for k in range(14) for e in range(2)] + [(1, k, e) for k in range(14) for e in range(2)]
    hi_ = [0]; done = [0]
    def hload(B, n, allowB):
        for _ in range(n):
            if hi_[0] >= 56 or hi_[0] >= done[0] + NH: return
            half, k, e = order[hi_[0]]
            if half and not allowB: return
            hi_[0] += 1
            so = 's23' if half else 's25'
            B(f'buffer_load_dwordx4 {v(hreg(half,k,e),4)}, {voff(k)}, s[12:15], {so} offen offset:{2048*half + 1024*e} sc1')
            if e:
                B(f's_add_u32 {so}, {so}, 4096')
                if k == 6: B(f's_sub_u32 {so}, {so}, s97')
    hload(A, 11, False)
    def mm4(half, k, t, e):
        acc = ACC + ((2*half+e)*5 + t)*4
        A(f'{MF} {v(acc,4)}, {R(w2reg(k,t),4)}, {v(hreg(half,k,e),4)}, {v(acc,4) if k else "0"}')
    def redw(T, t): A(f'ds_write_b128 {"v12" if T < 2 else "v4"}, {v(ACC+(T*5+t)*4,4)} offset:{(T%2)*20480 + t*1024}')
    for k in range(14):
        for e in range(2):
            for t in range(5): mm4(0, k, t, e)
            done[0] += 1
            hload(A, 1, k > P.HB_CHECK)
        if k == P.HB_ISSUE: poll_issue(3)
        if k == P.HB_CHECK: acquire(3, issued=True); st(); hload(A, 4, True)
    wq = [(T, t) for T in range(2) for t in range(5)]
    for k in range(KT):
        for e in range(2):
            for t in range(5): mm4(1, k, t, e)
            done[0] += 1
            hload(A, 1, True)
        if k >= 1 and wq: redw(*wq.pop(0))
    assert hi_[0] == 56 and not wq
    TU = 192
    for k in range(KT, 14):
        for t in range(5): mm4(1, k, t, 0)
    n = 0
    for k in range(KT, 14):
        for t in range(5):
            mm4(1, k, t, 1); n += 1
            if n % 3 == 0: redw(2, n//3 - 1)
    st()
    for d in range(4):
        unpack(A, TU+6*d, RX+d); unpack(A, TU+6*d+2, GR+d); unpack(A, TU+6*d+4, BR+d)
    for t in range(5): redw(3, t)
    A('s_waitcnt lgkmcnt(0)\ns_barrier')
    for t in range(5):
        for w in range(4):
            A(f'ds_read_b128 {v(ACC+(w*5+t)*4,4)}, v11 offset:{w*5120 + t*1024}')
    for d in range(4, 10):
        unpack(A, TU+6*d, RX+d); unpack(A, TU+6*d+2, GR+d); unpack(A, TU+6*d+4, BR+d)
    OP = 160
    for d in range(10):
        A(f'v_pk_add_f32 {pr(ACC+2*d)}, {pr(ACC+2*d)}, {pr(ACC+20+2*d)}\nv_pk_add_f32 {pr(ACC+40+2*d)}, {pr(ACC+40+2*d)}, {pr(ACC+60+2*d)}')
        A(f'v_pk_add_f32 {pr(TU+6*d+4)}, {pr(TU+6*d+4)}, {pr(ACC+2*d)}\nv_pk_add_f32 {pr(TU+6*d+4)}, {pr(TU+6*d+4)}, {pr(ACC+40+2*d)}')
        A(f'v_pk_fma_f32 {pr(TU+6*d)}, {pr(TU+6*d+4)}, {pr(TU+6*d+2)}, {pr(TU+6*d)}')
        A(f'v_cvt_pk_bf16_f32 v{OP+d}, v{TU+6*d}, v{TU+6*d+1}')
        if d == 3: A(f'buffer_store_dwordx4 v[{OP}:{OP+3}], v6, s[16:19], s26 offen {P.OUTF}')
        if d == 7: A(f'buffer_store_dwordx4 v[{OP+4}:{OP+7}], v6, s[16:19], s26 offen offset:64 {P.OUTF}')
    A(f'buffer_store_dwordx2 v[{OP+8}:{OP+9}], v7, s[16:19], s26 offen offset:128 {P.OUTF}')
    st.flush()
    A.label('KP_END')
    A('s_endpgm')
    return khead(KN) + A.finish() + kd(KN, 512, 256, 102)

P.N_OACK, P.N_OFLY, P.N_ZACK, P.U0, P.U1, P.GB, P.HB_ISSUE, P.HB_CHECK, P.OUTF = 9, 14, 9, 10, 8, 2.5, 3, 7, ''
def build():
    hdr = '; persistent fused block: one workgroup per CU, hand-offs through d_ws\n'
    hdr += f'; @launch grid=(256,1,1) block=(256,1,1) lds={LDS_BYTES}\n'
    return hdr + '.amdgcn_target "amdgcn-amd-amdhsa--gfx950"\n' + kp()

if __name__ == '__main__':
    Cfg.STAMP = sys.argv[2] if len(sys.argv) > 2 and sys.argv[2] != '-' else False
    for kv in sys.argv[3:]:
        k_, v_ = kv.split('=', 1); setattr(P, k_, eval(v_))
    open(sys.argv[1], 'w').write(build())
```

```python
import re

REG_RE = re.compile(r'\b([vas])(\d+)\b|\b([vas])\[(\d+):(\d+)\]|\b(vcc|exec|m0|scc)\b')
TRANS = ('v_exp_f32', 'v_log_f32', 'v_rcp_f32', 'v_rsq_f32', 'v_sqrt_f32', 'v_sin_f32', 'v_cos_f32')

def regs_of(tok):
    out = set()
    for m in REG_RE.finditer(tok):
        if m.group(1):
            out.add((m.group(1), int(m.group(2))))
        elif m.group(3):
            for i in range(int(m.group(4)), int(m.group(5)) + 1):
                out.add((m.group(3), i))
        else:
            out.add((m.group(6), 0))
    return out

def split_ops(s):
    ops, depth, cur = [], 0, ''
    for ch in s:
        if ch == '[': depth += 1
        if ch == ']': depth -= 1
        if ch == ',' and depth == 0:
            ops.append(cur.strip()); cur = ''
        else:
            cur += ch
    if cur.strip(): ops.append(cur.strip())
    return ops

class Ins:
    def __init__(self, text, tag=None):
        self.text = text.strip()
        self.tag = tag
        self.opt = None; self._all = None
        t = self.text.split(';')[0].strip()
        self.op = t.split()[0] if t else ''
        rest = t[len(self.op):].strip()
        self.ops = split_ops(rest)
        self.classify()
        m = re.search(r'offset:(-?\d+)', t)
        if m:
            o = int(m.group(1))
            if self.op.startswith('buffer_'): assert 0 <= o <= 4095, text
            if self.op.startswith('global_'): assert -4096 <= o <= 4095, text
            if self.op.startswith('ds_'): assert 0 <= o <= 65535, text

    def classify(self):
        op, ops = self.op, self.ops
        self.kind = 'other'; self.w = set(); self.r = set()
        self.dpp = False; self.perm = False; self.rdlane = False; self.srcC = set(); self.srcAB = set()
        self.wide_store = False; self.lds_dma = False; self.passes = 0
        allr = [regs_of(o) for o in ops]
        uni = lambda lst: set().union(*lst) if lst else set()
        if op.endswith(':') or op.startswith('.') or op == '':
            self.kind = 'label'; return
        if op == 'NEED':
            self.kind = 'need'; self.r = uni(allr); return
        if op.startswith('v_mfma'):
            self.kind = 'mfma'; self.w = allr[0]; self.srcAB = allr[1] | allr[2]; self.srcC = allr[3]
            self.r = self.srcAB | self.srcC
            self.passes = 8 if '32x32' in op else 4
            return
        if op.startswith('v_'):
            self.kind = 'valu'
            base = op.replace('_e32', '').replace('_e64', '').replace('_dpp', '').replace('_sdwa', '')
            if base in TRANS: self.kind = 'trans'
            if base.startswith('v_dot2'): self.kind = 'dot'
            self.dpp = ('_dpp' in op) or any(k in self.text for k in ('row_shr', 'row_ror', 'row_shl', 'quad_perm', 'row_mirror', 'row_half_mirror', 'row_bcast', 'row_newbcast'))
            if base.startswith('v_permlane'):
                self.perm = True; self.w = allr[0] | allr[1]; self.r = allr[0] | allr[1]; return
            if base in ('v_readfirstlane_b32', 'v_readlane_b32'):
                self.rdlane = True
            if base in ('v_add_co_u32', 'v_sub_co_u32', 'v_addc_co_u32', 'v_subb_co_u32', 'v_subrev_co_u32', 'v_mad_u64_u32'):
                self.w = allr[0] | allr[1]; self.r = uni(allr[2:]); return
            self.w = allr[0]; self.r = uni(allr[1:])
            if base in ('v_fmac_f32', 'v_dot2c_f32_bf16', 'v_writelane_b32', 'v_pk_fmac_f16') or self.dpp or 'UNUSED_PRESERVE' in self.text:
                self.r |= allr[0]
            if base.startswith('v_cmpx'): self.w |= {('exec', 0)}
            return
        if op.startswith('buffer_') or op.startswith('global_'):
            toks = self.text.split(';')[0].split()
            if op in ('buffer_inv', 'buffer_wbl2'):
                self.kind = 'vstore'; return
            if 'lds' in toks or '_lds_' in op:
                self.kind = 'vload'; self.lds_dma = True; self.r = uni(allr) | {('m0', 0)}; return
            if '_load_' in op:
                self.kind = 'vload'; self.w = allr[0]; self.r = uni(allr[1:])
                if 'd16' in op: self.r |= allr[0]
                return
            if '_atomic_' in op:
                if 'sc0' in toks:
                    self.kind = 'vload'
                    self.w = allr[0]; self.r = uni(allr) if op.startswith('buffer_') else uni(allr[1:])
                else:
                    self.kind = 'vstore'; self.r = uni(allr)
                return
            self.kind = 'vstore'; self.r = uni(allr)
            self.wide_store = ('x3' in op or 'x4' in op)
            self.sdata = allr[0] if op.startswith('buffer_') else allr[1]
            return
        if op.startswith('ds_'):
            if op.startswith('ds_read') or 'permute' in op or 'swizzle' in op or '_rtn_' in op:
                self.kind = 'dsread'; self.w = allr[0]; self.r = uni(allr[1:])
                if 'd16' in op: self.r |= allr[0]
            else:
                self.kind = 'dswrite'; self.r = uni(allr)
            return
        if op.startswith('s_load') or op.startswith('s_buffer_load') or op in ('s_memtime', 's_memrealtime'):
            self.kind = 'smem'; self.w = allr[0]; self.r = uni(allr[1:]); return
        if op == 's_waitcnt': self.kind = 'wait'; return
        if op == 's_nop': self.kind = 'nop'; return
        if op in ('s_barrier', 's_endpgm', 's_sleep', 's_setprio') : self.kind = 'misc'; return
        if op.startswith('s_cbranch') or op == 's_branch': self.kind = 'branch'; return
        if op.startswith('s_cmp') or op.startswith('s_bitcmp'):
            self.kind = 'salu'; self.r = uni(allr); return
        if op.startswith('s_'):
            self.kind = 'salu'; self.w = allr[0] if allr else set(); self.r = uni(allr[1:])
            if 'saveexec' in op: self.w |= {('exec', 0)}
            if op in ('s_addk_i32', 's_mulk_i32', 's_cmov_b32'): self.r |= allr[0]
            return
        raise ValueError('unknown instr: ' + self.text)

    def all_(self):
        if self._all is None: self._all = self.r | self.w
        return self._all
    def is_valu(self): return self.kind in ('valu', 'trans', 'dot')
    def states(self):
        if self.kind == 'label': return 0
        if self.kind == 'nop': return int(self.ops[0], 0) + 1
        return 1

def vg(s): return {x for x in s if x[0] in 'va' and x[0] != 'vcc'}
def isv(x): return x[0] == 'v' or x[0] == 'a'
def iss(x): return x[0] == 's' or x[0] == 'vcc'

def need_ws(p, c):
    if p.all_().isdisjoint(c.all_()) and ('exec', 0) not in p.w: return 0
    n = 0
    pw_v = {x for x in p.w if isv(x)}
    pw_s = {x for x in p.w if iss(x)}
    if p.is_valu():
        if c.kind == 'mfma' and (pw_v & c.r): n = max(n, 2 if p.kind != 'dot' else 3)
        if c.is_valu():
            if c.dpp and (pw_v & c.r): n = max(n, 2)
            if c.perm and (pw_v & c.r): n = max(n, 2)
            if c.rdlane and (pw_v & c.r): n = max(n, 1)
            if pw_s & c.r: n = max(n, 4 if c.rdlane or c.op.startswith('v_writelane') else 2)
            if p.kind == 'trans' and c.kind != 'trans' and (pw_v & c.r): n = max(n, 1)
            if ('sdwa' in p.op or 'op_sel' in p.text) and (pw_v & (c.r | c.w)): n = max(n, 1)
        if p.kind == 'trans' and c.kind in ('vstore', 'dswrite', 'vload', 'dsread') and (pw_v & c.r): n = max(n, 1)
        if p.kind == 'dot':
            if c.kind == 'dot' and c.op == p.op:
                ab = (regs_of(c.ops[1]) | regs_of(c.ops[2]))
                if pw_v & ab: n = max(n, 3)
            elif (pw_v & (c.r | c.w)): n = max(n, 3)
        if c.kind in ('vload', 'vstore') and (pw_s & c.r): n = max(n, 5)
        if ('exec', 0) in p.w:
            if c.kind == 'mfma' or c.perm or c.rdlane: n = max(n, 4)
            if c.dpp: n = max(n, 5)
    if p.kind == 'salu' and ('m0', 0) in p.w and c.lds_dma: n = max(n, 1)
    if p.kind == 'mfma':
        big = p.passes == 8
        if c.kind == 'mfma':
            if p.w & c.srcAB: n = max(n, 12 if big else 8)
            if p.w & c.srcC:
                if not (p.w == c.srcC and p.passes == c.passes): n = max(n, 10 if big else 6)
            elif p.w & c.w:
                n = max(n, 12 if big else 8)
        elif c.is_valu() or c.kind in ('vload', 'vstore', 'dsread', 'dswrite'):
            if p.w & (c.r | c.w): n = max(n, 12 if big else 8)
        if c.is_valu() and (p.srcC & c.w): n = max(n, 7 if big else 3)
    if p.kind == 'vstore' and p.wide_store:
        if (p.sdata & c.w): n = max(n, 2)
    return n

class Asm:
    nopt = 0
    def __init__(self):
        self.ins = []; self.cur = None
    def __call__(self, text, tag=None):
        for line in text.split('\n'):
            line = line.strip()
            if line.startswith('OPT '):
                assert self.cur is None
                Asm.nopt += 1
                self.ins.append(Ins(line[4:])); self.ins.append(Ins(f's_cbranch_scc1 SK{Asm.nopt}', 'inflight_ok'))
                self.cur = Asm.nopt
            elif line == 'ENDOPT':
                self.ins.append(Ins(f'SK{self.cur}:', 'inflight_ok')); self.cur = None
            elif line and not line.startswith(';'):
                self.ins.append(Ins(line, tag)); self.ins[-1].opt = self.cur
    def label(self, name, tag=None): self.ins.append(Ins(name + ':', tag))
    def raw(self, text, nvm=0, tag=None, drains_lgkm=True, nopt=0):
        i = Ins('s_nop 7'); i.kind = 'raw'; i.text = text; i.nvm = nvm; i.nopt = nopt; i.tag = tag; self.ins.append(i)
    def wait_tag(self, tag):
        i = Ins('s_waitcnt'); i.kind = 'waittag'; i.tag = tag; self.ins.append(i)
    def wait_all(self): self('s_waitcnt vmcnt(0) lgkmcnt(0)')
    def fork(self, branch):
        self.ins.append(Ins(branch, 'inflight_ok'))
        i = Ins('s_nop 0'); i.kind = 'fork'; self.ins.append(i)
    def other(self, l_else, l_join, wait=True):
        if wait: self('s_waitcnt lgkmcnt(0)')
        self.ins.append(Ins('s_branch ' + l_join, 'inflight_ok'))
        i = Ins('s_nop 0'); i.kind = 'else'; self.ins.append(i)
        self.label(l_else, 'inflight_ok')
        self('s_nop 7')
    def join(self, l_join):
        self('s_waitcnt lgkmcnt(0)')
        self.label(l_join, 'inflight_ok')
        i = Ins('s_nop 0'); i.kind = 'join'; self.ins.append(i)
        self('s_nop 7')

    def finish(self):
        out = []
        vq = []
        lq = []
        def emit(i):
            need = 0; dist = 0
            for p in reversed(out):
                if p.kind == 'label' and not p.op.startswith('.'):
                    pass
                k = need_ws(p, i)
                if k - dist > need: need = k - dist
                if p.opt is None or p.opt == i.opt: dist += p.states()
                if dist >= 13: break
            while need > 0:
                n = min(need, 16)
                out.append(Ins('s_nop %d' % (n - 1))); out[-1].opt = i.opt; need -= n
            out.append(i)
        def keep(q, n):
            k = len(q); c = 0
            while k > 0 and (c < n or (n > 0 and q[k-1].opt is not None and False)):
                k -= 1
                if q[k].opt is None: c += 1
            return q[k:]
        def do_wait(vn, ln, opt=None, hoist=False):
            nonlocal vq, lq
            parts = []
            if vn is not None and vn < len(vq):
                n = min(63, sum(1 for x in vq[len(vq)-vn:] if x.opt is None) if vn else 0)
                parts.append('vmcnt(%d)' % n)
                vq = keep(vq, n)
            if ln is not None and ln < len(lq):
                if any(x.kind == 'smem' for x in lq): ln = 0
                n = min(15, sum(1 for x in lq[len(lq)-ln:] if x.opt is None) if ln else 0)
                parts.append('lgkmcnt(%d)' % n)
                lq = keep(lq, n)
            if parts:
                w = Ins('s_waitcnt ' + ' '.join(parts)); w.opt = opt
                k = len(out)
                while hoist and k > 0 and len(out) - k < 2 and out[k-1].is_valu() and out[k-1].opt == opt: k -= 1
                if hoist and k < len(out) and out[k-1].kind == 'mfma' and out[k-1].opt == opt: out.insert(k, w)
                else: emit(w)
        saved = []; left = []; grp = None
        for i in self.ins:
            if grp is not None and i.opt != grp[0]:
                vq = grp[1] + [x for x in vq if x.opt == grp[0]]; lq = grp[2] + [x for x in lq if x.opt == grp[0]]; grp = None
            if grp is None and i.opt is not None: grp = (i.opt, list(vq), list(lq))
            if i.kind == 'fork':
                saved.append((list(vq), list(lq))); continue
            if i.kind == 'else':
                left.append(set().union(*[x.w for x in vq])); vq, lq = saved.pop(); continue
            if i.kind == 'join':
                d = Ins('buffer_inv'); d.tag = 'jn'; d.w = left.pop().union(*[x.w for x in vq]); vq = [d]; lq = []; continue
            if i.kind == 'raw':
                do_wait(None, 0)
                out.append(Ins('s_nop 4')); out.append(i); out.append(Ins('s_nop 4'))
                for k in range(i.nvm):
                    d = Ins('buffer_inv'); d.tag = i.tag; vq.append(d)
                    if k < i.nopt: d.opt = -1
                continue
            if i.tag == 'touch': i.w = set()
            if i.kind == 'waittag':
                tags = i.tag if isinstance(i.tag, (list, tuple, set)) else [i.tag]
                vn = ln = None
                for k, x in enumerate(vq):
                    if x.tag in tags: vn = len(vq) - 1 - k
                for k, x in enumerate(lq):
                    if x.tag in tags: ln = len(lq) - 1 - k
                do_wait(vn, ln); continue
            if i.kind == 'wait':
                m = re.search(r'vmcnt\((\d+)\)', i.text)
                if m:
                    assert i.opt is None
                    vq = keep(vq, int(m.group(1)))
                m = re.search(r'lgkmcnt\((\d+)\)', i.text)
                if m:
                    assert i.opt is None
                    lq = keep(lq, int(m.group(1)))
                emit(i); continue
            if i.kind in ('label', 'branch') and not i.op.startswith('.'):
                if not (i.tag == 'inflight_ok'):
                    pend_v = [k for k, x in enumerate(vq) if x.w]
                    pend_l = [k for k, x in enumerate(lq) if x.w]
                    if pend_v or pend_l:
                        raise ValueError('loads in flight across control flow at ' + i.text)
                emit(i); continue
            touch = i.r | i.w
            vn = ln = None
            for k, x in enumerate(vq):
                if x.w & touch: vn = len(vq) - 1 - k
            for k, x in enumerate(lq):
                if x.w & touch: ln = len(lq) - 1 - k
            do_wait(vn, ln, i.opt, True)
            if i.kind == 'need': continue
            emit(i)
            if i.kind in ('vload', 'vstore'): vq.append(i)
            if i.kind in ('dsread', 'dswrite', 'smem'): lq.append(i)
        return '\n'.join(('' if x.kind in ('label', 'raw') else '  ') + x.text.rstrip('\n') for x in out) + '\n'

def v(i, n=1): return f'v{i}' if n == 1 else f'v[{i}:{i+n-1}]'
def a(i, n=1): return f'a{i}' if n == 1 else f'a[{i}:{i+n-1}]'
def s(i, n=1): return f's{i}' if n == 1 else f's[{i}:{i+n-1}]'
def R(i, n=1):
    if i >= 256: return a(i - 256, n)
    assert i + n <= 256
    return v(i, n)

def kd(name, vgpr, accum, sgpr=96):
    return f'''.section .rodata,"a"
.p2align 6
.amdhsa_kernel {name}
  .amdhsa_next_free_vgpr {vgpr}
  .amdhsa_next_free_sgpr {sgpr}
  .amdhsa_accum_offset {accum}
  .amdhsa_group_segment_fixed_size 0
  .amdhsa_kernarg_size 104
  .amdhsa_user_sgpr_count 2
  .amdhsa_user_sgpr_kernarg_segment_ptr 1
  .amdhsa_system_sgpr_workgroup_id_x 1
.end_amdhsa_kernel
'''
def khead(name):
    return f'.text\n.globl {name}\n.p2align 8\n.type {name},@function\n{name}:\n'
```

```python
import sys, struct
from asmlib import *

NAME = 'adaLN_cond__sliding_local_dilated__mixer_channel_mlp__prompt'
SZ = dict(x=2621440, wqkv=640*1920*2, wo=640*640*2, w1=640*1728*2, b1=1728*2, w2=1728*640*2, b2=1280, c=1280, wmod=640*3840*2, out=2621440)
MODB = 0
FLG  = 0x4000
WQ_F = 0x10000
WO_F = WQ_F + 8*4*20*4096
W1_F = WO_F + 8*20*5*1024
W2_F = W1_F + 27*20*4096
O_F  = W2_F + 8*54*5*1024
Z_F  = O_F + 32*4*20*1024
HID  = Z_F + 32*4*20*1024
STA  = HID + 32*54*4*1024
STB  = STA + 32*4*8*1024
MODP = STB + 32*4*8*512
MODT = MODP + 3840*16
H_WS = MODT + 3840*32
FLG8 = H_WS + 2048*1280
WS_END = FLG8 + 16*4096
FLA = 0x8000
FLB = 0x8400
EPO = 0xC000
OOB = 0x70000000
OOBS = 0x6000000
LOG2E = 1.4426950408889634
def f2u(x): return struct.unpack('<I', struct.pack('<f', x))[0]
def hx(x): return '0x%08x' % (x & 0xffffffff)
def fl(x): return hx(f2u(x))

def srd(A, d, ptr, size):
    A(f's_mov_b32 s{d}, s{ptr}\ns_mov_b32 s{d+1}, s{ptr+1}\ns_mov_b32 s{d+2}, {size}\ns_mov_b32 s{d+3}, 0x20000')

class Cfg: STAMP = False
STAMP_OFF = 64 << 20
class St:
    def __init__(self, A, k, wsp=40): self.A, self.k, self.n, self.wsp = A, k, 0, wsp
    def __call__(self):
        if not Cfg.STAMP or self.n >= 27: return
        A = self.A
        A(('s_memtime' if Cfg.STAMP == 'cyc' else 's_memrealtime') + ' s[92:93]\ns_waitcnt lgkmcnt(0)')
        A(f's_mov_b32 s{64+self.n}, s92'); self.n += 1
        assert self.n <= 28
    def flush(self, n=None):
        if not Cfg.STAMP: return
        A = self.A
        A('s_waitcnt vmcnt(0)')
        if n is not None: self.n = n
        self()
        k = self.n
        if Cfg.STAMP == 'dbg':
            A('s_mov_b64 exec, 1\ns_load_dwordx2 s[62:63], s[0:1], 88\nv_mov_b32 v0, 0\ns_not_b32 s61, s64\nv_mov_b32 v1, s61\ns_waitcnt lgkmcnt(0)')
            A('global_atomic_umax v0, v1, s[62:63] sc1')
            sel = [0, 1, 3, 7, 9, 10, 11, 13, 15, 17, 18, 20, 21, 22, k-1]
            for i, j in enumerate(sel):
                A(f'v_mov_b32 v1, s{64+j}\nglobal_atomic_umax v0, v1, s[62:63] offset:{4+4*i} sc1')
            A('s_waitcnt vmcnt(0)')
            return
        A(f's_add_u32 s62, s{self.wsp}, {STAMP_OFF + self.k*256*8*128}\ns_addc_u32 s63, s{self.wsp+1}, 0')
        A('s_lshl_b32 s61, s2, 3\ns_add_u32 s61, s61, s3\ns_lshl_b32 s61, s61, 7\nv_mov_b32 v0, s61')
        for i in range(k):
            A(f'v_mov_b32 v1, s{64+i}\nglobal_store_dword v0, v1, s[62:63] offset:{4*i}')
        A(f'v_mov_b32 v1, {k}\nglobal_store_dword v0, v1, s[62:63] offset:120')
        A('v_mov_b32 v1, 0x57A3B001\nglobal_store_dword v0, v1, s[62:63] offset:124')

class Buf:
    def __init__(self): self.l = []
    def group(self, text, tag=None): self.l.append((text, tag))
    def __call__(self, text, tag=None):
        lines = [l.strip() for l in text.split('\n') if l.strip()]
        k = 0
        while k < len(lines):
            if lines[k].startswith('OPT '):
                e = lines.index('ENDOPT', k)
                self.l.append(('\n'.join(lines[k:e+1]), tag)); k = e + 1
            elif lines[k].startswith('s_cmp'):
                g = [lines[k]]; k += 1
                while k < len(lines) and (lines[k].startswith('s_cselect') or lines[k].startswith('s_cmov')):
                    g.append(lines[k]); k += 1
                self.l.append(('\n'.join(g), tag))
            else:
                self.l.append((lines[k], tag)); k += 1

def cost(line):
    if line.startswith('GAP'): return 99
    if line.startswith('OPT '): return min(2.0, 1.0 + sum(cost(l) for l in line.split('\n')[1:-1]))
    if '\n' in line: return min(1.0, sum(cost(l) for l in line.split('\n')))
    op = line.split()[0]
    if op.startswith('s_'): return 0.5
    if any(op.startswith(t) for t in TRANS) or op.startswith('v_permlane'): return 2
    return 1

def merge(A, main, side, budget=2.0, start=0, keep=None):
    side = list(side.l); main = main.l
    k = 0; nm = 0; i = 0
    while i < len(main):
        line, tag = main[i]; A(line, tag); i += 1
        if line.startswith('v_mfma'):
            nm += 1
            used = 0
            j = i
            while j < len(main) and not main[j][0].startswith('v_mfma'):
                used += cost(main[j][0]); j += 1
            if nm > start:
                if k < len(side) and side[k][0].startswith('GAP'):
                    start = nm + int(side[k][0].split()[1]) - 1; k += 1; continue
                while k < len(side) and used + cost(side[k][0]) <= budget + 1e-9:
                    A(*side[k]); used += cost(side[k][0]); k += 1
    left = len(side) - k
    if keep is not None:
        keep.l = side[k:]; return left
    while k < len(side):
        if not side[k][0].startswith('GAP'): A(*side[k])
        k += 1
    return left

def pace(A, main, loads, every, start=0):
    side = list(loads.l); k = 0; nm = 0
    for line, tag in main.l:
        A(line, tag)
        if line.startswith('v_mfma'):
            nm += 1
            if nm > start and nm % every == 0:
                while k < len(side):
                    A(*side[k]); k += 1
                    if side[k-1][0].startswith('buffer_'): break
    while k < len(side):
        A(*side[k]); k += 1

def sprinkle(A, main, side, every):
    side = list(side.l); k = 0
    for n, (line, tag) in enumerate(main.l):
        A(line, tag)
        if n % every == every - 1 and k < len(side):
            A(*side[k]); k += 1
    while k < len(side):
        A(*side[k]); k += 1

def est(lines, t=0.0, mfree=0.0):
    for line in lines.split('\n'):
        op = line.split()[0]
        if op.startswith('v_mfma'):
            t = max(t, mfree); mfree = t + 16; t += 8
        elif op.startswith('v_pk_') or op.startswith('v_dot'):
            t = max(t, mfree) + 4.5
        elif any(op.startswith(x) for x in TRANS) or op.startswith('v_permlane'): t += 8.7
        elif op.startswith('v_'): t += 4.5
        elif op.startswith('ds_write'): t += 24 if 'b128' in op else 12
        else: t += 4
    return t, mfree

def timed(A, main, bg, interval, stop_before=0, first=None):
    tot = 0.0; mf = 0.0
    for line, _ in main.l: tot, mf = est(line, tot, mf)
    t = 0.0; mf = 0.0; nxt = interval if first is None else first
    for line, tag in main.l:
        A(line, tag)
        t, mf = est(line, t, mf)
        if t >= nxt and t <= tot - stop_before and not line.startswith('s_cmp'):
            bg(A); nxt += interval


def kind_of(line):
    k = KIND.get(line)
    if k is None: k = KIND[line] = kind_of_(line)
    return k
def kind_of_(line):
    if line.startswith('GAP'): return 'gap'
    if line.startswith('OPT '): return 'L'
    if line.startswith('NEED'): return 'need'
    ops = [l.split()[0] for l in line.split('\n')]
    if any(o.startswith('buffer_') or o.startswith('global_') for o in ops): return 'L'
    op = ops[0]
    if op.startswith('v_mfma'): return 'M'
    if op.startswith('ds_read'): return 'R'
    if op.startswith('ds_'): return 'W'
    if op.startswith('s_'): return 's'
    if any(op.startswith(t) for t in TRANS) or op.startswith('v_permlane'): return 't'
    return 'v'

INS = {}
KIND = {}
class GS:
    def __init__(self, A):
        self.A = A; self.pend = []; self.hist = []; self.n = 0; self.ready = {}; self.hold = {}; self.win = 20; self.cache = {}
    def put(self, line, tag=None):
        self.A(line, tag)
        for l in line.split('\n'):
            if l.startswith('OPT') or l in ('ENDOPT',) or l.startswith('NEED'): continue
            i = Ins(l); self.hist.append(i)
            if i.kind == 'dsread':
                for r in i.w: self.ready[r] = self.n + 7
            if i.kind == 'vload':
                for r in i.w: self.ready[r] = self.n + 45
        self.hist = self.hist[-24:]
    def regs(self, line):
        if line not in self.cache: self.cache[line] = self.regs_(line)
        return self.cache[line]
    def regs_(self, line):
        r = set(); w = set()
        for l in line.split('\n'):
            if l.startswith('OPT') or l == 'ENDOPT': continue
            i = Ins(l); r |= i.r; w |= i.w
        return r, w
    def ok(self, line):
        l0 = [l for l in line.split('\n') if not l.startswith('OPT') and l != 'ENDOPT']
        i = INS.get(l0[0]) or INS.setdefault(l0[0], Ins(l0[0])); dist = 0
        for p in reversed(self.hist):
            if need_ws(p, i) > dist: return False
            dist += 1
            if dist > 9: break
        r, w = self.regs(line)
        return all(self.ready.get(x, 0) <= self.n for x in r | w)
    def flush(self):
        for x in self.pend: self.put(*x)
        self.pend = []
    def force(self, line):
        r, w = self.regs(line)
        last = -1
        for k, x in enumerate(self.pend):
            if self.regs(x[0])[1] & (r | w): last = k
        for x in self.pend[:last+1]: self.put(*x)
        self.pend = self.pend[last+1:]
        return last + 1
    def gap(self, pinned, sides, extra=0):
        kinds = [kind_of(x[0]) for x in pinned]
        first = True; mem = None; slots = 2 + extra; valu = False
        newp = []
        hasL = 'L' in kinds or 'W' in kinds
        for x, k in zip(pinned, kinds):
            if k == 'need': self.put(*x); first = False
        def cands():
            for q in sides:
                while q.l and kind_of(q.l[0][0]) == 'gap':
                    self.hold[id(q)] = self.n + int(q.l.pop(0)[0].split()[1])
                if not q.l or self.hold.get(id(q), 0) > self.n: continue
                R_ = set(); W_ = set(); memseen = False
                for k, x in enumerate(q.l[:self.win]):
                    kd_ = kind_of(x[0])
                    if kd_ == 'gap': break
                    r, w = self.regs(x[0])
                    if not (r & W_ or w & W_ or w & R_) and not (kd_ in 'LRW' and memseen) and self.ok(x[0]): yield q, k, kd_
                    R_ |= r; W_ |= w; memseen = memseen or kd_ in 'LRW'
        wantmem = not any(k in 'LRW' for k in kinds) and any(k in 'LW' for _, _, k in cands())
        if first and not hasL and not wantmem and self.pend:
            self.put(*self.pend.pop(0)); first = False
        if first and not hasL and not wantmem:
            for q, k, kd_ in cands():
                if kd_ == 's' and '\n' not in q.l[k][0]:
                    self.put(*q.l.pop(k)); first = False; break
        seen = False
        for x, k in zip(pinned, kinds):
            if k == 'need': continue
            if k == 's':
                if seen: newp.append(x)
                else: self.force(x[0]); self.put(*x); slots -= 0 if first else 1; first = False
            elif k in 'LRW':
                for y in newp:
                    if self.regs(y[0])[1] & self.regs(x[0])[0]: self.pend += newp; newp = []; break
                self.force(x[0]); self.put(*x); seen = True; mem = k
                slots = min(slots - 1, extra + (1 if k == 'R' else 0))
            else:
                self.put(*x); slots -= 1 if k == 'v' else 2; valu = True
        while True:
            C = list(cands()); pick = None
            if not valu:
                for q, k, kd_ in C:
                    if kd_ not in 'LRW': continue
                    if not mem and slots >= 2: pick = (q, k, 1 if kd_ == 'R' else 2); mem = kd_; break
                    if mem and extra >= 2 and slots >= 2: pick = (q, k, min(slots, {'R': 2, 'L': 3, 'W': 6}[kd_])); break
            if not pick and slots % 2 == 0:
                for q, k, kd_ in C:
                    if kd_ == 't' and slots >= 2: pick = (q, k, 2); valu = True; break
            if not pick:
                for q, k, kd_ in C:
                    if kd_ in 'LRWM': continue
                    c = 2 if kd_ == 't' else (q.l[k][0].count('\n') + 1 if kd_ == 's' else 1)
                    if kd_ == 's' and first and not valu and not mem: c -= 1
                    if c > slots: continue
                    pick = (q, k, c); first = False; valu = valu or kd_ != 's'; break
            if not pick: break
            self.put(*pick[0].l.pop(pick[1])); slots -= pick[2]
        while slots > 0 and self.pend:
            self.put(*self.pend.pop(0)); slots -= 1
        self.pend += newp
        self.n += 1
        for q, k, kd_ in cands():
            if kd_ == 'M':
                self.put(*q.l.pop(k)); self.gap([], sides, extra); break
    def run(self, main, sides=(), extra=0, cont=False):
        L = main.l; i = 0
        while i < len(L) and kind_of(L[i][0]) != 'M':
            self.force(L[i][0]); self.put(*L[i]); i += 1
        while i < len(L):
            self.put(*L[i]); i += 1; j = i
            while j < len(L) and kind_of(L[j][0]) != 'M': j += 1
            self.gap(L[i:j], sides, extra); i = j
        if not cont: self.flush()
    def drain(self, *sides):
        self.flush(); n = 0
        for q in sides:
            for x in q.l:
                if kind_of(x[0]) != 'gap': self.put(*x); n += 1
            q.l = []
        return n
```

```python
from common import *
import re
MF = 'v_mfma_f32_16x16x32_bf16'
PA, PB = 672, 736
LB = 112704
X4 = 102400; ZERO = X4 + 7680
MODF = 112704
VEC = 158720
LDS_BYTES = VEC + 5120
def unpack(A, dst, src):
    A(f'v_lshlrev_b32 v{dst}, 16, v{src}\nv_and_b32 v{dst+1}, 0xffff0000, v{src}')
def pr(r): return f'v[{r}:{r+1}]'
IF = 'inflight_ok'

LD = 216
LC = LB + 32*PB
SILU = VEC
def mod_proc(B, base, cg, q, npad, D, tagged=True):
    B(f'v_bfe_u32 v13, v2, 3, 2\nv_xor_b32 v13, s3, v13\nv_lshrrev_b32 v12, 2, v2\nv_lshlrev_b32 v12, 7, v12\nv_lshl_add_u32 v12, v13, 5, v12\nv_and_b32 v13, 3, v2\nv_lshl_add_u32 v12, v13, 3, v12')
    if base: B(f'v_add_u32 v12, {base}, v12')
    B(f's_mul_i32 s6, s{q}, 320\ns_add_u32 s6, s6, {SILU}\nv_lshl_add_u32 v13, v3, 3, s6')
    for s_ in range(5):
        B(f'ds_read_b64_tr_b16 {R(D+4*s_,2)}, v12 offset:{4096*s_}\nds_read_b64_tr_b16 {R(D+4*s_+2,2)}, v12 offset:{4096*s_+2048}')
        B(f'ds_read_b64 {R(D+20+4*s_,2)}, v13 offset:{64*s_}\nds_read_b64 {R(D+22+4*s_,2)}, v13 offset:{64*s_+32}')
    B(f'v_lshlrev_b32 v12, 6, v3\nv_cmp_eq_u32 vcc, 0, v5\nv_cndmask_b32 v13, v11, v12, vcc')
    B(f's_lshl_b32 s6, s{cg}, 10\ns_lshl_b32 s7, s{q}, 4\ns_add_u32 s6, s6, s7\ns_lshl_b32 s7, s3, 8\ns_add_u32 s6, s6, s7\ns_add_u32 s6, s6, {MODP}')
    if tagged: B('v_mov_b32 v12, s94\ns_cmp_lt_u32 s2, 80')
    for s_ in range(5):
        B(f'{MF} v[252:255], {R(D+4*s_,4)}, {R(D+20+4*s_,4)}, {"v[252:255]" if s_ else "0"}')
    for r in range(4 if tagged else 0):
        B(f's_mov_b32 s7, 0x07060504\ns_cmov_b32 s7, {hx(0x07060500 + r)}\nv_perm_b32 v{252+r}, v{252+r}, v12, s7')
    B(f'buffer_store_dwordx4 v[252:255], v13, s[12:15], s6 offen sc1')
    pad_st(B, npad - 1)
def pad_st(B, n):
    for _ in range(n): B('buffer_store_dword v11, v11, s[12:15], 0 offen')
def pad_ld(B, n):
    for _ in range(n): B('buffer_load_dword v0, v11, s[12:15], 0 offen', tag='touch')

def slotA_proc():
    B = Asm()
    B('s_cmp_eq_u32 s95, 0\ns_cbranch_scc1 PA_M')
    B(f'v_lshrrev_b32 v12, 2, v2\nv_mul_u32_u24 v12, {PA}, v12\nv_and_b32 v13, 3, v2\ns_mul_i32 s6, s3, 160\nv_add_u32 v12, s6, v12')
    B('v_mul_u32_u24 v14, 40, v13\nv_add_u32 v14, v14, v12\nv_lshl_add_u32 v12, v13, 3, v12')
    for t in range(5):
        d = LD + 4*t
        ad, off = ('v12', 40*t) if t < 4 else ('v14', 32)
        B(f'ds_read_b64_tr_b16 {v(d,2)}, {ad} offset:{off}\nds_read_b64_tr_b16 {v(d+2,2)}, {ad} offset:{off+16*PA}')
    B(f's_and_b32 s6, s57, 1\ns_lshl_b32 s6, s6, 2\ns_add_u32 s6, s6, s3\ns_mul_i32 s6, s6, {4*20*4096}\ns_lshl_b32 s7, s56, 12\ns_add_u32 s6, s6, s7\ns_add_u32 s6, s6, {WQ_F}')
    B(f's_lshr_b32 s7, s57, 1\ns_mul_i32 s24, s7, {20*4096}\ns_add_u32 s24, s24, s6\ns_lshl_b32 s7, s7, 10\ns_add_u32 s6, s6, s7')
    for t in range(4):
        B(f'buffer_store_dwordx4 {v(LD+4*t,4)}, v1, s[12:15], s6 offen sc1')
        if t < 3: B(f's_add_u32 s6, s6, {20*4096}')
    B(f'buffer_store_dwordx4 {v(LD+16,4)}, v1, s[12:15], s24 offen offset:3072 sc1')
    B('s_branch PA_END')
    B.label('PA_M')
    mod_proc(B, 0, 54, 55, 5, 256)
    B.label('PA_END')
    return B.finish()

def slotB_decode():
    B = Asm()
    B('s_and_b32 s20, s3, 1\ns_lshr_b32 s21, s3, 1')
    B(f's_mul_i32 s31, s3, {8*PB}\ns_add_u32 s31, s31, {LB}\ns_movk_i32 s35, 0xff\nv_mov_b32 v249, v1\ns_mov_b32 s61, 0\ns_and_b32 s34, s2, 1')
    B('s_cmp_lt_u32 s2, 100\ns_cbranch_scc1 SB_W1\ns_cmp_ge_u32 s2, 140\ns_cbranch_scc1 SB_W2')
    B('s_sub_u32 s59, s2, 100\ns_lshr_b32 s59, s59, 1')
    srd(B, 96, 32, SZ['wo'])
    B('s_mul_i32 s7, s59, 40\ns_mul_i32 s22, s20, 20\ns_add_u32 s7, s7, s22\ns_lshl_b32 s22, s21, 2\ns_add_u32 s7, s7, s22')
    B('s_sub_u32 s6, s59, 16\ns_mul_i32 s6, s6, 160\ns_mul_i32 s22, s20, 80\ns_add_u32 s6, s6, s22\ns_mul_i32 s22, s21, 20\ns_add_u32 s6, s6, s22\ns_add_u32 s6, s6, 16')
    B(f's_cmp_ge_u32 s59, 16\ns_cselect_b32 s7, s6, s7\ns_mov_b32 s30, {5*1280}\ns_cmov_b32 s30, {37*1280}')
    B('s_mov_b32 s58, 1\ns_cmp_ge_u32 s59, 10\ns_cselect_b32 s61, 64, 0')
    B(f's_mov_b32 s62, {WO_F}\ns_mov_b32 s63, {20*5120}')
    B('s_branch SB_WW')
    B.label('SB_W2')
    B('s_sub_u32 s59, s2, 140\ns_lshr_b32 s59, s59, 1')
    srd(B, 96, 40, SZ['w2'])
    B('s_lshl_b32 s7, s59, 5\ns_lshl_b32 s22, s3, 3\ns_add_u32 s7, s7, s22\ns_mov_b32 s30, 1280')
    B(f's_mov_b32 s62, {W2_F}\ns_mov_b32 s63, {54*5120}')
    B('s_cmp_ge_u32 s2, 248\ns_cselect_b32 s58, 3, 1\ns_cselect_b32 s7, 0, s7\ns_cselect_b64 vcc, -1, 0\nv_cndmask_b32 v249, v1, v11, vcc')
    B.label('SB_WW')
    B('s_mov_b32 s29, 1280\ns_mul_i32 s28, s7, 1280\ns_mul_i32 s22, s34, 640\ns_add_u32 s28, s28, s22')
    B('s_lshl_b32 s22, s34, 2\ns_add_u32 s22, s22, s3\ns_mul_i32 s22, s22, s63\ns_add_u32 s62, s62, s22\ns_mul_i32 s22, s59, 5120\ns_add_u32 s62, s62, s22')
    B('s_branch SB_END')
    B.label('SB_W1')
    B('s_mul_i32 s59, s2, 52429\ns_lshr_b32 s59, s59, 18\ns_mul_i32 s61, s59, 5\ns_sub_u32 s61, s2, s61')
    srd(B, 96, 36, SZ['w1'])
    B('s_lshr_b32 s7, s59, 1\ns_mul_i32 s7, s7, 80\ns_and_b32 s22, s59, 1\ns_lshl_b32 s22, s22, 5\ns_add_u32 s7, s7, s22\ns_add_u32 s7, s7, s60')
    B('s_sub_u32 s6, s59, 16\ns_mul_i32 s6, s6, 160\ns_mul_i32 s22, s21, 80\ns_add_u32 s6, s6, s22\ns_lshl_b32 s22, s20, 3\ns_add_u32 s6, s6, s22\ns_add_u32 s6, s6, 64')
    B(f's_cmp_ge_u32 s59, 16\ns_cselect_b32 s7, s6, s7\ns_mov_b32 s30, {5*3456}\ns_cmov_b32 s30, 3456')
    B('s_mov_b32 s29, 3456\ns_mul_i32 s28, s7, 3456\ns_mul_i32 s22, s61, 704\ns_add_u32 s28, s28, s22')
    B('s_movk_i32 s35, 0xfff\ns_mov_b32 s58, 2')
    B(f's_mul_i32 s62, s61, 11\ns_add_u32 s62, s62, s21\ns_mul_i32 s62, s62, 40960\ns_lshl_b32 s22, s59, 11\ns_add_u32 s62, s62, s22\ns_lshl_b32 s22, s20, 10\ns_add_u32 s62, s62, s22\ns_add_u32 s62, s62, {W1_F}')
    B.label('SB_END')
    return B.finish()

def slotB_proc():
    B = Asm()
    H = 16*PB; D = 216
    B(f'v_lshrrev_b32 v12, 2, v2\nv_mul_u32_u24 v12, {PB}, v12\nv_and_b32 v13, 3, v2\nv_add_u32 v12, {LB}, v12')
    B(f's_mov_b32 s96, s62\ns_mov_b32 s99, {OOBS}')
    B('s_cmp_eq_u32 s58, 2\ns_cbranch_scc1 PB_W1')
    B('s_mul_i32 s6, s3, 160\nv_add_u32 v12, s6, v12\nv_lshl_add_u32 v14, v13, 3, v12\nv_lshl_add_u32 v12, v13, 4, v12\nv_subrev_u32 v15, s61, v12\nv_add_u32 v12, s61, v12')
    for t in range(5):
        d = D + t*4
        ad, off = ('v15' if t >> 1 else 'v12', 64*(t >> 1) + 8*(t & 1)) if t < 4 else ('v14', 128)
        B(f'ds_read_b64_tr_b16 {a(d,2)}, {ad} offset:{off}\nds_read_b64_tr_b16 {a(d+2,2)}, {ad} offset:{off+H}', 'touch')
    B('s_movk_i32 s97, 1024\ns_branch PB_END')
    B.label('PB_W1')
    B('s_lshl_b32 s6, s3, 5\nv_add_u32 v12, s6, v12\nv_lshl_add_u32 v12, v13, 3, v12')
    for i in range(6):
        d = D + i*4
        B(f'ds_read_b64_tr_b16 {a(d,2)}, v12 offset:{128*i}\nds_read_b64_tr_b16 {a(d+2,2)}, v12 offset:{128*i+H}', 'touch')
    B('s_mov_b32 s97, 81920\ns_lshr_b32 s6, s61, 1\ns_or_b32 s6, s6, s3\ns_cmp_lt_u32 s6, 2\ns_cmov_b32 s99, 81920')
    B.label('PB_END')
    return B.finish()

def slotC_proc():
    B = Asm()
    B('s_cmp_lt_u32 s2, 104\ns_cbranch_scc1 PC_M')
    pad_st(B, 1)
    B('s_branch PC_END')
    B.label('PC_M')
    T_ = Buf(); mod_proc(T_, LC, 51, 53, 1, 256+176)
    for l_, t_ in T_.l: B(l_.replace('v12', 'v250').replace('v13', 'v251'), t_)
    B.label('PC_END')
    return B.finish()

class P:
    NXF, NX0 = 0, 13
    XROT = True
    SEQ = 'E a x12 l0 f F b0 l1 l2 b1 m g l3:r l4'
    FINE = False
    ROTW = ROT1 = False
    FC_STEP, SC_ISSUE = 7, 4
    RAS, XAS = 8, 8
    RA0, XA0 = 4, 2
    CAT, W1, MP, XB2 = -1, 3, 'sw', 0
    LEAD, URG = 10, (0, 2)
    WPRI, PB2, PB3, PI2, AQ2, PI3, AQ3, GSH, IV3, ST3 = 0, 0, 8, 12, 18, 26, 32, 0, 70, 100
    ON, OG = 2, 4
    ST2 = False
    DL0, DL1, DL2, RH, IVH3, HAP = 6, 6, 8, 0.5, 80, 0
    EL = 4
    OW, ZE_K, G2N, G2N2 = 'w', 0, 30, 30
    UK, UE0 = 10, 4
    RB0, RBS = 2, 10
    WZ, CF1, IVH0, IVH1, IVH2 = 4, 30, 100, 60, 60
    RXG, G2O, IVZ2, UP, WU, UT, ZERO3, Z1, CF0, RED_AT = 60, 0.1, 200, 30, 4, 1, False, 12, 30, 6
    DBG = 0
    STA = STB_ = ()
    BSWAP = True
    OPRE = 8
    NPRE = 3
    W0 = 6
    FB_STEP, A1, A2, SB_ISSUE, SB_CHECK = 3, 8, 14, 11, 14
    RA, RB = 4, 2
    XA, XB = 2, 0
    UE, UO, U3, G2E, G2F, WO0, WE0, W30 = 2, 1.5, 2, 0.2, 20, 8, 4, 4
    IVA, IVE, IVO, IVZ, OST, EST, OE_AT, O0E, O0O = 80, 80, 80, 100, 100, 150, 50, 14, 14
    OE_PUB = 17
    IV = 80
    OO_K, OO_U = 36, 36
    U0, ZP = 30, 1
    ZF, ZI, ZA, ZQ, R1, R1B, N1, NE2 = 14, 50, 62, 8, 0.5, 0.4, 20, 6
    ZN, X1, X2, R2 = 4, 0, 0, 2
    HA_PUB, CF_AT = 16, 19
    HB_ISSUE, HB_CHECK, OUTF = 3, 7, ''
WOL = 112704
MODF = X4
BIA = 157760
RXA = 240
PH_OE, PH_OO, PH_ZE, PH_ZO, PH_HA, PH_HB, PH_HC = range(7)
SPIN = 0x40000
NBS = 6
FLC = 0x8800

def kp():
    A = Asm()
    KN = NAME + '_kernel'
    A('s_cmp_ge_u32 s2, 256\ns_cbranch_scc1 KP_END')
    A('s_load_dwordx16 s[28:43], s[0:1], 0\ns_load_dwordx8 s[44:51], s[0:1], 64\ns_load_dwordx2 s[52:53], s[0:1], 96')
    A('s_getpc_b64 s[20:21]')
    A.label('PC0', IF)
    A('s_lshr_b32 s7, s2, 3\ns_lshl_b32 s6, s7, 8\nv_add_u32 v1, s6, v0\nv_lshrrev_b32 v1, 4, v1\nv_lshlrev_b32 v1, 7, v1\nv_min_u32 v1, KP_END-PC0, v1')
    A('global_load_dword v243, v1, s[20:21]', tag='touch')
    A('s_and_b32 s6, s2, 7')
    A('s_lshr_b32 s4, s6, 1\ns_lshl_b32 s4, s4, 3\ns_lshr_b32 s5, s7, 2\ns_add_u32 s4, s4, s5')
    A('s_and_b32 s5, s6, 1\ns_lshl_b32 s5, s5, 2\ns_and_b32 s7, s7, 3\ns_add_u32 s5, s5, s7')
    A('v_lshrrev_b32 v1, 6, v0\nv_and_b32 v2, 63, v0\nv_readfirstlane_b32 s3, v1\nv_lshlrev_b32 v1, 4, v2')
    A('s_and_b32 s6, s3, 1\ns_lshl_b32 s60, s6, 4\ns_lshr_b32 s6, s3, 1\ns_lshl_b32 s6, s6, 2\ns_add_u32 s60, s60, s6')
    A('s_sub_u32 s6, s2, 80\ns_mul_i32 s56, s6, 10923\ns_lshr_b32 s56, s56, 16\ns_mul_i32 s57, s56, 6\ns_sub_u32 s57, s6, s57')
    A('s_and_b32 s22, s2, 7\ns_lshr_b32 s23, s2, 3\ns_mul_i32 s54, s22, 10\ns_add_u32 s54, s54, s23')
    A('s_mul_i32 s55, s54, 3277\ns_lshr_b32 s55, s55, 16\ns_mul_i32 s24, s55, 20\ns_sub_u32 s54, s54, s24')
    A('s_mul_i32 s22, s22, 7\ns_add_u32 s22, s22, s23\ns_sub_u32 s22, s22, 5\ns_sub_u32 s23, s22, 40\ns_cmp_ge_u32 s22, 60\ns_cselect_b32 s22, s23, s22\ns_cselect_b32 s23, 1, 0')
    A('s_cmp_ge_u32 s2, 200\ns_cselect_b32 s54, s22, s54\ns_cselect_b32 s55, s23, s55')
    A('s_lshl_b32 s22, s56, 5\ns_add_u32 s22, s22, s60\ns_mul_i32 s22, s22, 3840\ns_mul_i32 s23, s57, 640\ns_add_u32 s22, s22, s23')
    A('s_mul_i32 s24, s55, 160\ns_mul_i32 s23, s3, 40\ns_add_u32 s24, s24, s23\ns_mul_i32 s24, s24, 7680\ns_lshl_b32 s23, s54, 7\ns_add_u32 s24, s24, s23')
    A('v_lshrrev_b32 v12, 3, v2\nv_and_b32 v15, 6, v12\nv_mul_u32_u24 v12, 7680, v12\nv_and_b32 v13, 7, v2\nv_xor_b32 v15, v15, v13\nv_lshl_add_u32 v254, v15, 4, v12')
    A(f's_mov_b32 s25, 61440\ns_mov_b32 s26, 61440\ns_movk_i32 s27, 1024\ns_movk_i32 s58, 5120\ns_mov_b32 s59, -1\ns_mov_b32 s18, {SZ["wmod"]}\ns_mov_b32 s19, 0x20000')
    A(f's_cmp_lt_u32 s6, 120\ns_cselect_b32 s95, 1, 0\ns_cselect_b32 s24, s22, s24\ns_cmov_b32 s25, 3840\ns_cmov_b32 s26, 19200\ns_cmov_b32 s27, {PA}\ns_cmov_b32 s58, {8*PA}\ns_cmov_b32 s59, 0xff\ns_cmov_b32 s18, {SZ["wqkv"]}\ns_cselect_b64 vcc, -1, 0')
    A('v_cndmask_b32 v12, v254, v1, vcc\ns_mul_i32 m0, s3, s58')
    XR, XN = 116, 16
    WAr = [4, 6, 7, 8, 9]
    A('v_lshrrev_b32 v3, 4, v2\nv_and_b32 v5, 15, v2\ns_lshl_b32 s6, s3, 2\nv_add_u32 v15, s6, v3')
    A('v_mul_u32_u24 v14, 2560, v15\nv_lshl_add_u32 v14, v5, 4, v14')
    A('v_xor_b32 v15, v15, v13\nv_lshlrev_b32 v15, 4, v15\nv_lshl_add_u32 v15, v5, 8, v15')
    A('v_lshlrev_b32 v13, 3, v0')
    A('s_lshl_b32 s8, s4, 6\ns_cmp_lt_u32 s3, 2\ns_cselect_b32 s9, 17, 0')
    A('s_and_b32 s6, s5, 3\ns_cmp_eq_u32 s6, 3\ns_cselect_b32 s6, 0, s6\ns_and_b32 s10, s5, 1' if P.XROT else 's_mov_b32 s6, 0\ns_mov_b32 s10, 0')
    for i in range(5):
        if i < 3:
            A(f's_add_u32 s7, s6, {i}\ns_sub_u32 s22, s7, 3\ns_cmp_ge_u32 s7, 3\ns_cselect_b32 s7, s22, s7')
            A('s_lshl_b32 s22, s7, 5\ns_cmp_eq_u32 s7, 0\ns_cselect_b32 s22, s9, s22\ns_sub_u32 s22, s22, 32')
        else:
            A(f's_xor_b32 s7, s10, {i-3}\ns_lshl_b32 s22, s7, 5\ns_add_u32 s22, s22, 1\ns_add_u32 s7, s7, 3')
        A(f's_add_u32 s22, s22, s8\ns_mul_i32 s22, s22, 1280\nv_add_u32 v{WAr[i]}, s22, v14\ns_mul_i32 s7, s7, 20480\nv_add_u32 v{244+i}, s7, v15')
    A(f's_mov_b32 s10, {SZ["x"]}\ns_mov_b32 s11, 0x20000')
    A('s_cmp_eq_u32 s95, 1\ns_waitcnt lgkmcnt(0)\ns_cselect_b32 s16, s30, s46\ns_cselect_b32 s17, s31, s47\ns_mov_b32 s8, s28\ns_mov_b32 s9, s29')
    st = St(A, 0, wsp=12); st()
    st2 = st if P.ST2 else (lambda: None)
    srd(A, 96, 44, SZ['c'])
    A('buffer_load_dwordx2 v[240:241], v13, s[96:99], 0 offen')
    xl = [(i, m) for i in range(5) for m in range(5)]
    xn = [0]
    def xload(B, n):
        for i, m in xl[xn[0]:xn[0]+n]:
            B(f'buffer_load_dwordx4 {v(XR+(i*5+m)*4,4)}, v{WAr[i]}, s[8:11], 0 offen offset:{256*m}')
        xn[0] += n
    xload(A, P.NXF)
    A('s_mov_b32 exec_hi, s59')
    for i in range(8):
        if i == 5: A('OPT s_cmp_eq_u32 s95, 0')
        A('buffer_load_dwordx4 v12, s[16:19], s24 offen nt lds', 'la')
        if i < 7: A(f's_add_u32 s24, s24, s{26 if i == 3 else 25}\ns_add_u32 m0, m0, s27')
    A('ENDOPT')
    A('s_mov_b64 exec, -1')
    A(f's_load_dword s94, s[52:53], {EPO}')
    srd(A, 12, 52, WS_END)
    xload(A, P.NX0)
    A(f'v_mov_b32 v11, {OOB}\nv_cmp_eq_u32 vcc, 0, v0\nv_cndmask_b32_e64 v10, v11, 0, vcc')
    A(f'v_add_u32 v242, {SILU}, v13')
    A('s_mul_i32 s6, s5, 448\ns_mul_i32 s7, s5, 384\ns_add_u32 s7, s7, 384\ns_cmp_ge_u32 s5, 6\ns_cselect_b32 s6, s7, s6\ns_mul_i32 s7, s5, 160')
    A(f's_mov_b32 s98, {SZ["b1"]}\ns_mov_b32 m0, {BIA}\ns_bitcmp1_b32 s3, 0\ns_cselect_b32 s96, s42, s38\ns_cselect_b32 s97, s43, s39\ns_cselect_b32 s6, s7, s6\ns_cmov_b32 s98, {SZ["b2"]}\ns_cmov_b32 m0, {BIA+512}')
    A('s_mov_b64 exec, 0xfffffff\nbuffer_load_dwordx4 v1, s[96:99], s6 offen lds\ns_mov_b64 exec, -1')
    A.raw(slotB_decode())
    A(f's_mul_i32 s94, s94, 0x2c9277b5\ns_add_u32 s94, s94, 0xac564b05')
    A('s_mov_b32 s100, 0x3f803f80')
    srd(A, 16, 46, SZ['wmod'])
    A('s_and_b32 s6, s2, 7\ns_mul_i32 s6, s6, 13\ns_lshr_b32 s7, s2, 3\ns_add_u32 s6, s6, s7\ns_add_u32 s6, s6, 56\ns_mul_i32 s53, s6, 1639\ns_lshr_b32 s53, s53, 16\ns_mul_i32 s51, s53, 40\ns_sub_u32 s51, s6, s51\ns_add_u32 s51, s51, 20')
    A('s_mul_i32 s6, s53, 160\ns_mul_i32 s7, s3, 40\ns_add_u32 s6, s6, s7\ns_mul_i32 s6, s6, 7680\ns_lshl_b32 s7, s51, 7\ns_add_u32 s50, s6, s7')
    A(f's_cmp_lt_u32 s2, 104\ns_cselect_b32 s50, s50, 0\ns_cselect_b32 s6, 0, {OOB}\nv_add_u32 v0, s6, v254')
    A('s_and_b32 s44, s94, 0xff\ns_bfe_u32 s45, s94, 0x80008\ns_bfe_u32 s46, s94, 0x80010\ns_lshr_b32 s47, s94, 24')
    A('v_and_b32 v12, 1, v2\nv_cmp_eq_u32 s[32:33], 1, v12\nv_and_b32 v12, 2, v2\nv_cmp_eq_u32 s[36:37], 2, v12')
    QM = ['s[32:33]', 's[36:37]', 's[40:41]']
    A(f's_lshl_b32 s23, s3, 10\ns_add_u32 s23, s23, {MODP}')
    A(f's_lshr_b32 s25, s5, 2\ns_lshl_b32 s25, s25, 8\ns_add_u32 s25, s25, {FLA}')
    A(f'v_mov_b32 v12, 0\nv_mov_b32 v13, 0\nv_mov_b32 v14, {ZERO}\nds_write_b64 v14, v[12:13]')
    S0 = 14; T_ = 13
    def lnrows(B, i):
        a_, b_ = S0, S0+1
        B(f'v_mov_b32 v{a_}, 0\nv_mov_b32 v{b_}, 0')
        for d in range(20):
            r = XR + i*20 + d
            B(f'v_dot2_f32_bf16 v{a_}, v{r}, s100, v{a_}\nv_dot2c_f32_bf16 v{b_}, v{r}, v{r}')
        for k, n in enumerate((8, 4, 2, 1)):
            B(f'v_add_f32_dpp v{a_}, v{a_}, v{a_} row_ror:{n} row_mask:0xf bank_mask:0xf\nv_add_f32_dpp v{b_}, v{b_}, v{b_} row_ror:{n} row_mask:0xf bank_mask:0xf')
            for d in range(5): unpack(B, XN + i*40 + 2*(5*k + d), XR + i*20 + 5*k + d)
        B(f'v_mul_f32 v{a_}, {fl(1/640)}, v{a_}\nv_mul_f32 v{b_}, {fl(1/640)}, v{b_}\nv_fma_f32 v{b_}, -v{a_}, v{a_}, v{b_}')
        B(f'v_max_f32 v{b_}, 0, v{b_}\nv_add_f32 v{b_}, {fl(1e-5)}, v{b_}\nv_rsq_f32 v{T_}, v{b_}')
        B(f'v_mul_f32_e64 v{b_}, -v{a_}, v{T_}\nv_mov_b32 v{a_}, v{T_}')
        for d in range(20):
            t = XN + i*40 + 2*d
            B(f'v_pk_fma_f32 {pr(t)}, {pr(t)}, {pr(a_)}, {pr(a_)} op_sel:[0,0,1] op_sel_hi:[1,0,1]')
    M0 = 216
    def mtload(B):
        for i in range(5):
            B.group(f's_add_u32 s6, s23, {4096*i}\nbuffer_load_dwordx4 {v(M0+4*i,4)}, v1, s[12:15], s6 offen sc1', 'mt')
    def rawloop(Bk):
        A.ins.append(Ins('s_nop 0')); A.ins[-1].kind = 'label'; A.ins[-1].op = '.raw'; A.ins[-1].text = Bk.finish().rstrip('\n')
    moved = [False]; done = set()
    bi = [0]
    def bstore(B, n=1, grp=False):
        for _ in range(n):
            i = bi[0]
            if i >= NBS: return
            bi[0] += 1
            t_ = f'buffer_store_dwordx4 {a(216+4*i,4)}, v249, s[12:15], s96 offen sc1' + (f'\ns_add_u32 s96, s96, s{99 if i == 4 else 97}' if i < 5 else '')
            if grp: B.group(t_, 'pb')
            else: B(t_, 'pb')
    WV = 192
    def wreg(s_, t): return 256 + s_*16 + t*4 if s_ < 16 else WV + (s_-16)*16 + t*4
    wl = [(s_, t) for s_ in range(20) for t in range(4)]
    QA = []
    def busy(): return set().union(*[Ins(l).r | Ins(l).w for q in QA for x in q.l for l in x[0].split('\n')])
    wi = [0]; wlim = [44]
    def wload(B, n=1, grp=False):
        k = 0
        for _ in range(n):
            if wi[0] >= min(wlim[0], 80 if bi[0] == NBS else 54): break
            s_, t = wl[wi[0]]
            if regs_of(R(wreg(s_, t), 4)) & busy(): break
            wi[0] += 1; k += 1
            ld = f'buffer_load_dwordx4 {R(wreg(s_, t), 4)}, {"v10" if P.DBG == 1 else "v1"}, s[12:15], s24 offen offset:{1024*t} sc1'
            (B.group if grp else B)(ld if t < 3 else f'OPT s_cmp_eq_u32 s3, 3\n{ld}\nENDOPT\ns_add_u32 s24, s24, 4096' + ('\ns_sub_u32 s24, s24, s38' if s_ == 9 else ''))
        return k
    def facheck():
        A('v_cmp_ne_u32 vcc, s94, v250\ns_mov_b32 s7, 0')
        A.label('SYA', IF)
        A('s_nop 3'); A('s_cbranch_vccz SYA_DONE', IF)
        Bk = Asm()
        Bk('s_sleep 2\nbuffer_load_dword v250, v251, s[12:15], s25 offen sc1\ns_waitcnt vmcnt(0)\nv_cmp_ne_u32 vcc, s94, v250')
        rawloop(Bk)
        A(f's_add_u32 s7, s7, 1\ns_cmp_lt_u32 s7, {SPIN}'); A('s_cbranch_scc1 SYA', IF)
        A.label('SYA_DONE', IF)
        A(f's_lshl_b32 s24, s5, 2\ns_add_u32 s24, s24, s3\ns_mul_i32 s24, s24, {20*4096}\ns_add_u32 s24, s24, {WQ_F}')
        A(f's_and_b32 s41, s4, {1 if P.ROTW else 0}\ns_mul_i32 s38, s41, 40960\ns_add_u32 s24, s24, s38\ns_lshl_b32 s38, s38, 1\ns_mul_i32 s39, s41, 20480\ns_sub_u32 s39, 10240, s39\ns_sub_u32 s40, 61440, s39\ns_mul_i32 s41, s41, 10240')
        done.add('c')
    def bproc():
        A.raw(slotB_proc()); done.add('p')
    def cproc():
        A.raw(slotC_proc(), nvm=1, tag='pb'); done.add('C')
    def loads(tok):
        L = Buf()
        for t_ in tok.split('+'):
            if t_[0] == 'x': xload(L, int(t_[1:]))
            elif t_ == 'b0':
                for i in range(8):
                    pre = f's_mov_b32 m0, s31\ns_mov_b32 exec_hi, s35\n'
                    post = '\ns_mov_b64 exec, -1' + (f'\ns_add_u32 s28, s28, s{30 if i == 3 else 29}\ns_add_u32 s31, s31, {PB}' if i < 7 else '')
                    L.group(pre + f'buffer_load_dwordx4 v249, s[96:99], s28 offen nt lds' + post, 'sb')
                done.add('b0')
            elif t_ == 'b1':
                for i in range(5):
                    L.group(f's_mul_i32 s6, s3, 5120\ns_add_u32 m0, s6, {LC + 1024*i}\nbuffer_load_dwordx4 v0, s[16:19], s50 offen nt lds\ns_add_u32 s50, s50, 61440', 'sb')
                done.add('b1')
            elif t_[0] == 's':
                assert 'p' in done
                bstore(L, int(t_[1:]), True)
            elif t_[0] == 'w':
                assert 'c' in done
                wload(L, int(t_[1:]), True)
            elif t_ == 'r':
                L.group('s_lshl_b32 s6, s4, 1\ns_and_b32 s7, s3, 1\ns_add_u32 s6, s6, s7\ns_mul_i32 s6, s6, 40960\ns_mul_i32 s7, s5, 160\ns_add_u32 s6, s6, s7\ns_lshr_b32 s7, s3, 1\ns_lshl_b32 s57, s7, 6\ns_add_u32 s57, s57, s6'
                        f'\nv_mul_u32_u24 v252, 2560, v5\nv_lshl_add_u32 v253, v3, 3, v252\nv_lshl_add_u32 v252, v3, 4, v252\ns_mul_i32 s7, s7, {OOB}\nv_add_u32 v253, s7, v253'
                        f'\nbuffer_load_dwordx4 {a(RXA,4)}, v252, s[8:11], s57 offen')
                L.group(f'buffer_load_dwordx4 {a(RXA+6,4)}, v252, s[8:11], s57 offen offset:1280')
                L.group(f'buffer_load_dwordx2 {a(RXA+4,2)}, v253, s[8:11], s57 offen offset:128')
                L.group(f'buffer_load_dwordx2 {a(RXA+10,2)}, v253, s[8:11], s57 offen offset:1408')
                done.add('r')
            elif t_ == 'F':
                T_ = Buf(); prew(T_, 236); cur = []
                for l_, _ in T_.l:
                    cur.append(l_)
                    if l_.startswith('buffer'): L.group('\n'.join(cur), 'pb'); cur = []
                done.add('F')
            elif t_ == 'm': mtload(L)
            elif t_ == 'g':
                L.group('v_min_u32 v251, 59, v2\nv_lshlrev_b32 v251, 2, v251\nbuffer_load_dword v250, v251, s[12:15], s25 offen sc1')
            else: raise ValueError(t_)
        return L
    def prew(S, PW=236):
        for k in range(4): S(f'v_mov_b32 v{PW+k}, 0')
        S(f's_and_b32 s6, s5, 3\ns_lshl_b32 s7, s4, 2\ns_add_u32 s6, s6, s7\ns_mul_i32 s6, s6, 20480\ns_lshl_b32 s7, s3, 10\ns_add_u32 s6, s6, s7')
        S(f's_lshr_b32 s7, s5, 2\ns_mul_i32 s7, s7, {Z_F-O_F}\ns_add_u32 s6, s6, s7\ns_add_u32 s6, s6, {O_F+16384}')
        S(f'buffer_store_dwordx4 {v(PW,4)}, v1, s[12:15], s6 offen sc1', tag='pb')
        S(f'v_lshrrev_b32 v{PW+4}, 3, v2\nv_lshlrev_b32 v{PW+4}, 12, v{PW+4}\nv_and_b32 v{PW+5}, 7, v2\nv_lshl_add_u32 v{PW+4}, v{PW+5}, 4, v{PW+4}')
        S(f's_lshl_b32 s6, s4, 7\ns_add_u32 s6, s6, {FLG8}\ns_or_b32 s7, s5, s3')
        S(f's_cmp_eq_u32 s7, 0\ns_cselect_b32 s6, s6, s14')
        S(f'buffer_store_dwordx4 {v(PW,4)}, v{PW+4}, s[12:15], s6 offen sc1', tag='pb')
    for step in P.SEQ.split():
        if xn[0] >= 25 and not moved[0]:
            for i in range(5): A(f'v_mov_b32 v{WAr[i]}, v{244+i}')
            moved[0] = True
        if step[0] == 'l':
            i = int(step[1]); assert xn[0] >= 5*i + 5
            M = Buf(); lnrows(M, i)
            L = loads(step[3:]) if len(step) > 2 else Buf()
            sprinkle(A, M, L, max(1, 116 // max(1, len(L.l))))
        elif step == 'E':
            A('s_not_b32 s6, s94\nv_mov_b32 v252, s6\nv_mov_b32 v253, s6\nv_mov_b32 v254, s6\nv_mov_b32 v255, s6')
            A('v_lshlrev_b32 v12, 6, v3\nv_cmp_eq_u32 vcc, 0, v5\nv_cndmask_b32 v13, v11, v12, vcc')
            A(f's_lshl_b32 s6, s54, 10\ns_lshl_b32 s7, s55, 4\ns_add_u32 s6, s6, s7\ns_lshl_b32 s7, s3, 8\ns_add_u32 s6, s6, s7\ns_add_u32 s6, s6, {MODP}')
            A('s_cmp_eq_u32 s95, 0\ns_cselect_b32 s6, s6, s14')
            A('buffer_store_dwordx4 v[252:255], v13, s[12:15], s6 offen sc1', 'ee')
        elif step == 'a':
            A(f's_mov_b32 s6, {fl(-LOG2E)}')
            unpack(A, 236, 240); unpack(A, 238, 241)
            for k in range(4): A(f'v_mul_f32 v{232+k}, s6, v{236+k}')
            for k in range(4): A(f'v_exp_f32 v{232+k}, v{232+k}')
            for k in range(4): A(f'v_add_f32 v{232+k}, 1.0, v{232+k}')
            for k in range(4): A(f'v_rcp_f32 v{232+k}, v{232+k}')
            for k in range(4): A(f'v_mul_f32 v{236+k}, v{236+k}, v{232+k}')
            A('v_cvt_pk_bf16_f32 v240, v236, v237\nv_cvt_pk_bf16_f32 v241, v238, v239')
            A(f'ds_write_b64 v242, v[240:241]')
            A.wait_tag('la')
            st()
            A('s_waitcnt lgkmcnt(0)\ns_barrier')
            A.raw(slotA_proc(), nvm=5, tag='sa'); done.add('a')
        elif step == 't': st()
        elif step == 'c': facheck()
        elif step == 'p':
            assert {'b0', 'b1'} <= done
            A.wait_tag('sb'); A('s_barrier'); bproc(); A('s_waitcnt lgkmcnt(0)')
        elif step == 'C':
            assert 'p' in done
            cproc()
        elif step == 'F':
            prew(A, 236 if 'a' in done else 224); done.add('F')
        elif step == 'f':
            A(f's_sub_u32 s6, s2, 80\ns_and_b32 s7, s6, 1\ns_lshl_b32 s7, s7, 8\ns_lshr_b32 s6, s6, 1\ns_lshl_b32 s6, s6, 2\ns_add_u32 s6, s6, s7\ns_add_u32 s6, s6, {FLA}')
            A('s_cmp_eq_u32 s95, 1\ns_cselect_b32 s6, s6, s14\nv_mov_b32 v12, s94')
            A.wait_tag('sa'); A('s_barrier')
            A('buffer_store_dword v12, v10, s[12:15], s6 offen sc1')
            if not P.FINE: st()
        else:
            for l_, t_ in loads(step).l: A(l_, t_)
        if P.FINE: st()
    assert moved[0]
    srd(A, 16, 48, SZ['out'])
    A(f's_mov_b32 s20, {fl(20**-0.5 * LOG2E)}\ns_mov_b32 s21, {fl(1/640)}\ns_mov_b32 s22, {fl(1e-5)}')
    A(f's_lshl_b32 s52, s4, 7\ns_add_u32 s52, s52, {FLG8}\ns_add_u32 s54, s12, s52\ns_addc_u32 s55, s13, 0')
    A(f's_lshl_b32 s6, s5, 2\ns_add_u32 s52, s52, s6\ns_lshl_b32 s60, s3, 10')
    if not P.FINE: st()
    def untag(B, r, n, acc):
        for k in range(n): B(f'v_xor_b32 v{r+k}, s{44+(k&3)}, v{r+k}')
        B(f'v_or_b32 v{acc}, v{r}, v{r+1}')
        for k in range(2, n, 2): B(f'v_or3_b32 v{acc}, v{acc}, v{r+k}, v{r+k+1}')
        B(f'v_and_b32 v{acc}, 0xff, v{acc}')
    if 'c' not in done: facheck()
    A.wait_tag('mt')
    wload(A, P.W0)
    st()
    A('s_mov_b32 s7, 0')
    A.label('SYM', IF)
    untag(A, M0, 20, 13)
    A('v_cmp_ne_u32 vcc, 0, v13\ns_nop 3'); A('s_cbranch_vccz SYM_DONE', IF)
    Bk = Asm(); L = Buf(); mtload(L)
    Bk('s_sleep 2')
    for l_, t_ in L.l: Bk(l_, t_)
    Bk('s_waitcnt vmcnt(0)')
    rawloop(Bk)
    A(f's_add_u32 s7, s7, 1\ns_cmp_lt_u32 s7, {SPIN}'); A('s_cbranch_scc1 SYM', IF)
    A.label('SYM_DONE', IF)
    def quadsum(B, r, n):
        for k in range(4*n): B(f'v_add_f32_dpp v{r+k}, v{r+k}, v{r+k} quad_perm:[1,0,3,2] row_mask:0xf bank_mask:0xf')
        for k in range(0, 4*n, 2): B(f'v_cndmask_b32_e64 v{r+k}, v{r+k}, v{r+k+1}, {QM[0]}')
        for k in range(0, 4*n, 2): B(f'v_add_f32_dpp v{r+k}, v{r+k}, v{r+k} quad_perm:[2,3,0,1] row_mask:0xf bank_mask:0xf')
        for i in range(n): B(f'v_cndmask_b32_e64 v{r+4*i}, v{r+4*i}, v{r+4*i+2}, {QM[1]}')
    def modfin(B, r, plus1, hi=False):
        B(f'v_cvt_pk_bf16_f32 v{r}, 0, v{r}')
        if plus1:
            d = r if plus1 == 1 else r + 1
            B(f'v_add_f32 v{d}, 1.0, v{r}\nv_cvt_pk_bf16_f32 v{d}, 0, v{d}')
            if plus1 == 2: B(f'v_cndmask_b32_e64 v{r}, v{r}, v{d}, s[34:35]')
    A('s_cmp_ge_u32 s3, 2\ns_cselect_b64 s[34:35], -1, 0')
    A(f's_lshl_b32 s6, s3, 8\ns_add_u32 s6, s6, {MODF}\nv_lshl_add_u32 v12, v2, 2, s6')
    X = Buf()
    quadsum(X, M0, 5)
    for i in range(5):
        r = M0 + 4*i
        modfin(X, r, [0, 0, 2, 1, 1][i])
        X(f'ds_write_b32 v12, v{r} offset:{1024*i}')
    timed(A, X, wload, P.IV, first=0)
    A.wait_tag('sb'); A('s_waitcnt lgkmcnt(0)\ns_barrier')
    wload(A, P.W1)
    if 'p' not in done: bproc()
    st()
    A(f'v_lshlrev_b32 v15, 5, v5\nv_add_u32 v15, {MODF}, v15')
    def mread(B, m, M0=M0):
        d = M0 + (m & 1)*16
        B(f'ds_read_b128 {v(d,4)}, v15 offset:{512*m}\nds_read_b128 {v(d+4,4)}, v15 offset:{512*m+16}')
        B(f'ds_read_b128 {v(d+8,4)}, v15 offset:{2560+512*m}\nds_read_b128 {v(d+12,4)}, v15 offset:{2560+512*m+16}')
    def modul(B, m, i, pk, M0=M0):
        d0 = M0 + (m & 1)*16; b = XN + i*40 + 8*m
        if pk:
            for d in range(4): B(f'v_pk_fma_f32 {pr(b+2*d)}, {pr(b+2*d)}, {pr(d0+8+2*d)}, {pr(d0+2*d)}')
        else:
            for d in range(8): B(f'v_fma_f32 v{b+d}, v{b+d}, v{d0+8+d}, v{d0+d}')
        for d in range(4): B(f'v_cvt_pk_bf16_f32 v{b+d}, v{b+2*d}, v{b+2*d+1}')
        B(f'ds_write_b128 v{WAr[i]}, {v(b,4)} offset:{4096*m}')
    mread(A, 0)
    A('v_xor_b32 v12, v5, v3\nv_lshlrev_b32 v12, 4, v12\nv_lshl_add_u32 v12, v3, 8, v12\nv_add_u32 v12, s41, v12\nv_xor_b32 v13, 64, v12\nv_mov_b32 v14, s94')
    n = 0
    for m in range(5):
        if m < 4: mread(A, m+1)
        for i in range(P.NPRE):
            modul(A, m, i, True)
            c_ = P.MP[n % len(P.MP)]
            if c_ == 's' and bi[0] < NBS: bstore(A, 1)
            elif c_ != '-': wload(A, 2 if c_ == 'W' else 1)
            n += 1
    fb = lambda f: A('OPT s_cmp_lg_u32 s3, 0\ns_lshl_b32 s26, s2, 2\ns_add_u32 s26, s26, %d\nbuffer_store_dword v14, v10, s[12:15], s26 offen sc1\nENDOPT' % f)
    if P.FB_STEP < 0:
        assert bi[0] == NBS
        A.wait_tag('pb')
    A('s_waitcnt lgkmcnt(0)\ns_barrier')
    if P.FB_STEP < 0: fb(FLB)
    st()
    accQ = lambda T: 16 + (T-1)*4 if T < 3 else 60 + (T-3)*4
    accK = lambda T: 24 + T*4 if T < 3 else 68 + (T-3)*4
    accV = lambda T: 36 + T*4 if T < 3 else 76 + (T-3)*4
    acc4 = lambda T: 48 + T*4 if T < 3 else 84 + (T-3)*4
    AF = 92
    def afr(s_, T): return AF + (s_ & 1)*12 + T*4 if T < 3 else AF + (s_ & 1)*8 + (T-3)*4
    def aread(B, s_, T):
        d = afr(s_, T)
        B(f'ds_read_b128 v[{d}:{d+3}], v{12 + (s_ & 1)} offset:{((T % 3)*20 + s_ % 10)*1024}')
    for T in range(3): aread(A, 0, T)
    w1l = [(s_, 2*e + t) for e in range(2) for s_ in range(20) for t in range(2)]
    w1i = [0]; w1lim = [40]; w1opt = [False]; low = [False]
    def w1load(B, n=1, limit=20):
        k = 0
        for _ in range(n):
            if w1i[0] >= w1lim[0]: break
            s_, t = w1l[w1i[0]]
            if s_ >= limit: break
            w1i[0] += 1; k += 1
            so, vo = ('s53', 'v11') if t < 2 else ('s27', 'v1')
            ld = f'buffer_load_dwordx4 {R(wreg(s_, t), 4)}, {vo}, s[12:15], {so} offen offset:{2048*(s_ & 1) + 1024*(t & 1)} sc1'
            B(f'OPT s_cmp_eq_u32 s3, 3\n{ld}\nENDOPT' if w1opt[0] else ld)
            if (s_ & 1) and (t & 1): B(f's_add_u32 {so}, {so}, 4096')
        return k
    def woaddr(k): return WOL + (10*(k//25) + k%25)*1024 if k % 25 < 10 else (15*(k//25) + k%25 - 10)*1024
    woi = [0]; wolim = [0]
    def woload(B, n=1):
        k = 0
        for _ in range(n):
            i = woi[0]
            if i >= wolim[0]: break
            woi[0] += 1; k += 1
            o = i % 4 if i < 10 else (i - 10) % 4
            B(f'buffer_load_dwordx4 v1, s[12:15], s26 offen offset:{1024*o} sc1 lds', tag='wo')
            if i == 9: B('s_add_u32 s26, s26, 2048\ns_mul_i32 m0, s3, 15360')
            elif o == 3: B('s_add_u32 s26, s26, 4096\ns_add_u32 m0, m0, 4096')
        return k
    gs = GS(A)
    def g1step(s_, tiles, rate):
        B = Buf()
        first = tiles[0] == 0
        if s_ in (P.STA if first else P.STB_): st()
        if first: assert wi[0] >= 4*(s_+1), s_
        L = []
        for T in tiles:
            af = v(afr(s_, T), 4)
            mm = lambda acc, a_, b_: L.append(f'{MF} {v(acc,4)}, {a_}, {b_}, {v(acc,4) if s_ else "0"}')
            if T > 0: mm(accQ(T), R(wreg(s_, 0), 4), af)
            mm(accK(T), R(wreg(s_, 1), 4), af)
            mm(accV(T), af, R(wreg(s_, 2), 4))
            mm(acc4(T), R(wreg(s_, 3), 4), af)
        nxt = [(s_+1, T) for T in tiles] if s_ < 19 else ([(0, 3), (0, 4)] if first else [])
        n = int(rate*(s_+1)) - int(rate*s_)
        pos = ([5, 9, 3, 7, 4, 8] if first else [3, 6, 4, 2])[:n]
        for g, x in enumerate(L):
            B(x)
            if g == len(L) - 1:
                need = [v(afr(*y), 4) for y in nxt]
                if first and s_ < 19: need.append(R(wreg(s_+1, 0), 16))
                if need: B('NEED ' + ', '.join(need))
            if g < len(nxt): aread(B, *nxt[g])
            if s_ in (8, 9) and g == 2: B(f'v_add_u32 v{4+s_}, s39, v{4+s_}')
            if first and s_ in (18, 19) and g == 2: B(f'v_add_u32 v{s_-6}, s40, v{s_-6}')
            if g in pos:
                if first:
                    if bi[0] < NBS: bstore(B, 1)
                    elif not wload(B, 1): woload(B, 1)
                elif not woload(B, 1): w1load(B, 1, s_)
        return B
    EV, OD = [0, 1, 2], [3, 4]
    gone = lambda old, *qs: not any(x is y for q in qs for x in q.l for y in old)
    SC = Buf(); S = Buf(); SS = Buf(); SS0 = Buf()
    T_ = Buf()
    if 'F' not in done: prew(T_, 116)
    mod_proc(T_, LC, 51, 53, 1, 256+176, False)
    for l_, t_ in T_.l:
        if l_.startswith('buffer_store_dwordx4 v[252'): SC('s_cmp_lt_u32 s2, 104\ns_cselect_b32 s63, s63, s14')
        l_ = re.sub(r'\bs6\b', 's63', re.sub(r'\bs7\b', 's62', re.sub(r'\bv12\b', 'v122', re.sub(r'\bv13\b', 'v123', l_))))
        SC(l_.replace('v[252:255]', 'v[116:119]'), 'pc')
    assert 'r' in done and P.NPRE == 3
    for r in range(12): S(f'v_accvgpr_read_b32 v{124+r}, a{RXA+r}')
    mread(S, 4, 60)
    for m in range(4, -1, -1):
        if m: mread(S, m-1, 60)
        for i in (4, 3): modul(S, m, i, False, 60)
    mod_ = list(S.l)
    for r in range(12): S(f'v_mov_b32 v{180+r}, v{124+r}')
    PV = 116
    QF, KF, KH, VS, VH, V4, V4H, ONE = 108, 116, 128, 132, 138, 140, 146, 148
    BC, BP, BH = 152, 156, 160
    AD = 164
    S(f'v_mov_b32 v{ONE}, s100\nv_mov_b32 v{ONE+1}, s100\nv_mov_b32 v{ONE+2}, s100\nv_mov_b32 v{ONE+3}, s100')
    SS0('s_mul_i32 s61, s5, 7\ns_mul_i32 s62, s5, 6\ns_add_u32 s62, s62, 6\ns_cmp_ge_u32 s5, 6\ns_cselect_b32 s61, s62, s61\ns_cselect_b32 s101, 6, 7')
    for e, (so, vo, sp) in enumerate((('s53', 'v11', 's98'), ('s27', 'v15', 's99'))):
        if e == 0: SS0(f's_and_b32 s50, s4, {1 if P.ROT1 else 0}\ns_cmp_eq_u32 s3, 3\ns_cselect_b32 s50, 0, s50')
        SS0(f's_lshl_b32 s62, s3, 1\ns_add_u32 s62, s62, {e}\ns_xor_b32 s62, s62, s50\ns_add_u32 {sp}, s62, s61')
        if e == 0: SS0(f's_cmp_lt_u32 s62, s101\ns_cselect_b32 s62, 0, {OOB}\nv_add_u32 {vo}, s62, v1')
        SS0(f's_mul_i32 {so}, {sp}, 40960\ns_add_u32 {so}, {so}, {W1_F}')
    SS0(f's_mul_i32 s26, s5, {100*1024}\ns_mul_i32 s62, s3, 25600\ns_add_u32 s26, s26, s62\ns_add_u32 s26, s26, {WO_F}\ns_mul_i32 s62, s3, 10240\ns_add_u32 m0, s62, {WOL}')
    S('v_lshlrev_b32 v4, 3, v2')
    S(f's_mul_i32 s7, s3, 2560\ns_add_u32 s7, s7, {X4}\ns_cmp_eq_u32 s3, 3\ns_cselect_b32 s7, {ZERO+64}, s7\nv_add_u32 v{AD+10}, s7, v4')
    S(f'v_lshlrev_b32 v7, 2, v3\nv_sub_u32 v7, v5, v7')
    S(f'v_mov_b32 v6, {fl(-1e30)}')
    for r in range(4):
        S(f'v_subrev_u32 v{AD}, {r}, v7')
        S(f'v_cmp_gt_u32 s[58:59], 8, v{AD}\nv_cmp_gt_i32 s[56:57], -8, v{AD}')
        S(f'v_cndmask_b32_e64 v{BC+r}, v6, 0, s[58:59]\nv_cndmask_b32_e64 v{BP+r}, v6, 0, s[56:57]')
    S('v_cmp_gt_i32 s[56:57], -5, v7')
    S('s_cmp_eq_u32 s4, 0\ns_cselect_b64 s[58:59], -1, 0')
    for r in range(4): S(f'v_cndmask_b32_e64 v{BH+r}, v{BP+r}, v6, s[58:59]')
    S(f'v_cmp_eq_u32 s[58:59], s3, v3')
    S(f'v_add_u32 v{AD+5}, {X4}, v4')
    S(f'v_xor_b32 v{AD}, 64, v{AD+5}')
    S(f'v_lshrrev_b32 v{AD+8}, 2, v2\nv_lshlrev_b32 v{AD+8}, 3, v{AD+8}\ns_lshl_b32 s7, s3, 7\ns_add_u32 s7, s7, {X4+5120}\nv_add_u32 v{AD+8}, s7, v{AD+8}\nv_xor_b32 v{AD+9}, 64, v{AD+8}')
    S(f'v_mov_b32 v6, {ZERO}')
    for T in range(1, 5):
        S(f'v_add_u32 v7, {512*T}, v{AD+5}\nv_cndmask_b32_e64 v{AD+T}, v6, v7, s[58:59]')
    S(f'v_and_b32 v6, 1, v3\nv_cmp_eq_u32 s[58:59], 1, v6\nv_mul_u32_u24 v6, 20480, v6\nv_lshl_add_u32 v6, v5, 4, v6\nv_lshrrev_b32 v7, 1, v3\nv_lshl_add_u32 v{AD+11}, v7, 8, v6')
    S(f'v_mul_u32_u24 v7, {OOB >> 8}, v7\nv_lshl_add_u32 v{AD+12}, v7, 8, v6')
    SS0(f's_lshl_b32 s63, s5, 2\ns_add_u32 s63, s63, s3')
    SS0(f's_mul_i32 s62, s4, {4*20*1024}\ns_add_u32 s62, s62, {O_F}')
    SS0(f's_lshl_b32 s96, s63, 9\ns_add_u32 s96, s96, s62')
    SS0(f's_lshr_b32 s95, s63, 1\ns_lshl_b32 s95, s95, 8\ns_and_b32 s63, s63, 1\ns_lshl_b32 s63, s63, 3\ns_add_u32 s95, s95, s63\ns_add_u32 s95, s95, s62\ns_add_u32 s95, s95, {16*1024}')
    def chk4(r):
        A(f'v_xor_b32 v{r}, s94, v{r}\nv_xor_b32 v{r+1}, s94, v{r+1}\nv_xor_b32 v{r+2}, s94, v{r+2}\nv_xor_b32 v{r+3}, s94, v{r+3}')
        A(f'v_or3_b32 v{r}, v{r}, v{r+1}, v{r+2}\nv_or_b32 v{r}, v{r}, v{r+3}\nv_cmp_ne_u32 vcc, 0, v{r}')
    def allflags(nm, r, so):
        A('s_mov_b32 s61, 0')
        chk4(r)
        A('s_nop 3'); A(f's_cbranch_vccz {nm}_DONE', IF)
        A.label(nm, IF)
        Bk = Asm()
        Bk(f's_sleep 8\nbuffer_load_dwordx4 {v(r,4)}, v1, s[12:15], {so} offen sc1\ns_waitcnt vmcnt(0)')
        rawloop(Bk)
        chk4(r)
        A(f's_add_u32 s61, s61, 1\ns_cmp_gt_u32 s61, {SPIN}'); A(f's_cbranch_scc1 {nm}_DONE', IF)
        A('s_nop 3'); A(f's_cbranch_vccnz {nm}', IF)
        A.label(f'{nm}_DONE', IF)
    QA.extend([SC, S]); wlim[0] = 80
    assert P.FB_STEP < P.FC_STEP <= P.SB_ISSUE < P.SB_CHECK and P.A1 <= 19
    for s_ in range(20):
        if s_ == P.FB_STEP:
            assert bi[0] == NBS
            gs.flush(); A.wait_tag('pb'); A('s_barrier'); fb(FLB)
        if s_ == P.FC_STEP:
            print('left at FC:', gs.drain(SC), file=sys.stderr)
            A.wait_tag('pc'); A('s_barrier'); fb(FLC)
            SS.l = SS0.l
        if s_ == P.A1:
            k = max([i + 1 for i, x in enumerate(S.l) if any(x is y for y in mod_)] + [0])
            print('left at A1:', k, file=sys.stderr)
            for x in S.l[:k]: gs.put(*x)
            S.l = S.l[k:]
            A('s_waitcnt lgkmcnt(0)\ns_barrier')
            st()
        if s_ == P.SB_CHECK:
            gs.drain(SS)
            allflags('SYB', PV, 's25')
            A(f'OPT s_cmp_lg_u32 s2, 0\ns_mov_b32 s25, {EPO}\nbuffer_store_dword v14, v10, s[12:15], s25 offen sc1\nENDOPT')
            wolim[0] = 10
            st()
        if s_ == 20 + P.SC_ISSUE: A(f's_mov_b32 s45, {FLC}\nbuffer_load_dwordx4 {v(140,4)}, v1, s[12:15], s45 offen sc1')
        if s_ == P.SB_ISSUE: A(f's_mov_b32 s25, {FLB}\nbuffer_load_dwordx4 {v(PV,4)}, v1, s[12:15], s25 offen sc1')
        gs.run(g1step(s_, EV, P.RA0 if s_ < P.RAS else P.RA), [SC, SS, S], P.XA0 if s_ < P.XAS else P.XA, True)
    print('left after pass A:', len(S.l), ' wo issued', woi[0], file=sys.stderr)
    assert wi[0] == 80
    st()
    def cvt2(B, d, c): B(f'v_cvt_pk_bf16_f32 v{d}, v{c}, v{c+1}\nv_cvt_pk_bf16_f32 v{d+1}, v{c+2}, v{c+3}')
    def spread4(B, q, t):
        B(f'v_mov_b32 v{t}, v{q}\nv_permlane16_swap_b32 v{q}, v{t}\nv_mov_b32 v{t+1}, v{q}\nv_mov_b32 v{t+2}, v{t}')
        B(f'v_permlane32_swap_b32 v{q}, v{t+1}\nv_permlane32_swap_b32 v{t}, v{t+2}')
    def att1(B, par):
        tiles = OD if par else EV
        for T in tiles:
            cvt2(B, acc4(T), acc4(T))
            B(f'ds_write_b64 v{AD+10}, {v(acc4(T),2)} offset:{512*T}')
        for T in tiles: cvt2(B, KF + 4*(T - 2*par), accK(T))
        for u in range(2): cvt2(B, QF + 4*u, accQ(1 + 2*par + u))
    def att2(B, par, gap):
        tiles = OD if par else EV
        T1 = 1 + 2*par
        SC, SP, MX, PF, OM = (60, 68, 84, 76, 92) if par else (16, 24, 32, 40, 48)
        O4, OS = QF, KF
        for u in range(2):
            B(f'ds_read_b64 {v(QF+4*u+2,2)}, v{AD+T1+u}')
            if u == 0 and not par: B(f'ds_read_b64 {v(KF+2,2)}, v{AD+5} offset:2560')
            B(f'ds_read_b64 {v(KF+4+4*u+2,2)}, v{AD+5} offset:{2560+512*(T1+u)}')
        for T in tiles: B(f'ds_read_b64_tr_b16 {v(V4+2*(T-2*par),2)}, v{AD+8} offset:{512*T}')
        if not par:
            B(f'ds_read_b64 {v(KH+2,2)}, v{AD} offset:2560\nds_read_b64_tr_b16 {v(V4H,2)}, v{AD+9}')
            for d in range(2): B(f'v_mov_b32_dpp v{KH+d}, v{KF+d} row_ror:8 row_mask:0xf bank_mask:0xf')
        else:
            for d in range(2): B(f'v_mov_b32 v{VS+d}, v{VH+d}\nv_mov_b32 v{V4+d}, v{V4H+d}')
        for T in tiles: cvt2(B, VS + 2*(T - 2*par), accV(T))
        for u in range(2):
            q = v(QF+4*u, 4)
            B(f'{MF} {v(SC+4*u,4)}, {v(KF+4+4*u,4)}, {q}, {v(BC,4)}')
            B(f'{MF} {v(SP+4*u,4)}, {v(KH if (par and u == 0) else KF+4*u,4)}, {q}, {v(BP if u else BH,4)}')
        if not par:
            for d in range(2): B(f'v_mov_b32 v{VH+d}, v{VS+d}\nv_mov_b32 v{AD+6+d}, v{VS+d}')
            for d in range(2): B(f'v_permlane32_swap_b32 v{VH+d}, v{AD+6+d}')
        else: B(f's_add_u32 s96, s96, 40960\ns_add_u32 s95, s95, 40960')
        for t in range(2):
            for r in range(4): B(f'v_max_f32 v{SC+4*t+r}, v{SC+4*t+r}, v{SP+4*t+r}')
            B(f'v_max3_f32 v{MX+t}, v{SC+4*t}, v{SC+4*t+1}, v{SC+4*t+2}\nv_max_f32 v{MX+t}, v{MX+t}, v{SC+4*t+3}')
        B(f'v_permlane32_swap_b32 v{MX}, v{MX+1}\nv_max_f32 v{MX}, v{MX}, v{MX+1}\nv_mov_b32 v{MX+1}, v{MX}')
        B(f'v_permlane16_swap_b32 v{MX}, v{MX+1}\nv_max_f32 v{MX}, v{MX}, v{MX+1}\nv_mul_f32 v{MX+1}, s20, v{MX}\nv_mul_f32 v{MX}, s20, v{MX}')
        B(f'v_permlane32_swap_b32 v{MX}, v{MX+1}')
        B('MID')
        for t in range(2):
            for r in range(4): B(f'v_fma_f32 v{SC+4*t+r}, v{SC+4*t+r}, s20, -v{MX+t}')
        def split(u):
            for d in range(2):
                B(f'v_cndmask_b32_e64 v{PF+4*u+d}, 0, v{SP+2*u+d}, s[56:57]\nv_cndmask_b32_e64 v{PF+4*u+2+d}, v{SP+2*u+d}, 0, s[56:57]')
        def pv(u):
            B(f'{MF} {v(OS+4*u,4)}, {v(ONE,4)}, {v(PF+4*u,4)}, 0\n{MF} {v(OM+4*u,4)}, {v(VS+2*u,4)}, {v(PF+4*u,4)}, 0')
        for r in range(4): B(f'v_exp_f32 v{SC+r}, v{SC+r}')
        B(f'v_exp_f32 v{SC+4}, v{SC+4}')
        cvt2(B, SP, SC); split(0)
        B(f'v_exp_f32 v{SC+5}, v{SC+5}')
        pv(0)
        B(f'v_exp_f32 v{SC+6}, v{SC+6}\nv_exp_f32 v{SC+7}, v{SC+7}')
        B(f'{MF} {v(O4,4)}, {v(V4,4)}, {v(PF,4)}, 0')
        cvt2(B, SP+2, SC+4); split(1)
        B(f'v_rcp_f32 v{MX}, v{OS}')
        pv(1)
        B(f'{MF} {v(O4+4,4)}, {v(V4+2,4)}, {v(PF+4,4)}, 0')
        for r in range(4): B(f'v_mul_f32 v{OM+r}, v{OM+r}, v{MX}')
        cvt2(B, SC, OM)
        B(f'v_rcp_f32 v{MX+1}, v{OS+4}')
        for r in range(4): B(f'v_mul_f32 v{OM+4+r}, v{OM+4+r}, v{MX+1}')
        cvt2(B, SC+2, OM+4)
        B(f'v_cndmask_b32_e64 v{MX}, v{MX}, v{MX+1}, s[58:59]')
        B(f'v_cndmask_b32_e64 v{O4}, v{O4}, v{O4+4}, s[58:59]')
        B(f'v_permlane16_swap_b32 v{SC}, v{SC+2}\nv_permlane16_swap_b32 v{SC+1}, v{SC+3}')
        tag = 'oo' if par else 'oe'
        B(f'buffer_store_dwordx4 {v(SC,4)}, v{AD+11}, s[12:15], s96 offen sc1', tag=tag)
        for r in range(1, 4): B(f'v_cndmask_b32_e64 v{O4+r}, v{O4+r}, v{O4+4+r}, s[58:59]')
        for r in range(4): B(f'v_mul_f32 v{O4+r}, v{O4+r}, v{MX}')
        cvt2(B, O4, O4)
        B(f'buffer_store_dwordx2 {v(O4,2)}, v{AD+12}, s[12:15], s95 offen sc1', tag=tag)
    def flag(ph):
        A(f'OPT s_cmp_lg_u32 s3, 0\ns_add_u32 s6, s52, {4096*ph}\nbuffer_store_dword v14, v10, s[12:15], s6 offen sc1\nENDOPT')
    def publish(ph, tag):
        A.wait_tag(tag); A('s_barrier'); flag(ph)
    def pload(ph, n): A(f's_load_dwordx{n} s[28:{27+n}], s[54:55], {4096*ph} glc', tag='touch')
    def poll_issue(ph, n=8, w0=True):
        A('s_waitcnt lgkmcnt(0)')
        if w0: A('s_cmp_lg_u32 s3, 0'); A(f's_cbranch_scc1 PI{ph}', IF)
        pload(ph, n)
        if w0: A.label(f'PI{ph}', IF)
    def acquire(ph, n=8, w0=True, bar=True):
        A('s_waitcnt lgkmcnt(0)\ns_mov_b32 s61, 0')
        if w0: A('s_cmp_lg_u32 s3, 0'); A(f's_cbranch_scc1 ACQ{ph}_DONE', IF)
        A.label(f'ACQ{ph}', IF)
        for k in range(n): A(f's_xor_b32 s{28+k}, s{28+k}, s94')
        for k in range(2, n, 2): A(f's_or_b64 s[28:29], s[28:29], s[{28+k}:{29+k}]')
        A(f's_cbranch_scc0 ACQ{ph}_DONE', IF)
        pload(ph, n)
        A('s_waitcnt lgkmcnt(0)')
        A(f's_add_u32 s61, s61, 1\ns_cmp_lt_u32 s61, {SPIN}'); A(f's_cbranch_scc1 ACQ{ph}', IF)
        A.label(f'ACQ{ph}_DONE', IF)
        if bar: A('s_barrier')
    att1(S, 0)
    s_ = 0
    while S.l:
        gs.run(g1step(s_, OD, P.RB0), [S], P.XB, True); s_ += 1
    print('exchange barrier before step', s_, file=sys.stderr)
    gs.flush()
    if P.SC_ISSUE < 0: allflags('SYC', 140, 's45')
    A('s_waitcnt lgkmcnt(0)\ns_barrier')
    wolim[0] = 25
    S = Buf(); att2(S, 0, True); S.l = [x for x in S.l if x[0] != 'MID']
    OF, WB, ACC, XC, UF, RX = 16, 56, 92, 112, 136, 180
    GU, AU, BU = 124, 152, 164
    HI = 'OPT s_cmp_ge_u32 s3, 2'
    S3 = Buf()
    S3('s_lshl_b32 s62, s4, 1\ns_and_b32 s7, s3, 1\ns_add_u32 s62, s62, s7\ns_mul_i32 s62, s62, 40960\ns_lshr_b32 s63, s3, 1\ns_lshl_b32 s101, s63, 6')
    S3('s_mul_i32 s97, s5, 160\ns_add_u32 s97, s97, s62\ns_add_u32 s97, s97, s101')
    S3('v_mul_u32_u24 v6, 2560, v5\nv_lshl_add_u32 v7, v3, 3, v6\nv_lshl_add_u32 v6, v3, 4, v6')
    S3('v_lshlrev_b32 v8, 4, v3\nv_lshlrev_b32 v9, 3, v3')
    S3(f's_mul_i32 s62, s63, {OOB}\nv_add_u32 v7, s62, v7')
    S3(f's_lshl_b32 s24, s4, 2\ns_add_u32 s24, s24, s7\ns_mul_i32 s24, s24, 20480\ns_add_u32 s25, s24, {Z_F}\ns_mul_i32 s62, s63, 10240\ns_add_u32 s24, s24, s62\ns_add_u32 s24, s24, {O_F}')
    S3('v_and_b32 v4, 3, v2')
    S3(f'v_mov_b32 v15, {VEC+3072}\nv_cmp_eq_u32 vcc, 0, v4\nv_mov_b32 v0, {VEC+1280}\nv_cndmask_b32 v15, v15, v0, vcc')
    S3(f'v_cmp_eq_u32 vcc, 1, v4\nv_mov_b32 v0, {VEC}\nv_cndmask_b32 v15, v15, v0, vcc')
    S3('v_add_u32 v0, v15, v8\nv_add_u32 v15, v15, v9')
    VL = 16; n3 = len(S3.l)
    S4 = Buf(); S5 = Buf()
    S5('s_lshl_b32 s44, s3, 6\nv_add_u32 v40, s44, v2')
    S5(f'v_mov_b32 v41, {(3200-80-1280)*16}\ns_movk_i32 s45, 79\nv_cmp_lt_u32 s[46:47], s45, v40\nv_cndmask_b32_e64 v41, 0, v41, s[46:47]\nv_lshl_add_u32 v41, v40, 4, v41')
    S5(f's_mul_i32 s45, s5, {80*16}\ns_add_u32 s45, s45, {MODP + 1280*16}\ns_add_u32 s44, s23, {1920*16}')
    for i in range(5):
        S5(f'buffer_load_dwordx4 {v(VL+4*i,4)}, v1, s[12:15], s44 offen sc1')
        if i < 4: S5('s_add_u32 s44, s44, 4096')
    S5(f'buffer_load_dwordx4 {v(VL+20,4)}, v41, s[12:15], s45 offen sc1')
    S5(f'v_lshlrev_b32 v42, 3, v40\nv_add_u32 v42, {VEC}, v42\nds_write_b64 v42, {v(ONE,2)} offset:3072')
    S5(f'v_lshlrev_b32 v40, 1, v40\nv_add_u32 v40, {VEC}, v40')
    quadsum(S5, VL, 6)
    for i in range(6):
        modfin(S5, VL+4*i, [0, 0, 2, 1, 1, 0][i], True)
        S5(f'ds_write_b16_d16_hi v40, v{VL+4*i} offset:{512*i}')
    while s_ < 20:
        if s_ == P.SC_ISSUE:
            assert 'F' in done
            A(f's_mov_b32 s45, {FLC}\nbuffer_load_dwordx4 {v(56,4)}, v1, s[12:15], s45 offen sc1')
        if not S.l and S5.l and s_ > P.SC_ISSUE + 2:
            if P.SC_ISSUE >= 0:
                assert len(S3.l) in (0, n3)
                gs.flush(); allflags('SYC', 56, 's45')
            S4.l = S5.l; S5.l = []
        if s_ == P.OE_PUB:
            print('left at OE_PUB:', gs.drain(S), file=sys.stderr)
            publish(PH_OE, 'oe')
        n0 = len(S.l)
        gs.run(g1step(s_, OD, P.RB0 if s_ < P.RBS else P.RB), [S] if S.l and P.XB else [S, S4, S3], P.XB if S.l else P.XB2, True); s_ += 1
        if n0 and not S.l: print('even attention ends in step', s_-1, file=sys.stderr)
    assert not S5.l
    print('left after pass B:', gs.drain(S3, S4), file=sys.stderr)
    assert woi[0] == 25
    print('w1 issued in pass B:', w1i[0], file=sys.stderr)
    st()
    X = Buf(); att1(X, 1)
    timed(A, X, w1load, P.IVA, first=0)
    A.wait_tag('wo')
    A('s_waitcnt lgkmcnt(0)\ns_barrier')
    X = Buf(); att2(X, 1, False); X.l = [x for x in X.l if x[0] != 'MID']
    nrd = [i for i, x in enumerate(X.l) if x[0].startswith('v_mfma')][3] + 1
    for l_, t_ in X.l[:nrd]: A(l_, t_)
    XR_ = X.l[nrd:]
    oi = [10]
    def oload(B):
        k = oi[0]
        if k >= 10: return 0
        oi[0] += 1
        B(f'buffer_load_dwordx4 {v(OF+4*k,4)}, v1, s[12:15], s24 offen offset:{1024*(k%4)} sc1')
        if k % 4 == 3: B('s_add_u32 s24, s24, 4096')
        if k == 9: B(f's_add_u32 s24, s24, {40960 - 8192}')
        return 1
    def oloads():
        oi[0] = 0
        for _ in range(P.ON): oload(A)
    def part(lo, hi, iv, stop=0):
        Y = Buf(); Y.l = XR_[lo:hi]
        timed(A, Y, w1load, iv, stop_before=stop, first=0 if iv < 999 else None)
    poll_issue(PH_OE)
    part(0, P.OE_AT, P.IVE)
    st2()
    acquire(PH_OE)
    st2()
    oloads()
    part(P.OE_AT, None, P.IVO, P.OST)
    st()
    NB = 9
    XU, ZU, SS, ZP, SM = 56, 68, 80, 112, 92
    EX1, EX2, EX3 = X4, WOL + 40960, X4 + 8192
    POS = [0, 1, 4, 2, 3]
    A(f's_mul_i32 s6, s63, 20480\ns_add_u32 s6, s6, {WOL}\nv_add_u32 v12, s6, v1\ns_mul_i32 s6, s63, 30720\nv_add_u32 v13, s6, v1')
    def e1pair(B):
        if w1i[0] < 40: return w1load(B)
        T_ = Buf(); n = w1load(T_, 2)
        if n:
            B('OPT s_cmp_eq_u32 s3, 3\n' + '\n'.join(x[0] for x in T_.l if x[0].startswith('buffer')) + '\nENDOPT')
            for x in T_.l:
                if not x[0].startswith('buffer'): B(x[0])
        return n
    def g2(ph, hooks, rate, ivepi, nall):
        items = [(s_, u) for s_ in range(10) for u in ([0, 1, 2, 3, 4] if s_ < 9 else [3, 4, 2, 0, 1])]
        def rd(B, k):
            d = WB + (k % NB)*4; ad = woaddr(5*items[k][0] + POS[items[k][1]])
            B(f'ds_read_b128 v[{d}:{d+3}], ' + (f'v12 offset:{ad-WOL}' if ad >= WOL else f'v13 offset:{ad}'))
        for k in range(NB-1): rd(A, k)
        S = Buf(); S2 = Buf()
        if ph == 0:
            A(f'v_add_u32 v4, {VEC}, v9\ns_add_u32 s6, s101, {VEC}\nv_add_u32 v{XC}, s6, v8\ns_mul_i32 s7, s5, 160')
            A(f'ds_read_b128 {v(GU+6,4)}, v{XC} offset:2560\nds_read_b64 {v(GU+10,2)}, v4 offset:{2560+128}')
            A(f'v_add_u32 v{XC}, s7, v{XC}\nv_add_u32 v4, s7, v4')
            A(f'ds_read_b128 {v(AU+6,4)}, v{XC} offset:1280\nds_read_b64 {v(AU+10,2)}, v4 offset:{1280+128}')
            A(f'ds_read_b128 {v(BU+6,4)}, v{XC}\nds_read_b64 {v(BU+10,2)}, v4 offset:128')
            S('GAP 8\ns_cmp_lt_u32 s3, 2\ns_cselect_b32 s62, -1, 0')
            S(f'v_and_b32 v{GU+10}, s62, v{GU+10}\nv_and_b32 v{GU+11}, s62, v{GU+11}')
            for b in (GU, AU, BU):
                for d in range(6): S(f'v_lshlrev_b32 v{b+2*d}, 16, v{b+6+d}\nv_and_b32 v{b+2*d+1}, 0xffff0000, v{b+6+d}')
            S2(f'v_add_u32 v176, s60, v1\nv_xor_b32 v177, 2048, v176\nv_lshrrev_b32 v178, 1, v176\nv_lshrrev_b32 v179, 1, v1')
            S2(f'v_add_u32 v176, {EX1}, v176\nv_add_u32 v177, {EX1}, v177\nv_add_u32 v178, {EX3}, v178\nv_add_u32 v179, {EX3}, v179')
            S2('s_lshl_b32 s96, s5, 1\ns_add_u32 s96, s96, s63\ns_lshl_b32 s96, s96, 10\ns_add_u32 s96, s96, s25')
            S2(f's_lshr_b32 s95, s5, 1\ns_lshl_b32 s95, s95, 10\ns_add_u32 s95, s95, s25\ns_and_b32 s7, s5, 1\ns_lshl_b32 s7, s7, 3\ns_add_u32 s95, s95, s7\ns_add_u32 s95, s95, {16*1024}')
            S2(f's_lshl_b32 s26, s4, 14\ns_lshl_b32 s7, s5, 10\ns_add_u32 s26, s26, s7\ns_add_u32 s26, s26, {STB}')
        else:
            S2('s_add_u32 s96, s96, 40960\ns_add_u32 s95, s95, 40960\ns_add_u32 s26, s26, 8192')
        g = GS(A)
        for k, (s_, u) in enumerate(items):
            if k in hooks: g.flush(); hooks[k]()
            M = Buf()
            M(f'{MF} {v(ACC+4*u,4)}, {v(WB+(k%NB)*4,4)}, {v(OF+4*s_,4)}, {v(ACC+4*u,4) if s_ else "0"}')
            if k < 49: M(f'NEED {v(WB+((k+1)%NB)*4,4)}, ' + (v(OF,40) if k == nall else v(OF+4*((k+1)//5),4)))
            if k + NB - 1 < 50: rd(M, k + NB - 1)
            assert oi[0] > (k+1)//5 or k == 49
            if oi[0] < 10:
                if k % P.OG == 0: oload(M)
            elif int((k+1)*rate) != int(k*rate) and (w1i[0] < 40 or k >= nall): e1pair(M)
            g.run(M, [S, S2], 0, True)
        g.drain(S, S2)
        st2()
        rx = RX + 6*ph
        unpack(A, XU, rx); unpack(A, XU+2, rx+1)
        A(f'ds_write_b128 v176, {v(ACC+12,4)}\nds_write_b128 v176, {v(ACC+16,4)} offset:4096\nds_write_b128 v176, {v(ACC+8,4)} offset:{EX2-EX1}')
        A('s_waitcnt lgkmcnt(0)\ns_barrier')
        A(f'ds_read_b128 {v(XC,4)}, v177\nds_read_b128 {v(XC+4,4)}, v177 offset:4096\nds_read_b128 {v(XC+8,4)}, v177 offset:{EX2-EX1}')
        for d in range(2, 6): unpack(A, XU+2*d, rx+d)
        for d in range(6): A(f'v_pk_fma_f32 {pr(XU+2*d)}, {pr(ACC+2*d)}, {pr(GU+2*d)}, {pr(XU+2*d)}')
        for d in range(6): A(f'v_pk_fma_f32 {pr(XU+2*d)}, {pr(XC+2*d)}, {pr(GU+2*d)}, {pr(XU+2*d)}')
        if 'x' in hooks: hooks['x']()
        E = Buf()
        for d in range(6): E(f'v_pk_mul_f32 {pr(ZU+2*d)}, {pr(XU+2*d)}, {pr(AU+2*d)}')
        for d in range(6): E(f'v_cvt_pk_bf16_f32 v{ZP+d}, v{ZU+2*d}, v{ZU+2*d+1}')
        E(f'buffer_store_dwordx4 {v(ZP,4)}, v1, s[12:15], s96 offen sc1', tag='z')
        E(f'{HI}\nbuffer_store_dwordx2 {v(ZP+4,2)}, v1, s[12:15], s95 offen sc1\nENDOPT', tag='z')
        for d in range(6):
            x_, z_, a_, b_ = pr(XU+2*d), pr(ZU+2*d), pr(AU+2*d), pr(BU+2*d)
            if d == 0:
                E(f'v_pk_add_f32 {pr(SS)}, {x_}, {pr(XU+2)}\nv_pk_mul_f32 {pr(SS+2)}, {x_}, {x_}\nv_pk_add_f32 {pr(SS+4)}, {z_}, {pr(ZU+2)}')
                E(f'v_pk_mul_f32 {pr(SS+6)}, {z_}, {a_}\nv_pk_mul_f32 {pr(SS+8)}, {z_}, {z_}\nv_pk_mul_f32 {pr(SS+10)}, {z_}, {b_}')
            else:
                if d > 1: E(f'v_pk_add_f32 {pr(SS)}, {pr(SS)}, {x_}')
                E(f'v_pk_fma_f32 {pr(SS+2)}, {x_}, {x_}, {pr(SS+2)}')
                if d > 1: E(f'v_pk_add_f32 {pr(SS+4)}, {pr(SS+4)}, {z_}')
                E(f'v_pk_fma_f32 {pr(SS+6)}, {z_}, {a_}, {pr(SS+6)}\nv_pk_fma_f32 {pr(SS+8)}, {z_}, {z_}, {pr(SS+8)}\nv_pk_fma_f32 {pr(SS+10)}, {z_}, {b_}, {pr(SS+10)}')
        for k in range(6): E(f'v_add_f32 v{SM+k}, v{SS+2*k}, v{SS+2*k+1}')
        for k in range(3): E(f'v_permlane32_swap_b32 v{SM+2*k}, v{SM+1+2*k}')
        E(f'v_add_f32 v{SM}, v{SM}, v{SM+1}\nv_add_f32 v{SM+2}, v{SM+2}, v{SM+3}\nv_add_f32 v{SM+1}, v{SM+4}, v{SM+5}\nv_add_f32 v{SM+3}, v{SM+4}, v{SM+5}')
        E(f'v_permlane16_swap_b32 v{SM}, v{SM+2}\nv_permlane16_swap_b32 v{SM+1}, v{SM+3}\nv_add_f32 v{SM}, v{SM}, v{SM+2}\nv_add_f32 v{SM+1}, v{SM+1}, v{SM+3}')
        timed(A, E, e1pair, ivepi, stop_before=P.EST)
        A(f'ds_write_b64 v178, {v(SM,2)}')
        st2()
        if 'y' in hooks: hooks['y'](); st2()
        else: A('s_waitcnt lgkmcnt(0)\ns_barrier')
        for w in range(4): A(f'ds_read_b64 {v(SM+2*w,2)}, v179 offset:{512*w}')
        if 'z' in hooks: hooks['z']()
        for d in range(6): A(f'v_cvt_pk_bf16_f32 v{rx+d}, v{XU+2*d}, v{XU+2*d+1}')
        A(f'v_pk_add_f32 {pr(SM)}, {pr(SM)}, {pr(SM+4)}\nv_pk_add_f32 {pr(SM+2)}, {pr(SM+2)}, {pr(SM+6)}')
        A(f'OPT s_cmp_lg_u32 s3, 0\nbuffer_store_dwordx4 {v(SM,4)}, v1, s[12:15], s26 offen sc1\nENDOPT', tag='z')
        if 'w' in hooks: hooks['w']()
    B1R, UA, GA = 108, UF+8, 168
    def mfread(B, d, s_):
        if s_ < 16: B(f'ds_read_b128 {v(d,4)}, v0 offset:{160*(s_>>1)+64*(s_&1)}')
        else:
            for h in range(2): B(f'ds_read_b64 {v(d+2*h,2)}, v15 offset:{320*(s_-16)+160*h+128}')
    def uhead(lo, hi):
        for s_ in range(lo, min(hi, lo + NB - 1)): mfread(A, WB+(s_%NB)*4, s_)
    def ubody(lo, hi, hooks, every):
        g = GS(A)
        for k in range(2*lo, 2*hi):
            s_, t = k >> 1, k & 1
            if k - 2*lo in hooks: g.flush(); hooks[k - 2*lo]()
            if w1i[0] <= min(k + 6, 39): g.flush(); w1load(A, min(k + 6, 39) + 1 - w1i[0])
            M = Buf(); M(f'{MF} {v(UA+4*t,4)}, {v(WB+(s_%NB)*4,4)}, {R(wreg(s_,t),4)}, {v(UA+4*t,4) if s_ else "0"}')
            if t == 0 and s_ + NB - 1 < hi: mfread(M, WB+((s_+NB-1)%NB)*4, s_+NB-1)
            elif oi[0] < 10:
                if (k - 2*lo) % P.OG == 1: oload(M)
            elif int((k+1)/every) != int(k/every): w1load(M)
            g.run(M, (), 0, True)
        g.flush()
        for k in sorted(hooks):
            if k >= 2*(hi - lo): hooks[k]()
    def ufrag(B, t, u, b, tm):
        d = UF + 4*t
        B(f'v_cvt_pk_bf16_f32 v{d+1}, v{u+2}, v{b}\nv_cvt_pk_bf16_f32 v{d}, v{u}, v{u+1}')
        B(f'v_lshlrev_b32 v{tm}, 16, v{d}\nv_and_b32 v{tm+1}, 0xffff0000, v{d}\nv_lshlrev_b32 v{tm+2}, 16, v{d+1}')
        B(f'v_sub_f32 v{tm}, v{u}, v{tm}\nv_sub_f32 v{tm+1}, v{u+1}, v{tm+1}\nv_sub_f32 v{tm+2}, v{u+2}, v{tm+2}')
        B(f'v_cvt_pk_bf16_f32 v{d+2}, v{tm}, v{tm+1}\nv_cvt_pk_bf16_f32 v{d+3}, v{tm+2}, 0')
    CFX = 102400
    ZB = [61440, 81920, 0, 20480]
    def statload(B, SL, ph):
        for i in range(8):
            if i % 4 == 0: B(f's_add_u32 s7, s63, {8192*ph + 1024*i}')
            B(f'buffer_load_dwordx4 {v(SL+4*i,4)}, v1, s[12:15], s7 offen offset:{1024*(i%4)} sc1')
    def statsum(S, SL, S1):
        for stp in (4, 2, 1):
            for j in range(stp):
                for k in range(2):
                    d = S1 if (stp == 1 and k) else SL+4*j+2*k
                    S(f'v_pk_add_f32 {pr(d)}, {pr(SL+4*j+2*k)}, {pr(SL+4*(j+stp)+2*k)}')
    def stats(S, SL, T):
        S(f'v_mul_f32 v{SL}, s21, v{SL}\nv_mul_f32 v{SL+1}, s21, v{SL+1}')
        q = SL + 8
        spread4(S, SL, SL+2)
        S(f'v_mov_b32 v{q+5}, v{SL+1}\nv_mov_b32 v{q}, v{SL}\nv_mov_b32 v{q+1}, v{SL+3}\nv_permlane32_swap_b32 v{SL+1}, v{q+5}')
        S(f'v_mov_b32 v{q+2}, v{SL+2}\nv_mov_b32 v{q+3}, v{SL+4}\nv_mov_b32 v{q+4}, v{SL+1}')
        t = SL
        S(f'v_fma_f32 v{q+1}, -v{q}, v{q}, v{q+1}\nv_max_f32 v{q+1}, 0, v{q+1}\nv_add_f32 v{q+1}, s22, v{q+1}\nv_rsq_f32 v{t}, v{q+1}')
        S(f'v_fma_f32 v{q+2}, -v{q}, s58, v{q+2}')
        S(f'v_fma_f32 v{q+5}, -v{q}, s57, v{q+5}')
        S(f'v_mul_f32 v{t+1}, s56, v{q}\nv_fma_f32 v{t+1}, v{q+3}, -2.0, v{t+1}\nv_fma_f32 v{q+4}, v{q}, v{t+1}, v{q+4}')
        S(f'v_mul_f32 v{q+1}, v{q+1}, v{t}')
        S(f'v_fma_f32 v{q+2}, v{t}, v{q+2}, s62')
        S(f'v_mul_f32 v{q+4}, v{q+4}, v{t}\nv_fma_f32 v{q+4}, v{q+5}, 2.0, v{q+4}\nv_fma_f32 v{q+4}, v{q+4}, v{t}, s59')
        S(f'v_fma_f32 v{q+4}, -v{q+2}, v{q+2}, v{q+4}\nv_max_f32 v{q+4}, 0, v{q+4}\nv_add_f32 v{q+4}, s22, v{q+4}\nv_rsq_f32 v{t+1}, v{q+4}')
        S(f'v_sub_f32 v{q}, 0, v{q}')
        S(f'v_mul_f32_e64 v{q+2}, -v{q+2}, v{q+1}')
        S(f'v_mul_f32 v{q+4}, v{q+4}, v{t+1}\nv_mul_f32 v{q+3}, v{q+4}, v{q+1}')
        S(f'v_mul_f32 v{t}, v{t}, v{t+1}')
        c0 = -2*0.7978845608028654*LOG2E
        k_ = SL + 4
        S(f'v_mul_f32 v{k_}, {fl(c0)}, v{t}\nv_mul_f32 v{k_+1}, v{t}, v{t}\nv_mul_f32 v{k_+1}, v{k_+1}, v{k_}\nv_mul_f32 v{k_+1}, {fl(0.044715)}, v{k_+1}\nv_mov_b32 v{k_+2}, v{q+3}\nv_mov_b32 v{k_+3}, 0')
        h_ = SL + 16
        S(f'v_cvt_pk_bf16_f32 v{h_}, v{q}, v{q+1}\nv_cvt_pk_bf16_f32 v{h_+1}, v{q+2}, v{q+3}')
        unpack(S, h_+4, h_); unpack(S, h_+6, h_+1)
        for k in range(4): S(f'v_sub_f32 v{h_+4+k}, v{q+k}, v{h_+4+k}')
        S(f'v_cvt_pk_bf16_f32 v{h_+2}, v{h_+4}, v{h_+5}\nv_cvt_pk_bf16_f32 v{h_+3}, v{h_+6}, v{h_+7}')
        f_ = SL + 24
        S('v_cmp_eq_u32 vcc, 1, v3')
        S(f'v_cndmask_b32 v{f_}, 0, v{h_+2}, vcc\nv_cndmask_b32 v{f_+1}, 0, v{h_+3}, vcc')
        S('v_cmp_eq_u32 vcc, 0, v3')
        S(f'v_cndmask_b32 v{f_}, v{f_}, v{h_}, vcc\nv_cndmask_b32 v{f_+1}, v{f_+1}, v{h_+1}, vcc')
        S(f'v_cndmask_b32 v{f_+2}, 0, v{h_}, vcc\nv_cndmask_b32 v{f_+3}, 0, v{h_+1}, vcc')
        S(f'ds_write_b128 v4, {v(f_,4)} offset:{CFX-61440+1024*T}\nds_write_b128 v4, {v(k_,4)} offset:{CFX-61440+4096+1024*T}')
    def zdma(B, T, lo, n, tag):
        for i in range(n):
            if i % 4 == 0: B(f's_add_u32 m0, s23, {ZB[T] + (lo + i)*1024}\ns_add_u32 s101, s23, s25\ns_add_u32 s101, s101, {T*20480 + (lo + i)*1024}')
            B(f'buffer_load_dwordx4 v1, s[12:15], s101 offen offset:{(i%4)*1024} sc1 lds', tag=tag)
    uhead(0, P.UK)
    ubody(0, P.UK, {}, P.UE0)
    st2()
    w1lim[0] = 80
    def b1load():
        A(f's_lshl_b32 s6, s50, 5\nv_xor_b32 v4, s6, v2\ns_lshl_b32 s6, s3, 7\ns_add_u32 s6, s6, {BIA}\nv_lshl_add_u32 v4, v4, 1, s6\nv_mov_b32 v{B1R}, 0')
        A(f'ds_read_u16_d16_hi v{B1R}, v4')
    g2(0, {P.OO_K: lambda: publish(PH_OO, 'oo'), 'x': lambda: (w1load(A, max(0, 40 - P.EL - w1i[0])), poll_issue(PH_OO)), 'y': lambda: acquire(PH_OO), P.OW: lambda: (w1load(A, max(0, 40 - w1i[0])), oloads())}, P.G2E, P.IVZ, P.G2N)
    st()
    print('w1 before U:', w1i[0], file=sys.stderr)
    uhead(P.UK, 20)
    b1load()
    w1lim[0] = max(40, w1i[0])
    ubody(P.UK, 20, {}, P.UE)
    w1lim[0] = 80
    st()
    if P.ZE_K < 0: publish(PH_ZE, 'z')
    spread4(A, B1R, B1R+1)
    for t in range(2): ufrag(A, t, UA+4*t, B1R+t, 120)
    A(f'v_mov_b32 v{UF+8}, v{B1R+2}\nv_mov_b32 v{UF+12}, v{B1R+3}')
    st()
    def zstart():
        A(f's_mul_i32 s25, s4, {4*20480}\ns_add_u32 s25, s25, {Z_F}\ns_mul_i32 s23, s3, 5120')
        zdma(A, 0, 0, 5, 'z0')
    g2(1, {P.ZE_K: lambda: publish(PH_ZE, 'z'), 'x': lambda: poll_issue(PH_ZE), 'y': lambda: acquire(PH_ZE), 'z': zstart}, P.G2O, P.IVZ2, P.G2N2)
    print('w1 after U:', w1i[0], file=sys.stderr)
    st()
    CF, KC, ACC = 32, 48, 64
    ZRL = [16, 20, 24, 28, 128, 132]
    A('v_add_u32 v4, 61440, v1')
    def zrd(B, T, s_, slot):
        B(f'ds_read_b128 {v(ZRL[slot],4)}, ' + (f'v4 offset:{ZB[T]-61440+s_*1024}' if T < 2 else f'v1 offset:{ZB[T]+s_*1024}'))
    def mm3(B, T, s_, t, slot):
        acc = ACC + (T*4 + t)*4
        B(f'{MF} {v(acc,4)}, {R(wreg(s_,t),4)}, {v(ZRL[slot],4)}, {v(acc,4) if s_ else "0"}')
    NR = 6
    def cfread(B, T): B(f'ds_read_b128 {v(CF+4*T,4)}, v4 offset:{CFX-61440+1024*T}\nds_read_b128 {v(KC+4*T,4)}, v4 offset:{CFX-61440+4096+1024*T}')
    A('s_mul_i32 s26, s3, 14\ns_cmp_eq_u32 s3, 3\ns_cselect_b32 s26, 41, s26')
    A(f's_mul_i32 s95, s5, {54*5120}\ns_add_u32 s95, s95, {W2_F}\ns_mul_i32 s24, s26, 5120\ns_add_u32 s24, s24, s95\ns_add_u32 s24, s24, 15360')
    A(f's_mul_i32 s96, s3, 15360\ns_add_u32 s96, s96, 110592\ns_cmp_eq_u32 s3, 3\ns_cselect_b32 s96, 40960, s96')
    A(f's_mul_i32 s53, s4, {54*4096}\ns_add_u32 s53, s53, {HID}\ns_lshl_b32 s98, s98, 12\ns_add_u32 s98, s98, s53\ns_lshl_b32 s99, s99, 12\ns_add_u32 s99, s99, s53')
    def corr(B, T, es=(0, 1)):
        for t in [2*e + k for e in es for k in range(2)]:
            acc = ACC + (T*4 + t)*4
            B(f'{MF} {v(acc,4)}, {v(UF+4*t,4)}, {v(CF+4*T,4)}, {v(acc,4)}')
    G = 152
    def gelu(B, T, e, pk, tag, G=152):
        b = ACC + (T*4 + 2*e)*4; g_ = G + (T & 1 if T < 2 else e)*8; k = KC + 4*T
        if pk:
            for d in range(4): B(f'v_pk_mul_f32 {pr(g_+2*d)}, {pr(b+2*d)}, {pr(b+2*d)}')
            for d in range(4): B(f'v_pk_fma_f32 {pr(g_+2*d)}, {pr(g_+2*d)}, {pr(k)}, {pr(k)} op_sel:[0,1,0] op_sel_hi:[1,1,0]')
            for d in range(4): B(f'v_pk_mul_f32 {pr(g_+2*d)}, {pr(g_+2*d)}, {pr(b+2*d)}')
        else:
            for d in range(8): B(f'v_mul_f32 v{g_+d}, v{b+d}, v{b+d}')
            for d in range(8): B(f'v_fma_f32 v{g_+d}, v{g_+d}, v{k+1}, v{k}')
            for d in range(8): B(f'v_mul_f32 v{g_+d}, v{g_+d}, v{b+d}')
        for d in range(8): B(f'v_exp_f32 v{g_+d}, v{g_+d}')
        if pk:
            for d in range(4): B(f'v_pk_fma_f32 {pr(g_+2*d)}, {pr(g_+2*d)}, {pr(k+2)}, {pr(k+2)} op_sel_hi:[1,0,0]')
        else:
            for d in range(8): B(f'v_fma_f32 v{g_+d}, v{g_+d}, v{k+2}, v{k+2}')
        for d in range(8): B(f'v_rcp_f32 v{g_+d}, v{g_+d}')
        if pk:
            for d in range(4): B(f'v_pk_mul_f32 {pr(g_+2*d)}, {pr(g_+2*d)}, {pr(b+2*d)}')
        else:
            for d in range(8): B(f'v_mul_f32 v{g_+d}, v{g_+d}, v{b+d}')
        for d in range(4): B(f'v_cvt_pk_bf16_f32 v{b+d}, v{g_+2*d}, v{g_+2*d+1}')
        sto = f'buffer_store_dwordx4 {v(b,4)}, {"v1" if e else "v11"}, s[12:15], s{98+e} offen offset:{1024*T} sc1'
        B(f'OPT s_cmp_eq_u32 s3, 3\n{sto}\nENDOPT' if e and T == 3 else sto, tag=tag)
    def k13(k, t): return f'OPT s_cmp_ge_u32 s3, 2\n{t}\nENDOPT' if k == 13 else t
    w2i = [0]; w2lim = [50]
    def w2load(B, n=1, limit=55):
        for _ in range(n):
            i = w2i[0]
            if i >= min(w2lim[0], limit): return
            w2i[0] += 1
            B(k13(3 + i//5, f'buffer_load_dwordx4 {a(4*i,4)}, v1, s[12:15], s24 offen offset:{(i%4)*1024} sc1'))
            if i % 4 == 3: B('s_add_u32 s24, s24, 4096')
    U1 = 168
    bar = lambda *tags: (A.wait_tag(list(tags)), A('s_waitcnt lgkmcnt(0)\ns_barrier'))
    def stream(gs, fr, lo, hi, sides, ld, extra=0, hook=None):
        for n in range(lo, hi):
            T, s_, e = fr[n]
            if hook: hook(n)
            M = Buf()
            for t in range(2):
                if T >= 0: mm3(M, T, s_, 2*e + t, n % NR)
                else: M(f'{MF} {v(U1+4*t,4)}, {v(ZRL[n % NR],4)}, {R(wreg(s_,2+t),4)}, {v(U1+4*t,4) if s_ else "0"}')
                if t == 0 and n + NR - 1 < len(fr):
                    T2, s2, _ = fr[n + NR - 1]
                    if T2 >= 0: zrd(M, T2, s2, (n + NR - 1) % NR)
                    else: mfread(M, ZRL[(n + NR - 1) % NR], s2)
                if t == 1:
                    if n + 1 < len(fr):
                        T2, s2, e2 = fr[n+1]
                        M(f'NEED {v(ZRL[(n+1) % NR],4)}' + (f', {R(wreg(s2,2),8)}' if T2 < 0 else ''))
                    ld(M, n)
            gs.run(M, sides, extra, True)
    A('s_cmp_eq_u32 s3, 3')
    A.fork('s_cbranch_scc1 HELP')
    svn = st.n
    zdma(A, 1, 0, 5, 'z1')
    w1load(A, P.WZ)
    A.wait_tag('z0'); A('s_barrier')
    st()
    for s_ in range(NR-1): zrd(A, 0, s_, s_)
    gs = GS(A)
    fr = [(T, s_, 0) for T in range(2) for s_ in range(20)] + [(T, s_, 1) for s_ in range(20) for T in (-1, 0, 1)]
    Q = [Buf(), Buf()]
    def hook(n):
        if n == P.Z1: gs.flush(); A.wait_tag(['z1', 'z']); A('s_barrier'); flag(PH_ZO)
        if n == P.CF1: A('s_barrier')
        for T_ in range(2):
            if n == max(P.CF1, 20*T_ + 20):
                cfread(Q[T_], T_); corr(Q[T_], T_, (0,)); gelu(Q[T_], T_, 0, False, 'hA')
        if n == 40: st()
        if fr[n][2] and w1i[0] < min(80, 40 + 2*fr[n][1] + 6): gs.flush(); w1load(A, min(80, 40 + 2*fr[n][1] + 6) - w1i[0])
    def ld(M, n):
        if int((n+1)*P.R1) != int(n*P.R1): w1load(M)
    stream(gs, fr, 0, 100, Q, ld, P.X1, hook)
    assert P.Z1 <= 20 - NR + 1 and P.Z1 < P.CF1 and w1i[0] == 80
    gs.flush()
    print('gelu left:', [len(q.l) for q in Q], file=sys.stderr)
    st()
    A('s_barrier')
    st()
    for s_ in range(2):
        for e in range(2): zrd(A, 2+e, s_, 2*s_+e)
    S = Buf()
    for t in range(2): ufrag(S, 2+t, U1+4*t, UF+8+4*t, 176)
    stage = -1
    for s_ in range(20):
        if stage == -1 and not S.l:
            for T in range(2): corr(Q[T], T, (1,)); gelu(Q[T], T, 1, False, 'hA')
            stage = 0
        if stage == 0 and not any(q.l for q in Q): print('first half done before step', s_, file=sys.stderr); stage = 1
        if s_ == P.HA_PUB:
            gs.drain(*Q); publish(PH_HA, 'hA')
            cfread(S, 2); cfread(S, 3)
        M = Buf()
        n = int(P.R2*(s_+1)) - int(P.R2*s_)
        for e in range(2):
            for t in range(4):
                g_ = 4*e + t
                mm3(M, 2+e, s_, t, (s_ % 3)*2 + e)
                if g_ < 2 and s_ + 2 < 20: zrd(M, 2+g_, s_+2, ((s_+2) % 3)*2 + g_)
                if g_ in [3, 5, 2, 6][:n] and s_ > 0: w2load(M, 1, 4*s_)
                if g_ == 7 and s_ < 19: M(f'NEED {v(ZRL[((s_+1) % 3)*2],4)}, {v(ZRL[((s_+1) % 3)*2+1],4)}')
        gs.run(M, [S] + Q, P.X2, True)
    gs.drain(S)
    corr(A, 2); corr(A, 3)
    st()
    for e in range(2):
        if e == P.HAP: poll_issue(PH_HA)
        X = Buf(); gelu(X, 2, e, True, 'hB')
        timed(A, X, w2load, P.IV2)
    acquire(PH_HA, bar=False)
    nw2 = w2i[0]
    A.other('HELP', 'HELP_END')
    st.n = svn; w2i[0] = 0; w2lim[0] = nw2
    for s_ in range(20): mfread(A, 48+4*s_, s_)
    A(f's_lshl_b32 s63, s4, 14\ns_add_u32 s63, s63, {STB}')
    statload(A, 16, 0)
    zdma(A, 1, 0, 5, 'z1')
    A('s_mov_b32 s23, 0')
    for s_ in range(20): A(f'{MF} {v(GA+4*(s_&1),4)}, {v(48+4*s_,4)}, {v(48+4*s_,4)}, {v(GA+4*(s_&1),4) if s_ > 1 else "0"}')
    A.wait_tag('z0'); A('s_barrier')
    st()
    DL = Buf()
    for w in range(4):
        for i in range(15):
            if i % 4 == 0: DL(f's_mov_b32 m0, {(110592 + 15360*w if w < 3 else 40960) + i*1024}\ns_add_u32 s6, s95, {[0,14,28,41][w]*5120 + i*1024}')
            DL(f'buffer_load_dwordx4 v1, s[12:15], s6 offen offset:{(i%4)*1024} sc1 lds', tag='w2l')
    def dl(B, n=None):
        while DL.l:
            x = DL.l.pop(0); B(*x)
            if x[0].startswith('buffer'): break
        while DL.l and DL.l[0][0].startswith('s_'): B(*DL.l.pop(0))
    X = Buf()
    for r in range(3): X(f'v_add_f32 v{GA+r}, v{GA+r}, v{GA+4+r}\nv_mul_f32 v{GA+r}, s21, v{GA+r}')
    X(f'v_readlane_b32 s56, v{GA}, 0\nv_readlane_b32 s57, v{GA+1}, 0\nv_readlane_b32 s58, v{GA+2}, 0\nv_readlane_b32 s59, v{GA+1}, 1\nv_readlane_b32 s62, v{GA+2}, 1')
    for x in X.l: A(*x)
    for _ in range(P.DL0): dl(A)
    bar('z1', 'z')
    X = Buf(); statsum(X, 16, 96); stats(X, 16, 0); stats(X, 96, 1)
    timed(A, X, dl, P.IVH1)
    bar()
    st()
    g3 = GS(A)
    def one(T, ld, sides=()):
        fr = [(T, s_, 0) for s_ in range(20)]
        for s_ in range(NR-1): zrd(A, T, s_, s_)
        cfread(A, T)
        stream(g3, fr, 0, 20, sides, ld)
        g3.flush(); corr(A, T, (0,))
    for _ in range(P.DL1): dl(A)
    poll_issue(PH_ZO, 8, False)
    for _ in range(P.DL2): dl(A)
    acquire(PH_ZO, 8, False, False)
    k = 60 - sum(1 for x in DL.l if x[0].startswith('buffer'))
    print('staged before the odd tiles:', k, file=sys.stderr)
    rest = DL.l; DL.l = []
    for h in range(2):
        for T in (2, 3): zdma(DL, T, 10*h, 10, 'z2')
    statload(DL, 96, 1)
    if k < 60:
        w, i = k // 15, k % 15
        DL(f's_mov_b32 m0, {(110592 + 15360*w if w < 3 else 40960) + (i//4)*4096}')
    DL.l += rest
    for i in range(nw2):
        if i % 4 == 2: DL(f's_add_u32 s6, s24, {4096*(i//4)}')
        if i % 4 >= 2: DL(f'buffer_load_dwordx4 {a(4*i,4)}, v1, s[12:15], s6 offen offset:{(i%4)*1024} sc1')
    for _ in range(P.ZN): dl(A)
    one(0, dl)
    while any(x[1] == 'z2' for x in DL.l): dl(A)
    X = Buf(); gelu(X, 0, 0, True, 'hA')
    timed(A, X, dl, P.IVH2)
    st()
    A.wait_tag('z2'); A('s_barrier')
    st()
    one(1, lambda M, n: dl(M) if int((n+1)*P.RH) != int(n*P.RH) else None)
    X = Buf(); gelu(X, 1, 0, True, 'hA')
    timed(A, X, dl, P.IVH3)
    while any(x[1] == 'w2l' for x in DL.l): dl(A)
    X = Buf(); statsum(X, 96, 64); stats(X, 96, 2); stats(X, 64, 3)
    timed(A, X, dl, P.IVH3)
    bar('hA', 'w2l')
    while DL.l: dl(A)
    late = [i for i in range(nw2) if i % 4 < 2]
    def own(M, n):
        if late and late[0] < 4*(n//2):
            i = late.pop(0)
            M(f'buffer_load_dwordx4 {a(4*i,4)}, v1, s[12:15], s24 offen offset:{(i%4)*1024} sc1')
            if i % 4 == 1 and i + 2 < nw2: M('s_add_u32 s24, s24, 4096')
    fr = [(T, s_, 0) for s_ in range(20) for T in (2, 3)]
    for n in range(NR-1): zrd(A, fr[n][0], fr[n][1], n)
    cfread(A, 2); cfread(A, 3)
    stream(g3, fr, 0, 40, (), own)
    g3.flush()
    assert not late
    corr(A, 2, (0,)); corr(A, 3, (0,))
    st()
    gelu(A, 2, 0, True, 'hB')
    w2i[0] = nw2
    A.join('HELP_END')
    A('s_barrier')
    w2lim[0] = 55
    RING = [192+4*i for i in range(16)] + [96, 100, 104, 108, 128, 132, 112, 116, 120, 124]
    NH = len(RING)
    KO = list(range(12)) + [13, 12]
    order = [(e, k) for k in KO for e in range(2)] + [(T, k) for T in (2, 3) for k in KO]
    cons = [(e, k) for k in range(14) for e in range(2)] + [(T, k) for T in (2, 3) for k in range(14)]
    hreg = lambda T, k: RING[order.index((T, k)) % NH]
    hi_ = [0]; used = set(); have = {0, 1}; rlim = [22]
    def hnext():
        i = hi_[0]
        if i >= 56 or order[i][0] not in have or (i < NH and i >= rlim[0]) or (i >= NH and order[i-NH] not in used): return None
        return cons.index(order[i])
    def hload(B):
        T, k = order[hi_[0]]; hi_[0] += 1
        so = ['s25', 's25', 's23', 's63'][T]
        B(k13(k, f'buffer_load_dwordx4 {v(hreg(T,k),4)}, v1, s[12:15], {so} offen offset:{1024*T} sc1'))
        if T and k != 12: B(f's_add_u32 {so}, {so}, {8192 if k == 11 else (-4096 if k == 13 else 4096)}')
    def need4(): return min([x for x in (hnext(), 2*(3 + w2i[0]//5) if w2i[0] < 55 else None, 999) if x is not None])
    def l4(B):
        h = hnext(); w = 2*(3 + w2i[0]//5) - P.WPRI if w2i[0] < 55 else None
        if h is not None and (w is None or h <= w): hload(B)
        elif w is not None: w2load(B)
    A(f's_lshl_b32 s25, s26, 12\ns_add_u32 s25, s25, s53\ns_mov_b32 s23, s25\ns_mov_b32 s63, s25')
    for _ in range(P.HA0): l4(A)
    def w2reg(k, t):
        if k >= 3: return 256 + ((k-3)*5 + t)*4
        i = k*5 + t
        return 256 + 220 + i*4 if i < 9 else 136 + (i-9)*4
    GR, BR = 160, 166
    A(f'v_add_u32 v12, s96, v1')
    for i in range(15): A(f'ds_read_b128 {R(w2reg(i//5, i%5),4)}, v12 offset:{1024*i}')
    A('s_lshr_b32 s6, s3, 1\ns_lshl_b32 s101, s6, 6\nv_add_u32 v8, s101, v8')
    A(f'v_add_u32 v13, {BIA}, v8\nv_add_u32 v4, {BIA}, v9')
    A(f'ds_read_b128 {v(BR,4)}, v13 offset:512\nds_read_b64 {v(BR+4,2)}, v4 offset:{512+128}')
    A(f'ds_read_b128 {v(GR,4)}, v13 offset:{VEC-BIA+2560+160}\nds_read_b64 {v(GR+4,2)}, v4 offset:{VEC-BIA+2560+160+128}')
    A('s_lshl_b32 s7, s6, 11\ns_and_b32 s6, s3, 1\ns_mul_i32 s6, s6, 20480\nv_add_u32 v13, s6, v1\nv_add_u32 v0, s7, v13')
    A('s_mul_i32 s6, s3, 5120\nv_add_u32 v12, s6, v1\nv_add_u32 v4, 40960, v12')
    G = 64
    Q = [Buf(), Buf()]
    for e in range(2):
        if P.PB2 == e - 2: publish(PH_HB, 'jn')
        if e < 2 - P.GSH:
            X = Buf(); gelu(X, 3, e, True, 'hC', G)
            timed(A, X, l4, P.IV3, stop_before=P.ST3 if e else 0)
        else: gelu(Q[e], 3, e, False, 'hC', G)
    st()
    print('w2 issued before G4:', w2i[0], 'hid', hi_[0], file=sys.stderr)
    ACC = 16
    def mm4(T, k, t, B=A):
        acc = ACC + (T*5 + t)*4
        B(f'{MF} {v(acc,4)}, {R(w2reg(k,t),4)}, {v(hreg(T,k),4)}, {v(acc,4) if k else "0"}')
    def redw(T, t, B=A): B(f'ds_write_b128 {"v12" if T < 2 else "v4"}, {v(ACC+(T*5+t)*4,4)} offset:{(T%2)*20480 + t*1024}')
    def rrd(B, d, half, u, w): B(f'ds_read_b128 {v(d,4)}, {"v0" if u < 2 else "v13"} offset:{40960*half + 5120*w + (1024*u if u < 2 else 4096)}')
    def outst(B, half, o):
        B(f'buffer_store_dwordx4 {v(o,4)}, v6, s[16:19], s97 offen offset:{1280*half} {P.OUTF}')
        B(f'buffer_store_dwordx2 {v(o+4,2)}, v7, s[16:19], s97 offen offset:{1280*half+128} {P.OUTF}')
    TU = 16
    gs = GS(A); F = Buf(); wq = []; nm = 0
    for n, (T, k) in enumerate(cons):
        if not any(q.l for q in Q): rlim[0] = NH
        if n == P.PB2: gs.flush(); publish(PH_HB, 'jn')
        if n == P.PB3: gs.drain(*Q); publish(PH_HC, 'hC')
        if n == P.PI2: gs.flush(); poll_issue(PH_HB)
        if n == P.AQ2: gs.flush(); acquire(PH_HB); st(); have.add(2)
        if n == P.PI3: gs.flush(); poll_issue(PH_HC)
        if n == P.AQ3: gs.flush(); acquire(PH_HC); have.add(3)
        if n == 28: assert not any(q.l for q in Q)
        if n == 29: wq += [(T_, t) for T_ in range(2) for t in range(5)]
        if n == 43: wq += [(2, t) for t in range(5)]
        if n == P.RED_AT:
            assert not [x for x in wq if x[0] < 2] and n > 29
            if n != P.AQ3: gs.flush(); A('s_waitcnt lgkmcnt(0)\ns_barrier')
            base = [16, 32, 16]
            for u in range(3):
                for w in range(4): rrd(F, base[u]+4*w, 0, u, w)
                for uu in [[], [0], [1, 2]][u]:
                    b = base[uu]
                    for d in range(2):
                        p_ = 2*uu + d; t_ = 172 + 4*(d & 1)
                        for r in range(2): F(f'v_add_f32 v{b+2*d+r}, v{b+2*d+r}, v{b+4+2*d+r}\nv_add_f32 v{b+8+2*d+r}, v{b+8+2*d+r}, v{b+12+2*d+r}')
                        unpack(F, t_, BR+p_)
                        for r in range(2): F(f'v_add_f32 v{b+2*d+r}, v{b+2*d+r}, v{b+8+2*d+r}')
                        for r in range(2): F(f'v_add_f32 v{b+2*d+r}, v{b+2*d+r}, v{t_+r}')
                        unpack(F, t_, GR+p_); unpack(F, t_+2, RX+p_)
                        for r in range(2): F(f'v_fma_f32 v{t_+2+r}, v{b+2*d+r}, v{t_+r}, v{t_+2+r}')
                        F(f'v_cvt_pk_bf16_f32 v{48+p_}, v{t_+2}, v{t_+3}')
            outst(F, 0, 48)
            for d in range(5):
                unpack(F, TU+6*d, RX+6+d); unpack(F, TU+6*d+2, GR+d); unpack(F, TU+6*d+4, BR+d)
        while hi_[0] <= order.index((T, k)) or (T < 2 and w2i[0] < 5*(k - 2)):
            gs.flush(); c_ = hi_[0] + w2i[0]; l4(A); assert hi_[0] + w2i[0] > c_
        if k == 13:
            gs.flush()
            A('OPT s_cmp_ge_u32 s3, 2')
            for t in range(5): mm4(T, k, t)
            A('ENDOPT')
        else:
            M = Buf()
            for t in range(5):
                mm4(T, k, t, M); nm += 1
                if int(nm*P.HR) != int((nm-1)*P.HR) or (t in P.URG and need4() < n + P.LEAD): l4(M)
                elif wq and t in (1, 3): redw(*wq.pop(0), M)
            gs.run(M, Q + [F], 0, True)
        used.add((T, k))
    gs.flush()
    assert hi_[0] == 56 and not wq
    st()
    print('left of the first half:', gs.drain(F), file=sys.stderr)
    unpack(A, 172, RX+11); unpack(A, 174, GR+5); unpack(A, 176, BR+5)
    for t in range(5): redw(3, t)
    A('s_waitcnt lgkmcnt(0)\ns_barrier')
    RD = 192
    for u in range(3):
        for w in range(4): rrd(A, RD+16*u+4*w, 1, u, w)
    OP = 56
    for d in range(6):
        b = RD + 16*(d >> 1) + 2*(d & 1); t_ = TU+6*d if d < 5 else 172
        A(f'v_pk_add_f32 {pr(b)}, {pr(b)}, {pr(b+4)}\nv_pk_add_f32 {pr(b+8)}, {pr(b+8)}, {pr(b+12)}')
        A(f'v_pk_add_f32 {pr(b)}, {pr(b)}, {pr(b+8)}\nv_pk_add_f32 {pr(b)}, {pr(b)}, {pr(t_+4)}')
        A(f'v_pk_fma_f32 {pr(t_)}, {pr(b)}, {pr(t_+2)}, {pr(t_)}')
        A(f'v_cvt_pk_bf16_f32 v{OP+d}, v{t_}, v{t_+1}')
        if d == 3: A(f'buffer_store_dwordx4 {v(OP,4)}, v6, s[16:19], s97 offen offset:1280 {P.OUTF}')
    A(f'buffer_store_dwordx2 {v(OP+4,2)}, v7, s[16:19], s97 offen offset:1408 {P.OUTF}')
    st.flush()
    A.label('KP_END')
    A('s_endpgm')
    return khead(KN) + A.finish() + kd(KN, 512, 256, 102)

P.IV2, P.HA0, P.HB_PUB, P.HB_ISSUE, P.HB_CHECK, P.HR, P.HB0 = 80, 8, 4, 8, 11, 2, 10
for _kv in 'UE=4 G2O=0.2 G2E=0.2 Z1=15 OE_AT=99 XB=1 RB0=1.75 RBS=8 RB=1.75 OE_PUB=13 UE0=99 WZ=0 G2N=44 CF1=44 ZN=20 X2=1 HA_PUB=15 R2=1.75 OO_K=2 UK=11 HR=0.25 HA0=2 RED_AT=36 HAP=1 ST3=0 G2O=0.25 G2N2=38 IVZ2=140 IVZ=80 EST=50 G2E=0.25 R1=0.6 DL0=10 DL1=10 DL2=17 IVH1=60 ZN=26 IVH2=40 RH=0.8 IVH3=80 R2=2.0 HA_PUB=15 IV2=40 RB0=2.0 RB=2.0 IVA=60 IVE=100 UK=7 OO_K=6 CF1=42 LEAD=11 PB2=-1 PB3=5 PI2=10 AQ2=16 PI3=22 AQ3=31 IV3=50 WPRI=10 W0=4 W1=3 IV=45 MP="ssssssWwWwWwWwW" SB_ISSUE=10 SB_CHECK=14 FB_STEP=-1 A1=17 XA0=2 XA=0 XAS=5 RA0=4 RA=3'.split():
    setattr(P, _kv.split('=')[0], eval(_kv.split('=')[1]))
def build():
    hdr = '; persistent fused block: one workgroup per CU, hand-offs through d_ws\n'
    hdr += f'; @launch grid=(256,1,1) block=(256,1,1) lds={LDS_BYTES}\n'
    return hdr + '.amdgcn_target "amdgcn-amd-amdhsa--gfx950"\n' + kp()

if __name__ == '__main__':
    Cfg.STAMP = sys.argv[2] if len(sys.argv) > 2 and sys.argv[2] != '-' else False
    for kv in sys.argv[3:]:
        k_, v_ = kv.split('=', 1); setattr(P, k_, eval(v_))
    open(sys.argv[1], 'w').write(build())
```

```python
from common import *
import re
MF = 'v_mfma_f32_16x16x32_bf16'
PA, PB = 672, 736
LB = 112704
X4 = 102400; ZERO = X4 + 7680
MODF = 112704
VEC = 158720
LDS_BYTES = VEC + 5120
def unpack(A, dst, src):
    A(f'v_lshlrev_b32 v{dst}, 16, v{src}\nv_and_b32 v{dst+1}, 0xffff0000, v{src}')
def pr(r): return f'v[{r}:{r+1}]'
IF = 'inflight_ok'

LD = 216
LC = LB + 32*PB
SILU = VEC
def mod_proc(B, base, cg, q, npad, D, tagged=True):
    B(f'v_bfe_u32 v13, v2, 3, 2\nv_xor_b32 v13, s3, v13\nv_lshrrev_b32 v12, 2, v2\nv_lshlrev_b32 v12, 7, v12\nv_lshl_add_u32 v12, v13, 5, v12\nv_and_b32 v13, 3, v2\nv_lshl_add_u32 v12, v13, 3, v12')
    if base: B(f'v_add_u32 v12, {base}, v12')
    B(f's_mul_i32 s6, s{q}, 320\ns_add_u32 s6, s6, {SILU}\nv_lshl_add_u32 v13, v3, 3, s6')
    for s_ in range(5):
        B(f'ds_read_b64_tr_b16 {R(D+4*s_,2)}, v12 offset:{4096*s_}\nds_read_b64_tr_b16 {R(D+4*s_+2,2)}, v12 offset:{4096*s_+2048}')
        B(f'ds_read_b64 {R(D+20+4*s_,2)}, v13 offset:{64*s_}\nds_read_b64 {R(D+22+4*s_,2)}, v13 offset:{64*s_+32}')
    B(f'v_lshlrev_b32 v12, 6, v3\nv_cmp_eq_u32 vcc, 0, v5\nv_cndmask_b32 v13, v11, v12, vcc')
    B(f's_lshl_b32 s6, s{cg}, 10\ns_lshl_b32 s7, s{q}, 4\ns_add_u32 s6, s6, s7\ns_lshl_b32 s7, s3, 8\ns_add_u32 s6, s6, s7\ns_add_u32 s6, s6, {MODP}')
    if tagged: B('v_mov_b32 v12, s94\ns_cmp_lt_u32 s2, 80')
    for s_ in range(5):
        B(f'{MF} v[252:255], {R(D+4*s_,4)}, {R(D+20+4*s_,4)}, {"v[252:255]" if s_ else "0"}')
    for r in range(4 if tagged else 0):
        B(f's_mov_b32 s7, 0x07060504\ns_cmov_b32 s7, {hx(0x07060500 + r)}\nv_perm_b32 v{252+r}, v{252+r}, v12, s7')
    B(f'buffer_store_dwordx4 v[252:255], v13, s[12:15], s6 offen sc1')
    pad_st(B, npad - 1)
def pad_st(B, n):
    for _ in range(n): B('buffer_store_dword v11, v11, s[12:15], 0 offen')
def pad_ld(B, n):
    for _ in range(n): B('buffer_load_dword v0, v11, s[12:15], 0 offen', tag='touch')

def slotA_proc():
    B = Asm()
    B('s_cmp_eq_u32 s95, 0\ns_cbranch_scc1 PA_M')
    B(f'v_lshrrev_b32 v12, 2, v2\nv_mul_u32_u24 v12, {PA}, v12\nv_and_b32 v13, 3, v2\ns_mul_i32 s6, s3, 160\nv_add_u32 v12, s6, v12')
    B('v_mul_u32_u24 v14, 40, v13\nv_add_u32 v14, v14, v12\nv_lshl_add_u32 v12, v13, 3, v12')
    for t in range(5):
        d = LD + 4*t
        ad, off = ('v12', 40*t) if t < 4 else ('v14', 32)
        B(f'ds_read_b64_tr_b16 {v(d,2)}, {ad} offset:{off}\nds_read_b64_tr_b16 {v(d+2,2)}, {ad} offset:{off+16*PA}')
    B(f's_and_b32 s6, s57, 1\ns_lshl_b32 s6, s6, 2\ns_add_u32 s6, s6, s3\ns_mul_i32 s6, s6, {4*20*4096}\ns_lshl_b32 s7, s56, 12\ns_add_u32 s6, s6, s7\ns_add_u32 s6, s6, {WQ_F}')
    B(f's_lshr_b32 s7, s57, 1\ns_mul_i32 s24, s7, {20*4096}\ns_add_u32 s24, s24, s6\ns_lshl_b32 s7, s7, 10\ns_add_u32 s6, s6, s7')
    for t in range(4):
        B(f'buffer_store_dwordx4 {v(LD+4*t,4)}, v1, s[12:15], s6 offen sc1')
        if t < 3: B(f's_add_u32 s6, s6, {20*4096}')
    B(f'buffer_store_dwordx4 {v(LD+16,4)}, v1, s[12:15], s24 offen offset:3072 sc1')
    B('s_branch PA_END')
    B.label('PA_M')
    mod_proc(B, 0, 54, 55, 5, 256)
    B.label('PA_END')
    return B.finish()

def slotB_decode():
    B = Asm()
    B('s_and_b32 s20, s3, 1\ns_lshr_b32 s21, s3, 1')
    B(f's_mul_i32 s31, s3, {8*PB}\ns_add_u32 s31, s31, {LB}\ns_movk_i32 s35, 0xff\nv_mov_b32 v249, v1\ns_mov_b32 s61, 0\ns_and_b32 s34, s2, 1')
    B('s_cmp_lt_u32 s2, 100\ns_cbranch_scc1 SB_W1\ns_cmp_ge_u32 s2, 140\ns_cbranch_scc1 SB_W2')
    B('s_sub_u32 s59, s2, 100\ns_lshr_b32 s59, s59, 1')
    srd(B, 96, 32, SZ['wo'])
    B('s_mul_i32 s7, s59, 40\ns_mul_i32 s22, s20, 20\ns_add_u32 s7, s7, s22\ns_lshl_b32 s22, s21, 2\ns_add_u32 s7, s7, s22')
    B('s_sub_u32 s6, s59, 16\ns_mul_i32 s6, s6, 160\ns_mul_i32 s22, s20, 80\ns_add_u32 s6, s6, s22\ns_mul_i32 s22, s21, 20\ns_add_u32 s6, s6, s22\ns_add_u32 s6, s6, 16')
    B(f's_cmp_ge_u32 s59, 16\ns_cselect_b32 s7, s6, s7\ns_mov_b32 s30, {5*1280}\ns_cmov_b32 s30, {37*1280}')
    B('s_mov_b32 s58, 1\ns_cmp_ge_u32 s59, 10\ns_cselect_b32 s61, 64, 0')
    B(f's_mov_b32 s62, {WO_F}\ns_mov_b32 s63, {20*5120}')
    B('s_branch SB_WW')
    B.label('SB_W2')
    B('s_sub_u32 s59, s2, 140\ns_lshr_b32 s59, s59, 1')
    srd(B, 96, 40, SZ['w2'])
    B('s_lshl_b32 s7, s59, 5\ns_lshl_b32 s22, s3, 3\ns_add_u32 s7, s7, s22\ns_mov_b32 s30, 1280')
    B(f's_mov_b32 s62, {W2_F}\ns_mov_b32 s63, {54*5120}')
    B('s_cmp_ge_u32 s2, 248\ns_cselect_b32 s58, 3, 1\ns_cselect_b32 s7, 0, s7\ns_cselect_b64 vcc, -1, 0\nv_cndmask_b32 v249, v1, v11, vcc')
    B.label('SB_WW')
    B('s_mov_b32 s29, 1280\ns_mul_i32 s28, s7, 1280\ns_mul_i32 s22, s34, 640\ns_add_u32 s28, s28, s22')
    B('s_lshl_b32 s22, s34, 2\ns_add_u32 s22, s22, s3\ns_mul_i32 s22, s22, s63\ns_add_u32 s62, s62, s22\ns_mul_i32 s22, s59, 5120\ns_add_u32 s62, s62, s22')
    B('s_branch SB_END')
    B.label('SB_W1')
    B('s_mul_i32 s59, s2, 52429\ns_lshr_b32 s59, s59, 18\ns_mul_i32 s61, s59, 5\ns_sub_u32 s61, s2, s61')
    srd(B, 96, 36, SZ['w1'])
    B('s_lshr_b32 s7, s59, 1\ns_mul_i32 s7, s7, 80\ns_and_b32 s22, s59, 1\ns_lshl_b32 s22, s22, 5\ns_add_u32 s7, s7, s22\ns_add_u32 s7, s7, s60')
    B('s_sub_u32 s6, s59, 16\ns_mul_i32 s6, s6, 160\ns_mul_i32 s22, s21, 80\ns_add_u32 s6, s6, s22\ns_lshl_b32 s22, s20, 3\ns_add_u32 s6, s6, s22\ns_add_u32 s6, s6, 64')
    B(f's_cmp_ge_u32 s59, 16\ns_cselect_b32 s7, s6, s7\ns_mov_b32 s30, {5*3456}\ns_cmov_b32 s30, 3456')
    B('s_mov_b32 s29, 3456\ns_mul_i32 s28, s7, 3456\ns_mul_i32 s22, s61, 704\ns_add_u32 s28, s28, s22')
    B('s_movk_i32 s35, 0xfff\ns_mov_b32 s58, 2')
    B(f's_mul_i32 s62, s61, 11\ns_add_u32 s62, s62, s21\ns_mul_i32 s62, s62, 40960\ns_lshl_b32 s22, s59, 11\ns_add_u32 s62, s62, s22\ns_lshl_b32 s22, s20, 10\ns_add_u32 s62, s62, s22\ns_add_u32 s62, s62, {W1_F}')
    B.label('SB_END')
    return B.finish()

def slotB_proc():
    B = Asm()
    H = 16*PB; D = 216
    B(f'v_lshrrev_b32 v12, 2, v2\nv_mul_u32_u24 v12, {PB}, v12\nv_and_b32 v13, 3, v2\nv_add_u32 v12, {LB}, v12')
    B(f's_mov_b32 s96, s62\ns_mov_b32 s99, {OOBS}')
    B('s_cmp_eq_u32 s58, 2\ns_cbranch_scc1 PB_W1')
    B('s_mul_i32 s6, s3, 160\nv_add_u32 v12, s6, v12\nv_lshl_add_u32 v14, v13, 3, v12\nv_lshl_add_u32 v12, v13, 4, v12\nv_subrev_u32 v15, s61, v12\nv_add_u32 v12, s61, v12')
    for t in range(5):
        d = D + t*4
        ad, off = ('v15' if t >> 1 else 'v12', 64*(t >> 1) + 8*(t & 1)) if t < 4 else ('v14', 128)
        B(f'ds_read_b64_tr_b16 {a(d,2)}, {ad} offset:{off}\nds_read_b64_tr_b16 {a(d+2,2)}, {ad} offset:{off+H}', 'touch')
    B('s_movk_i32 s97, 1024\ns_branch PB_END')
    B.label('PB_W1')
    B('s_lshl_b32 s6, s3, 5\nv_add_u32 v12, s6, v12\nv_lshl_add_u32 v12, v13, 3, v12')
    for i in range(6):
        d = D + i*4
        B(f'ds_read_b64_tr_b16 {a(d,2)}, v12 offset:{128*i}\nds_read_b64_tr_b16 {a(d+2,2)}, v12 offset:{128*i+H}', 'touch')
    B('s_mov_b32 s97, 81920\ns_lshr_b32 s6, s61, 1\ns_or_b32 s6, s6, s3\ns_cmp_lt_u32 s6, 2\ns_cmov_b32 s99, 81920')
    B.label('PB_END')
    return B.finish()

def slotC_proc():
    B = Asm()
    B('s_cmp_lt_u32 s2, 104\ns_cbranch_scc1 PC_M')
    pad_st(B, 1)
    B('s_branch PC_END')
    B.label('PC_M')
    T_ = Buf(); mod_proc(T_, LC, 51, 53, 1, 256+176)
    for l_, t_ in T_.l: B(l_.replace('v12', 'v250').replace('v13', 'v251'), t_)
    B.label('PC_END')
    return B.finish()

class P:
    NXF, NX0 = 0, 13
    XROT = True
    SEQ = 'E a x12 l0 f F b0 l1 l2 b1 m g l3:r l4'
    FINE = False
    ROTW = ROT1 = False
    FC_STEP, SC_ISSUE = 7, 4
    RAS, XAS = 8, 8
    RA0, XA0 = 4, 2
    CAT, W1, MP, XB2 = -1, 3, 'sw', 0
    LEAD, URG = 10, (0, 2)
    WPRI, PB2, PB3, PI2, AQ2, PI3, AQ3, GSH, IV3, ST3 = 0, 0, 8, 12, 18, 26, 32, 0, 70, 100
    ON, OG = 2, 4
    ST2 = False
    DL0, DL1, DL2, RH, IVH3, HAP = 6, 6, 8, 0.5, 80, 0
    EL = 4
    OW, ZE_K, G2N, G2N2 = 'w', 0, 30, 30
    UK, UE0 = 10, 4
    RB0, RBS = 2, 10
    WZ, CF1, IVH0, IVH1, IVH2 = 4, 30, 100, 60, 60
    RXG, G2O, IVZ2, UP, WU, UT, ZERO3, Z1, CF0, RED_AT = 60, 0.1, 200, 30, 4, 1, False, 12, 30, 6
    DBG = 0
    STA = STB_ = ()
    BSWAP = True
    OPRE = 8
    NPRE = 3
    W0 = 6
    FB_STEP, A1, A2, SB_ISSUE, SB_CHECK = 3, 8, 14, 11, 14
    RA, RB = 4, 2
    XA, XB = 2, 0
    UE, UO, U3, G2E, G2F, WO0, WE0, W30 = 2, 1.5, 2, 0.2, 20, 8, 4, 4
    IVA, IVE, IVO, IVZ, OST, EST, OE_AT, O0E, O0O = 80, 80, 80, 100, 100, 150, 50, 14, 14
    OE_PUB = 17
    IV = 80
    OO_K, OO_U = 36, 36
    U0, ZP = 30, 1
    ZF, ZI, ZA, ZQ, R1, R1B, N1, NE2 = 14, 50, 62, 8, 0.5, 0.4, 20, 6
    ZN, X1, X2, R2 = 4, 0, 0, 2
    HA_PUB, CF_AT = 16, 19
    HB_ISSUE, HB_CHECK, OUTF = 3, 7, ''
WOL = 112704
MODF = X4
BIA = 157760
RXA = 240
PH_OE, PH_OO, PH_ZE, PH_ZO, PH_HA, PH_HB, PH_HC = range(7)
SPIN = 0x40000
NBS = 6
FLC = 0x8800

def kp():
    A = Asm()
    KN = NAME + '_kernel'
    A('s_cmp_ge_u32 s2, 256\ns_cbranch_scc1 KP_END')
    A('s_load_dwordx16 s[28:43], s[0:1], 0\ns_load_dwordx8 s[44:51], s[0:1], 64\ns_load_dwordx2 s[52:53], s[0:1], 96')
    A('s_getpc_b64 s[20:21]')
    A.label('PC0', IF)
    A('s_lshr_b32 s7, s2, 3\ns_lshl_b32 s6, s7, 8\nv_add_u32 v1, s6, v0\nv_lshrrev_b32 v1, 4, v1\nv_lshlrev_b32 v1, 7, v1\nv_min_u32 v1, KP_END-PC0, v1')
    A('global_load_dword v243, v1, s[20:21]', tag='touch')
    A('s_and_b32 s6, s2, 7')
    A('s_lshr_b32 s4, s6, 1\ns_lshl_b32 s4, s4, 3\ns_lshr_b32 s5, s7, 2\ns_add_u32 s4, s4, s5')
    A('s_and_b32 s5, s6, 1\ns_lshl_b32 s5, s5, 2\ns_and_b32 s7, s7, 3\ns_add_u32 s5, s5, s7')
    A('v_lshrrev_b32 v1, 6, v0\nv_and_b32 v2, 63, v0\nv_readfirstlane_b32 s3, v1\nv_lshlrev_b32 v1, 4, v2')
    A('s_and_b32 s6, s3, 1\ns_lshl_b32 s60, s6, 4\ns_lshr_b32 s6, s3, 1\ns_lshl_b32 s6, s6, 2\ns_add_u32 s60, s60, s6')
    A('s_sub_u32 s6, s2, 80\ns_mul_i32 s56, s6, 10923\ns_lshr_b32 s56, s56, 16\ns_mul_i32 s57, s56, 6\ns_sub_u32 s57, s6, s57')
    A('s_and_b32 s22, s2, 7\ns_lshr_b32 s23, s2, 3\ns_mul_i32 s54, s22, 10\ns_add_u32 s54, s54, s23')
    A('s_mul_i32 s55, s54, 3277\ns_lshr_b32 s55, s55, 16\ns_mul_i32 s24, s55, 20\ns_sub_u32 s54, s54, s24')
    A('s_mul_i32 s22, s22, 7\ns_add_u32 s22, s22, s23\ns_sub_u32 s22, s22, 5\ns_sub_u32 s23, s22, 40\ns_cmp_ge_u32 s22, 60\ns_cselect_b32 s22, s23, s22\ns_cselect_b32 s23, 1, 0')
    A('s_cmp_ge_u32 s2, 200\ns_cselect_b32 s54, s22, s54\ns_cselect_b32 s55, s23, s55')
    A('s_lshl_b32 s22, s56, 5\ns_add_u32 s22, s22, s60\ns_mul_i32 s22, s22, 3840\ns_mul_i32 s23, s57, 640\ns_add_u32 s22, s22, s23')
    A('s_mul_i32 s24, s55, 160\ns_mul_i32 s23, s3, 40\ns_add_u32 s24, s24, s23\ns_mul_i32 s24, s24, 7680\ns_lshl_b32 s23, s54, 7\ns_add_u32 s24, s24, s23')
    A('v_lshrrev_b32 v12, 3, v2\nv_and_b32 v15, 6, v12\nv_mul_u32_u24 v12, 7680, v12\nv_and_b32 v13, 7, v2\nv_xor_b32 v15, v15, v13\nv_lshl_add_u32 v254, v15, 4, v12')
    A(f's_mov_b32 s25, 61440\ns_mov_b32 s26, 61440\ns_movk_i32 s27, 1024\ns_movk_i32 s58, 5120\ns_mov_b32 s59, -1\ns_mov_b32 s18, {SZ["wmod"]}\ns_mov_b32 s19, 0x20000')
    A(f's_cmp_lt_u32 s6, 120\ns_cselect_b32 s95, 1, 0\ns_cselect_b32 s24, s22, s24\ns_cmov_b32 s25, 3840\ns_cmov_b32 s26, 19200\ns_cmov_b32 s27, {PA}\ns_cmov_b32 s58, {8*PA}\ns_cmov_b32 s59, 0xff\ns_cmov_b32 s18, {SZ["wqkv"]}\ns_cselect_b64 vcc, -1, 0')
    A('v_cndmask_b32 v12, v254, v1, vcc\ns_mul_i32 m0, s3, s58')
    XR, XN = 116, 16
    WAr = [4, 6, 7, 8, 9]
    A('v_lshrrev_b32 v3, 4, v2\nv_and_b32 v5, 15, v2\ns_lshl_b32 s6, s3, 2\nv_add_u32 v15, s6, v3')
    A('v_mul_u32_u24 v14, 2560, v15\nv_lshl_add_u32 v14, v5, 4, v14')
    A('v_xor_b32 v15, v15, v13\nv_lshlrev_b32 v15, 4, v15\nv_lshl_add_u32 v15, v5, 8, v15')
    A('v_lshlrev_b32 v13, 3, v0')
    A('s_lshl_b32 s8, s4, 6\ns_cmp_lt_u32 s3, 2\ns_cselect_b32 s9, 17, 0')
    A('s_and_b32 s6, s5, 3\ns_cmp_eq_u32 s6, 3\ns_cselect_b32 s6, 0, s6\ns_and_b32 s10, s5, 1' if P.XROT else 's_mov_b32 s6, 0\ns_mov_b32 s10, 0')
    for i in range(5):
        if i < 3:
            A(f's_add_u32 s7, s6, {i}\ns_sub_u32 s22, s7, 3\ns_cmp_ge_u32 s7, 3\ns_cselect_b32 s7, s22, s7')
            A('s_lshl_b32 s22, s7, 5\ns_cmp_eq_u32 s7, 0\ns_cselect_b32 s22, s9, s22\ns_sub_u32 s22, s22, 32')
        else:
            A(f's_xor_b32 s7, s10, {i-3}\ns_lshl_b32 s22, s7, 5\ns_add_u32 s22, s22, 1\ns_add_u32 s7, s7, 3')
        A(f's_add_u32 s22, s22, s8\ns_mul_i32 s22, s22, 1280\nv_add_u32 v{WAr[i]}, s22, v14\ns_mul_i32 s7, s7, 20480\nv_add_u32 v{244+i}, s7, v15')
    A(f's_mov_b32 s10, {SZ["x"]}\ns_mov_b32 s11, 0x20000')
    A('s_cmp_eq_u32 s95, 1\ns_waitcnt lgkmcnt(0)\ns_cselect_b32 s16, s30, s46\ns_cselect_b32 s17, s31, s47\ns_mov_b32 s8, s28\ns_mov_b32 s9, s29')
    st = St(A, 0, wsp=12); st()
    st2 = st if P.ST2 else (lambda: None)
    srd(A, 96, 44, SZ['c'])
    A('buffer_load_dwordx2 v[240:241], v13, s[96:99], 0 offen')
    xl = [(i, m) for i in range(5) for m in range(5)]
    xn = [0]
    def xload(B, n):
        for i, m in xl[xn[0]:xn[0]+n]:
            B(f'buffer_load_dwordx4 {v(XR+(i*5+m)*4,4)}, v{WAr[i]}, s[8:11], 0 offen offset:{256*m}')
        xn[0] += n
    xload(A, P.NXF)
    A('s_mov_b32 exec_hi, s59')
    for i in range(8):
        if i == 5: A('OPT s_cmp_eq_u32 s95, 0')
        A('buffer_load_dwordx4 v12, s[16:19], s24 offen nt lds', 'la')
        if i < 7: A(f's_add_u32 s24, s24, s{26 if i == 3 else 25}\ns_add_u32 m0, m0, s27')
    A('ENDOPT')
    A('s_mov_b64 exec, -1')
    A(f's_load_dword s94, s[52:53], {EPO}')
    srd(A, 12, 52, WS_END)
    xload(A, P.NX0)
    A(f'v_mov_b32 v11, {OOB}\nv_cmp_eq_u32 vcc, 0, v0\nv_cndmask_b32_e64 v10, v11, 0, vcc')
    A(f'v_add_u32 v242, {SILU}, v13')
    A('s_mul_i32 s6, s5, 448\ns_mul_i32 s7, s5, 384\ns_add_u32 s7, s7, 384\ns_cmp_ge_u32 s5, 6\ns_cselect_b32 s6, s7, s6\ns_mul_i32 s7, s5, 160')
    A(f's_mov_b32 s98, {SZ["b1"]}\ns_mov_b32 m0, {BIA}\ns_bitcmp1_b32 s3, 0\ns_cselect_b32 s96, s42, s38\ns_cselect_b32 s97, s43, s39\ns_cselect_b32 s6, s7, s6\ns_cmov_b32 s98, {SZ["b2"]}\ns_cmov_b32 m0, {BIA+512}')
    A('s_mov_b64 exec, 0xfffffff\nbuffer_load_dwordx4 v1, s[96:99], s6 offen lds\ns_mov_b64 exec, -1')
    A.raw(slotB_decode())
    A(f's_mul_i32 s94, s94, 0x2c9277b5\ns_add_u32 s94, s94, 0xac564b05')
    A('s_mov_b32 s100, 0x3f803f80')
    srd(A, 16, 46, SZ['wmod'])
    A('s_and_b32 s6, s2, 7\ns_mul_i32 s6, s6, 13\ns_lshr_b32 s7, s2, 3\ns_add_u32 s6, s6, s7\ns_add_u32 s6, s6, 56\ns_mul_i32 s53, s6, 1639\ns_lshr_b32 s53, s53, 16\ns_mul_i32 s51, s53, 40\ns_sub_u32 s51, s6, s51\ns_add_u32 s51, s51, 20')
    A('s_mul_i32 s6, s53, 160\ns_mul_i32 s7, s3, 40\ns_add_u32 s6, s6, s7\ns_mul_i32 s6, s6, 7680\ns_lshl_b32 s7, s51, 7\ns_add_u32 s50, s6, s7')
    A(f's_cmp_lt_u32 s2, 104\ns_cselect_b32 s50, s50, 0\ns_cselect_b32 s6, 0, {OOB}\nv_add_u32 v0, s6, v254')
    A('s_and_b32 s44, s94, 0xff\ns_bfe_u32 s45, s94, 0x80008\ns_bfe_u32 s46, s94, 0x80010\ns_lshr_b32 s47, s94, 24')
    A('v_and_b32 v12, 1, v2\nv_cmp_eq_u32 s[32:33], 1, v12\nv_and_b32 v12, 2, v2\nv_cmp_eq_u32 s[36:37], 2, v12')
    QM = ['s[32:33]', 's[36:37]', 's[40:41]']
    A(f's_lshl_b32 s23, s3, 10\ns_add_u32 s23, s23, {MODP}')
    A(f's_lshr_b32 s25, s5, 2\ns_lshl_b32 s25, s25, 8\ns_add_u32 s25, s25, {FLA}')
    A(f'v_mov_b32 v12, 0\nv_mov_b32 v13, 0\nv_mov_b32 v14, {ZERO}\nds_write_b64 v14, v[12:13]')
    S0 = 14; T_ = 13
    def lnrows(B, i):
        a_, b_ = S0, S0+1
        B(f'v_mov_b32 v{a_}, 0\nv_mov_b32 v{b_}, 0')
        for d in range(20):
            r = XR + i*20 + d
            B(f'v_dot2_f32_bf16 v{a_}, v{r}, s100, v{a_}\nv_dot2c_f32_bf16 v{b_}, v{r}, v{r}')
        for k, n in enumerate((8, 4, 2, 1)):
            B(f'v_add_f32_dpp v{a_}, v{a_}, v{a_} row_ror:{n} row_mask:0xf bank_mask:0xf\nv_add_f32_dpp v{b_}, v{b_}, v{b_} row_ror:{n} row_mask:0xf bank_mask:0xf')
            for d in range(5): unpack(B, XN + i*40 + 2*(5*k + d), XR + i*20 + 5*k + d)
        B(f'v_mul_f32 v{a_}, {fl(1/640)}, v{a_}\nv_mul_f32 v{b_}, {fl(1/640)}, v{b_}\nv_fma_f32 v{b_}, -v{a_}, v{a_}, v{b_}')
        B(f'v_max_f32 v{b_}, 0, v{b_}\nv_add_f32 v{b_}, {fl(1e-5)}, v{b_}\nv_rsq_f32 v{T_}, v{b_}')
        B(f'v_mul_f32_e64 v{b_}, -v{a_}, v{T_}\nv_mov_b32 v{a_}, v{T_}')
        for d in range(20):
            t = XN + i*40 + 2*d
            B(f'v_pk_fma_f32 {pr(t)}, {pr(t)}, {pr(a_)}, {pr(a_)} op_sel:[0,0,1] op_sel_hi:[1,0,1]')
    M0 = 216
    def mtload(B):
        for i in range(5):
            B.group(f's_add_u32 s6, s23, {4096*i}\nbuffer_load_dwordx4 {v(M0+4*i,4)}, v1, s[12:15], s6 offen sc1', 'mt')
    def rawloop(Bk):
        A.ins.append(Ins('s_nop 0')); A.ins[-1].kind = 'label'; A.ins[-1].op = '.raw'; A.ins[-1].text = Bk.finish().rstrip('\n')
    moved = [False]; done = set()
    bi = [0]
    def bstore(B, n=1, grp=False):
        for _ in range(n):
            i = bi[0]
            if i >= NBS: return
            bi[0] += 1
            t_ = f'buffer_store_dwordx4 {a(216+4*i,4)}, v249, s[12:15], s96 offen sc1' + (f'\ns_add_u32 s96, s96, s{99 if i == 4 else 97}' if i < 5 else '')
            if grp: B.group(t_, 'pb')
            else: B(t_, 'pb')
    WV = 192
    def wreg(s_, t): return 256 + s_*16 + t*4 if s_ < 16 else WV + (s_-16)*16 + t*4
    wl = [(s_, t) for s_ in range(20) for t in range(4)]
    QA = []
    def busy(): return set().union(*[Ins(l).r | Ins(l).w for q in QA for x in q.l for l in x[0].split('\n')])
    wi = [0]; wlim = [44]
    def wload(B, n=1, grp=False):
        k = 0
        for _ in range(n):
            if wi[0] >= min(wlim[0], 80 if bi[0] == NBS else 54): break
            s_, t = wl[wi[0]]
            if regs_of(R(wreg(s_, t), 4)) & busy(): break
            wi[0] += 1; k += 1
            ld = f'buffer_load_dwordx4 {R(wreg(s_, t), 4)}, {"v10" if P.DBG == 1 else "v1"}, s[12:15], s24 offen offset:{1024*t} sc1'
            (B.group if grp else B)(ld if t < 3 else f'OPT s_cmp_eq_u32 s3, 3\n{ld}\nENDOPT\ns_add_u32 s24, s24, 4096' + ('\ns_sub_u32 s24, s24, s38' if s_ == 9 else ''))
        return k
    def facheck():
        A('v_cmp_ne_u32 vcc, s94, v250\ns_mov_b32 s7, 0')
        A.label('SYA', IF)
        A('s_nop 3'); A('s_cbranch_vccz SYA_DONE', IF)
        Bk = Asm()
        Bk('s_sleep 2\nbuffer_load_dword v250, v251, s[12:15], s25 offen sc1\ns_waitcnt vmcnt(0)\nv_cmp_ne_u32 vcc, s94, v250')
        rawloop(Bk)
        A(f's_add_u32 s7, s7, 1\ns_cmp_lt_u32 s7, {SPIN}'); A('s_cbranch_scc1 SYA', IF)
        A.label('SYA_DONE', IF)
        A(f's_lshl_b32 s24, s5, 2\ns_add_u32 s24, s24, s3\ns_mul_i32 s24, s24, {20*4096}\ns_add_u32 s24, s24, {WQ_F}')
        A(f's_and_b32 s41, s4, {1 if P.ROTW else 0}\ns_mul_i32 s38, s41, 40960\ns_add_u32 s24, s24, s38\ns_lshl_b32 s38, s38, 1\ns_mul_i32 s39, s41, 20480\ns_sub_u32 s39, 10240, s39\ns_sub_u32 s40, 61440, s39\ns_mul_i32 s41, s41, 10240')
        done.add('c')
    def bproc():
        A.raw(slotB_proc()); done.add('p')
    def cproc():
        A.raw(slotC_proc(), nvm=1, tag='pb'); done.add('C')
    def loads(tok):
        L = Buf()
        for t_ in tok.split('+'):
            if t_[0] == 'x': xload(L, int(t_[1:]))
            elif t_ == 'b0':
                for i in range(8):
                    pre = f's_mov_b32 m0, s31\ns_mov_b32 exec_hi, s35\n'
                    post = '\ns_mov_b64 exec, -1' + (f'\ns_add_u32 s28, s28, s{30 if i == 3 else 29}\ns_add_u32 s31, s31, {PB}' if i < 7 else '')
                    L.group(pre + f'buffer_load_dwordx4 v249, s[96:99], s28 offen nt lds' + post, 'sb')
                done.add('b0')
            elif t_ == 'b1':
                for i in range(5):
                    L.group(f's_mul_i32 s6, s3, 5120\ns_add_u32 m0, s6, {LC + 1024*i}\nbuffer_load_dwordx4 v0, s[16:19], s50 offen nt lds\ns_add_u32 s50, s50, 61440', 'sb')
                done.add('b1')
            elif t_[0] == 's':
                assert 'p' in done
                bstore(L, int(t_[1:]), True)
            elif t_[0] == 'w':
                assert 'c' in done
                wload(L, int(t_[1:]), True)
            elif t_ == 'r':
                L.group('s_lshl_b32 s6, s4, 1\ns_and_b32 s7, s3, 1\ns_add_u32 s6, s6, s7\ns_mul_i32 s6, s6, 40960\ns_mul_i32 s7, s5, 160\ns_add_u32 s6, s6, s7\ns_lshr_b32 s7, s3, 1\ns_lshl_b32 s57, s7, 6\ns_add_u32 s57, s57, s6'
                        f'\nv_mul_u32_u24 v252, 2560, v5\nv_lshl_add_u32 v253, v3, 3, v252\nv_lshl_add_u32 v252, v3, 4, v252\ns_mul_i32 s7, s7, {OOB}\nv_add_u32 v253, s7, v253'
                        f'\nbuffer_load_dwordx4 {a(RXA,4)}, v252, s[8:11], s57 offen')
                L.group(f'buffer_load_dwordx4 {a(RXA+6,4)}, v252, s[8:11], s57 offen offset:1280')
                L.group(f'buffer_load_dwordx2 {a(RXA+4,2)}, v253, s[8:11], s57 offen offset:128')
                L.group(f'buffer_load_dwordx2 {a(RXA+10,2)}, v253, s[8:11], s57 offen offset:1408')
                done.add('r')
            elif t_ == 'F':
                T_ = Buf(); prew(T_, 236); cur = []
                for l_, _ in T_.l:
                    cur.append(l_)
                    if l_.startswith('buffer'): L.group('\n'.join(cur), 'pb'); cur = []
                done.add('F')
            elif t_ == 'm': mtload(L)
            elif t_ == 'g':
                L.group('v_min_u32 v251, 59, v2\nv_lshlrev_b32 v251, 2, v251\nbuffer_load_dword v250, v251, s[12:15], s25 offen sc1')
            else: raise ValueError(t_)
        return L
    def prew(S, PW=236):
        for k in range(4): S(f'v_mov_b32 v{PW+k}, 0')
        S(f's_and_b32 s6, s5, 3\ns_lshl_b32 s7, s4, 2\ns_add_u32 s6, s6, s7\ns_mul_i32 s6, s6, 20480\ns_lshl_b32 s7, s3, 10\ns_add_u32 s6, s6, s7')
        S(f's_lshr_b32 s7, s5, 2\ns_mul_i32 s7, s7, {Z_F-O_F}\ns_add_u32 s6, s6, s7\ns_add_u32 s6, s6, {O_F+16384}')
        S(f'buffer_store_dwordx4 {v(PW,4)}, v1, s[12:15], s6 offen sc1', tag='pb')
        S(f'v_lshrrev_b32 v{PW+4}, 3, v2\nv_lshlrev_b32 v{PW+4}, 12, v{PW+4}\nv_and_b32 v{PW+5}, 7, v2\nv_lshl_add_u32 v{PW+4}, v{PW+5}, 4, v{PW+4}')
        S(f's_lshl_b32 s6, s4, 7\ns_add_u32 s6, s6, {FLG8}\ns_or_b32 s7, s5, s3')
        S(f's_cmp_eq_u32 s7, 0\ns_cselect_b32 s6, s6, s14')
        S(f'buffer_store_dwordx4 {v(PW,4)}, v{PW+4}, s[12:15], s6 offen sc1', tag='pb')
    for step in P.SEQ.split():
        if xn[0] >= 25 and not moved[0]:
            for i in range(5): A(f'v_mov_b32 v{WAr[i]}, v{244+i}')
            moved[0] = True
        if step[0] == 'l':
            i = int(step[1]); assert xn[0] >= 5*i + 5
            M = Buf(); lnrows(M, i)
            L = loads(step[3:]) if len(step) > 2 else Buf()
            sprinkle(A, M, L, max(1, 116 // max(1, len(L.l))))
        elif step == 'E':
            A('s_not_b32 s6, s94\nv_mov_b32 v252, s6\nv_mov_b32 v253, s6\nv_mov_b32 v254, s6\nv_mov_b32 v255, s6')
            A('v_lshlrev_b32 v12, 6, v3\nv_cmp_eq_u32 vcc, 0, v5\nv_cndmask_b32 v13, v11, v12, vcc')
            A(f's_lshl_b32 s6, s54, 10\ns_lshl_b32 s7, s55, 4\ns_add_u32 s6, s6, s7\ns_lshl_b32 s7, s3, 8\ns_add_u32 s6, s6, s7\ns_add_u32 s6, s6, {MODP}')
            A('s_cmp_eq_u32 s95, 0\ns_cselect_b32 s6, s6, s14')
            A('buffer_store_dwordx4 v[252:255], v13, s[12:15], s6 offen sc1', 'ee')
        elif step == 'a':
            A(f's_mov_b32 s6, {fl(-LOG2E)}')
            unpack(A, 236, 240); unpack(A, 238, 241)
            for k in range(4): A(f'v_mul_f32 v{232+k}, s6, v{236+k}')
            for k in range(4): A(f'v_exp_f32 v{232+k}, v{232+k}')
            for k in range(4): A(f'v_add_f32 v{232+k}, 1.0, v{232+k}')
            for k in range(4): A(f'v_rcp_f32 v{232+k}, v{232+k}')
            for k in range(4): A(f'v_mul_f32 v{236+k}, v{236+k}, v{232+k}')
            A('v_cvt_pk_bf16_f32 v240, v236, v237\nv_cvt_pk_bf16_f32 v241, v238, v239')
            A(f'ds_write_b64 v242, v[240:241]')
            A.wait_tag('la')
            st()
            A('s_waitcnt lgkmcnt(0)\ns_barrier')
            A.raw(slotA_proc(), nvm=5, tag='sa'); done.add('a')
        elif step == 't': st()
        elif step == 'c': facheck()
        elif step == 'p':
            assert {'b0', 'b1'} <= done
            A.wait_tag('sb'); A('s_barrier'); bproc(); A('s_waitcnt lgkmcnt(0)')
        elif step == 'C':
            assert 'p' in done
            cproc()
        elif step == 'F':
            prew(A, 236 if 'a' in done else 224); done.add('F')
        elif step == 'f':
            A(f's_sub_u32 s6, s2, 80\ns_and_b32 s7, s6, 1\ns_lshl_b32 s7, s7, 8\ns_lshr_b32 s6, s6, 1\ns_lshl_b32 s6, s6, 2\ns_add_u32 s6, s6, s7\ns_add_u32 s6, s6, {FLA}')
            A('s_cmp_eq_u32 s95, 1\ns_cselect_b32 s6, s6, s14\nv_mov_b32 v12, s94')
            A.wait_tag('sa'); A('s_barrier')
            A('buffer_store_dword v12, v10, s[12:15], s6 offen sc1')
            if not P.FINE: st()
        else:
            for l_, t_ in loads(step).l: A(l_, t_)
        if P.FINE: st()
    assert moved[0]
    srd(A, 16, 48, SZ['out'])
    A(f's_mov_b32 s20, {fl(20**-0.5 * LOG2E)}\ns_mov_b32 s21, {fl(1/640)}\ns_mov_b32 s22, {fl(1e-5)}')
    A(f's_lshl_b32 s52, s4, 7\ns_add_u32 s52, s52, {FLG8}\ns_add_u32 s54, s12, s52\ns_addc_u32 s55, s13, 0')
    A(f's_lshl_b32 s6, s5, 2\ns_add_u32 s52, s52, s6\ns_lshl_b32 s60, s3, 10')
    if not P.FINE: st()
    def untag(B, r, n, acc):
        for k in range(n): B(f'v_xor_b32 v{r+k}, s{44+(k&3)}, v{r+k}')
        B(f'v_or_b32 v{acc}, v{r}, v{r+1}')
        for k in range(2, n, 2): B(f'v_or3_b32 v{acc}, v{acc}, v{r+k}, v{r+k+1}')
        B(f'v_and_b32 v{acc}, 0xff, v{acc}')
    if 'c' not in done: facheck()
    A.wait_tag('mt')
    wload(A, P.W0)
    st()
    A('s_mov_b32 s7, 0')
    A.label('SYM', IF)
    untag(A, M0, 20, 13)
    A('v_cmp_ne_u32 vcc, 0, v13\ns_nop 3'); A('s_cbranch_vccz SYM_DONE', IF)
    Bk = Asm(); L = Buf(); mtload(L)
    Bk('s_sleep 2')
    for l_, t_ in L.l: Bk(l_, t_)
    Bk('s_waitcnt vmcnt(0)')
    rawloop(Bk)
    A(f's_add_u32 s7, s7, 1\ns_cmp_lt_u32 s7, {SPIN}'); A('s_cbranch_scc1 SYM', IF)
    A.label('SYM_DONE', IF)
    def quadsum(B, r, n):
        for k in range(4*n): B(f'v_add_f32_dpp v{r+k}, v{r+k}, v{r+k} quad_perm:[1,0,3,2] row_mask:0xf bank_mask:0xf')
        for k in range(0, 4*n, 2): B(f'v_cndmask_b32_e64 v{r+k}, v{r+k}, v{r+k+1}, {QM[0]}')
        for k in range(0, 4*n, 2): B(f'v_add_f32_dpp v{r+k}, v{r+k}, v{r+k} quad_perm:[2,3,0,1] row_mask:0xf bank_mask:0xf')
        for i in range(n): B(f'v_cndmask_b32_e64 v{r+4*i}, v{r+4*i}, v{r+4*i+2}, {QM[1]}')
    def modfin(B, r, plus1, hi=False):
        B(f'v_cvt_pk_bf16_f32 v{r}, 0, v{r}')
        if plus1:
            d = r if plus1 == 1 else r + 1
            B(f'v_add_f32 v{d}, 1.0, v{r}\nv_cvt_pk_bf16_f32 v{d}, 0, v{d}')
            if plus1 == 2: B(f'v_cndmask_b32_e64 v{r}, v{r}, v{d}, s[34:35]')
    A('s_cmp_ge_u32 s3, 2\ns_cselect_b64 s[34:35], -1, 0')
    A(f's_lshr_b32 s6, s3, 1\ns_lshl_b32 s6, s6, 9\ns_and_b32 s7, s3, 1\ns_lshl_b32 s7, s7, 7\ns_add_u32 s6, s6, s7\ns_add_u32 s6, s6, {MODF}')
    A('v_and_b32 v12, 3, v2\nv_lshl_add_u32 v12, v12, 2, s6\nv_bfe_u32 v13, v2, 2, 1\nv_lshl_add_u32 v12, v13, 8, v12\nv_lshrrev_b32 v13, 3, v2\nv_lshl_add_u32 v12, v13, 4, v12')
    X = Buf()
    quadsum(X, M0, 5)
    for i in range(5):
        r = M0 + 4*i
        modfin(X, r, [0, 0, 2, 1, 1][i])
        X(f'ds_write_b32 v12, v{r} offset:{1024*i}')
    timed(A, X, wload, P.IV, first=0)
    A.wait_tag('sb'); A('s_waitcnt lgkmcnt(0)\ns_barrier')
    wload(A, P.W1)
    if 'p' not in done: bproc()
    st()
    A(f'v_lshlrev_b32 v15, 4, v5\nv_add_u32 v15, {MODF}, v15')
    def mread(B, m, M0=M0):
        d = M0 + (m & 1)*16
        B(f'ds_read_b128 {v(d,4)}, v15 offset:{512*m}\nds_read_b128 {v(d+4,4)}, v15 offset:{512*m+256}')
        B(f'ds_read_b128 {v(d+8,4)}, v15 offset:{2560+512*m}\nds_read_b128 {v(d+12,4)}, v15 offset:{2560+512*m+256}')
    def modul(B, m, i, pk, M0=M0):
        d0 = M0 + (m & 1)*16; b = XN + i*40 + 8*m
        if pk:
            for d in range(4): B(f'v_pk_fma_f32 {pr(b+2*d)}, {pr(b+2*d)}, {pr(d0+8+2*d)}, {pr(d0+2*d)}')
        else:
            for d in range(8): B(f'v_fma_f32 v{b+d}, v{b+d}, v{d0+8+d}, v{d0+d}')
        for d in range(4): B(f'v_cvt_pk_bf16_f32 v{b+d}, v{b+2*d}, v{b+2*d+1}')
        B(f'ds_write_b128 v{WAr[i]}, {v(b,4)} offset:{4096*m}')
    mread(A, 0)
    A('v_xor_b32 v12, v5, v3\nv_lshlrev_b32 v12, 4, v12\nv_lshl_add_u32 v12, v3, 8, v12\nv_add_u32 v12, s41, v12\nv_xor_b32 v13, 64, v12\nv_mov_b32 v14, s94')
    n = 0
    for m in range(5):
        if m < 4: mread(A, m+1)
        for i in range(P.NPRE):
            modul(A, m, i, True)
            c_ = P.MP[n % len(P.MP)]
            if c_ == 's' and bi[0] < NBS: bstore(A, 1)
            elif c_ != '-': wload(A, 2 if c_ == 'W' else 1)
            n += 1
    fb = lambda f: A('OPT s_cmp_lg_u32 s3, 0\ns_lshl_b32 s26, s2, 2\ns_add_u32 s26, s26, %d\nbuffer_store_dword v14, v10, s[12:15], s26 offen sc1\nENDOPT' % f)
    if P.FB_STEP < 0:
        assert bi[0] == NBS
        A.wait_tag('pb')
    A('s_waitcnt lgkmcnt(0)\ns_barrier')
    if P.FB_STEP < 0: fb(FLB)
    st()
    accQ = lambda T: 16 + (T-1)*4 if T < 3 else 60 + (T-3)*4
    accK = lambda T: 24 + T*4 if T < 3 else 68 + (T-3)*4
    accV = lambda T: 36 + T*4 if T < 3 else 76 + (T-3)*4
    acc4 = lambda T: 48 + T*4 if T < 3 else 84 + (T-3)*4
    AF = 92
    def afr(s_, T): return AF + (s_ & 1)*12 + T*4 if T < 3 else AF + (s_ & 1)*8 + (T-3)*4
    def aread(B, s_, T):
        d = afr(s_, T)
        B(f'ds_read_b128 v[{d}:{d+3}], v{12 + (s_ & 1)} offset:{((T % 3)*20 + s_ % 10)*1024}')
    for T in range(3): aread(A, 0, T)
    w1l = [(s_, 2*e + t) for e in range(2) for s_ in range(20) for t in range(2)]
    w1i = [0]; w1lim = [40]; w1opt = [False]; low = [False]
    def w1load(B, n=1, limit=20):
        k = 0
        for _ in range(n):
            if w1i[0] >= w1lim[0]: break
            s_, t = w1l[w1i[0]]
            if s_ >= limit: break
            w1i[0] += 1; k += 1
            so, vo = ('s53', 'v11') if t < 2 else ('s27', 'v1')
            ld = f'buffer_load_dwordx4 {R(wreg(s_, t), 4)}, {vo}, s[12:15], {so} offen offset:{2048*(s_ & 1) + 1024*(t & 1)} sc1'
            B(f'OPT s_cmp_eq_u32 s3, 3\n{ld}\nENDOPT' if w1opt[0] else ld)
            if (s_ & 1) and (t & 1): B(f's_add_u32 {so}, {so}, 4096')
        return k
    def woaddr(k): return WOL + (10*(k//25) + k%25)*1024 if k % 25 < 10 else (15*(k//25) + k%25 - 10)*1024
    woi = [0]; wolim = [0]
    def woload(B, n=1):
        k = 0
        for _ in range(n):
            i = woi[0]
            if i >= wolim[0]: break
            woi[0] += 1; k += 1
            o = i % 4 if i < 10 else (i - 10) % 4
            B(f'buffer_load_dwordx4 v1, s[12:15], s26 offen offset:{1024*o} sc1 lds', tag='wo')
            if i == 9: B('s_add_u32 s26, s26, 2048\ns_mul_i32 m0, s3, 15360')
            elif o == 3: B('s_add_u32 s26, s26, 4096\ns_add_u32 m0, m0, 4096')
        return k
    gs = GS(A)
    def g1step(s_, tiles, rate):
        B = Buf()
        first = tiles[0] == 0
        if s_ in (P.STA if first else P.STB_): st()
        if first: assert wi[0] >= 4*(s_+1), s_
        L = []
        for T in tiles:
            af = v(afr(s_, T), 4)
            mm = lambda acc, a_, b_: L.append(f'{MF} {v(acc,4)}, {a_}, {b_}, {v(acc,4) if s_ else "0"}')
            if T > 0: mm(accQ(T), R(wreg(s_, 0), 4), af)
            mm(accK(T), R(wreg(s_, 1), 4), af)
            mm(accV(T), af, R(wreg(s_, 2), 4))
            mm(acc4(T), R(wreg(s_, 3), 4), af)
        nxt = [(s_+1, T) for T in tiles] if s_ < 19 else ([(0, 3), (0, 4)] if first else [])
        n = int(rate*(s_+1)) - int(rate*s_)
        pos = ([5, 9, 3, 7, 4, 8] if first else [3, 6, 4, 2])[:n]
        for g, x in enumerate(L):
            B(x)
            if g == len(L) - 1:
                need = [v(afr(*y), 4) for y in nxt]
                if first and s_ < 19: need.append(R(wreg(s_+1, 0), 16))
                if need: B('NEED ' + ', '.join(need))
            if g < len(nxt): aread(B, *nxt[g])
            if s_ in (8, 9) and g == 2: B(f'v_add_u32 v{4+s_}, s39, v{4+s_}')
            if first and s_ in (18, 19) and g == 2: B(f'v_add_u32 v{s_-6}, s40, v{s_-6}')
            if g in pos:
                if first:
                    if bi[0] < NBS: bstore(B, 1)
                    elif not wload(B, 1): woload(B, 1)
                elif not woload(B, 1): w1load(B, 1, s_)
        return B
    EV, OD = [0, 1, 2], [3, 4]
    gone = lambda old, *qs: not any(x is y for q in qs for x in q.l for y in old)
    SC = Buf(); S = Buf(); SS = Buf(); SS0 = Buf()
    T_ = Buf()
    if 'F' not in done: prew(T_, 116)
    mod_proc(T_, LC, 51, 53, 1, 256+176, False)
    for l_, t_ in T_.l:
        if l_.startswith('buffer_store_dwordx4 v[252'): SC('s_cmp_lt_u32 s2, 104\ns_cselect_b32 s63, s63, s14')
        l_ = re.sub(r'\bs6\b', 's63', re.sub(r'\bs7\b', 's62', re.sub(r'\bv12\b', 'v122', re.sub(r'\bv13\b', 'v123', l_))))
        SC(l_.replace('v[252:255]', 'v[116:119]'), 'pc')
    assert 'r' in done and P.NPRE == 3
    for r in range(12): S(f'v_accvgpr_read_b32 v{124+r}, a{RXA+r}')
    mread(S, 4, 60)
    for m in range(4, -1, -1):
        if m: mread(S, m-1, 60)
        for i in (4, 3): modul(S, m, i, False, 60)
    mod_ = list(S.l)
    for r in range(12): S(f'v_mov_b32 v{180+r}, v{124+r}')
    PV = 116
    QF, KF, KH, VS, VH, V4, V4H, ONE = 108, 116, 128, 132, 138, 140, 146, 148
    BC, BP, BH = 152, 156, 160
    AD = 164
    S(f'v_mov_b32 v{ONE}, s100\nv_mov_b32 v{ONE+1}, s100\nv_mov_b32 v{ONE+2}, s100\nv_mov_b32 v{ONE+3}, s100')
    SS0('s_mul_i32 s61, s5, 7\ns_mul_i32 s62, s5, 6\ns_add_u32 s62, s62, 6\ns_cmp_ge_u32 s5, 6\ns_cselect_b32 s61, s62, s61\ns_cselect_b32 s101, 6, 7')
    for e, (so, vo, sp) in enumerate((('s53', 'v11', 's98'), ('s27', 'v15', 's99'))):
        if e == 0: SS0(f's_and_b32 s50, s4, {1 if P.ROT1 else 0}\ns_cmp_eq_u32 s3, 3\ns_cselect_b32 s50, 0, s50')
        SS0(f's_lshl_b32 s62, s3, 1\ns_add_u32 s62, s62, {e}\ns_xor_b32 s62, s62, s50\ns_add_u32 {sp}, s62, s61')
        if e == 0: SS0(f's_cmp_lt_u32 s62, s101\ns_cselect_b32 s62, 0, {OOB}\nv_add_u32 {vo}, s62, v1')
        SS0(f's_mul_i32 {so}, {sp}, 40960\ns_add_u32 {so}, {so}, {W1_F}')
    SS0(f's_mul_i32 s26, s5, {100*1024}\ns_mul_i32 s62, s3, 25600\ns_add_u32 s26, s26, s62\ns_add_u32 s26, s26, {WO_F}\ns_mul_i32 s62, s3, 10240\ns_add_u32 m0, s62, {WOL}')
    S('v_lshlrev_b32 v4, 3, v2')
    S(f's_mul_i32 s7, s3, 2560\ns_add_u32 s7, s7, {X4}\ns_cmp_eq_u32 s3, 3\ns_cselect_b32 s7, {ZERO+64}, s7\nv_add_u32 v{AD+10}, s7, v4')
    S(f'v_lshlrev_b32 v7, 2, v3\nv_sub_u32 v7, v5, v7')
    S(f'v_mov_b32 v6, {fl(-1e30)}')
    for r in range(4):
        S(f'v_subrev_u32 v{AD}, {r}, v7')
        S(f'v_cmp_gt_u32 s[58:59], 8, v{AD}\nv_cmp_gt_i32 s[56:57], -8, v{AD}')
        S(f'v_cndmask_b32_e64 v{BC+r}, v6, 0, s[58:59]\nv_cndmask_b32_e64 v{BP+r}, v6, 0, s[56:57]')
    S('v_cmp_gt_i32 s[56:57], -5, v7')
    S('s_cmp_eq_u32 s4, 0\ns_cselect_b64 s[58:59], -1, 0')
    for r in range(4): S(f'v_cndmask_b32_e64 v{BH+r}, v{BP+r}, v6, s[58:59]')
    S(f'v_cmp_eq_u32 s[58:59], s3, v3')
    S(f'v_add_u32 v{AD+5}, {X4}, v4')
    S(f'v_xor_b32 v{AD}, 64, v{AD+5}')
    S(f'v_lshrrev_b32 v{AD+8}, 2, v2\nv_lshlrev_b32 v{AD+8}, 3, v{AD+8}\ns_lshl_b32 s7, s3, 7\ns_add_u32 s7, s7, {X4+5120}\nv_add_u32 v{AD+8}, s7, v{AD+8}\nv_xor_b32 v{AD+9}, 64, v{AD+8}')
    S(f'v_mov_b32 v6, {ZERO}')
    for T in range(1, 5):
        S(f'v_add_u32 v7, {512*T}, v{AD+5}\nv_cndmask_b32_e64 v{AD+T}, v6, v7, s[58:59]')
    S(f'v_and_b32 v6, 1, v3\nv_cmp_eq_u32 s[58:59], 1, v6\nv_mul_u32_u24 v6, 20480, v6\nv_lshl_add_u32 v6, v5, 4, v6\nv_lshrrev_b32 v7, 1, v3\nv_lshl_add_u32 v{AD+11}, v7, 8, v6')
    S(f'v_mul_u32_u24 v7, {OOB >> 8}, v7\nv_lshl_add_u32 v{AD+12}, v7, 8, v6')
    SS0(f's_lshl_b32 s63, s5, 2\ns_add_u32 s63, s63, s3')
    SS0(f's_mul_i32 s62, s4, {4*20*1024}\ns_add_u32 s62, s62, {O_F}')
    SS0(f's_lshl_b32 s96, s63, 9\ns_add_u32 s96, s96, s62')
    SS0(f's_lshr_b32 s95, s63, 1\ns_lshl_b32 s95, s95, 8\ns_and_b32 s63, s63, 1\ns_lshl_b32 s63, s63, 3\ns_add_u32 s95, s95, s63\ns_add_u32 s95, s95, s62\ns_add_u32 s95, s95, {16*1024}')
    def chk4(r):
        A(f'v_xor_b32 v{r}, s94, v{r}\nv_xor_b32 v{r+1}, s94, v{r+1}\nv_xor_b32 v{r+2}, s94, v{r+2}\nv_xor_b32 v{r+3}, s94, v{r+3}')
        A(f'v_or3_b32 v{r}, v{r}, v{r+1}, v{r+2}\nv_or_b32 v{r}, v{r}, v{r+3}\nv_cmp_ne_u32 vcc, 0, v{r}')
    def allflags(nm, r, so):
        A('s_mov_b32 s61, 0')
        chk4(r)
        A('s_nop 3'); A(f's_cbranch_vccz {nm}_DONE', IF)
        A.label(nm, IF)
        Bk = Asm()
        Bk(f's_sleep 8\nbuffer_load_dwordx4 {v(r,4)}, v1, s[12:15], {so} offen sc1\ns_waitcnt vmcnt(0)')
        rawloop(Bk)
        chk4(r)
        A(f's_add_u32 s61, s61, 1\ns_cmp_gt_u32 s61, {SPIN}'); A(f's_cbranch_scc1 {nm}_DONE', IF)
        A('s_nop 3'); A(f's_cbranch_vccnz {nm}', IF)
        A.label(f'{nm}_DONE', IF)
    QA.extend([SC, S]); wlim[0] = 80
    assert P.FB_STEP < P.FC_STEP <= P.SB_ISSUE < P.SB_CHECK and P.A1 <= 19
    for s_ in range(20):
        if s_ == P.FB_STEP:
            assert bi[0] == NBS
            gs.flush(); A.wait_tag('pb'); A('s_barrier'); fb(FLB)
        if s_ == P.FC_STEP:
            print('left at FC:', gs.drain(SC), file=sys.stderr)
            A.wait_tag('pc'); A('s_barrier'); fb(FLC)
            SS.l = SS0.l
        if s_ == P.A1:
            k = max([i + 1 for i, x in enumerate(S.l) if any(x is y for y in mod_)] + [0])
            print('left at A1:', k, file=sys.stderr)
            for x in S.l[:k]: gs.put(*x)
            S.l = S.l[k:]
            A('s_waitcnt lgkmcnt(0)\ns_barrier')
            st()
        if s_ == P.SB_CHECK:
            gs.drain(SS)
            allflags('SYB', PV, 's25')
            A(f'OPT s_cmp_lg_u32 s2, 0\ns_mov_b32 s25, {EPO}\nbuffer_store_dword v14, v10, s[12:15], s25 offen sc1\nENDOPT')
            wolim[0] = 10
            st()
        if s_ == 20 + P.SC_ISSUE: A(f's_mov_b32 s45, {FLC}\nbuffer_load_dwordx4 {v(140,4)}, v1, s[12:15], s45 offen sc1')
        if s_ == P.SB_ISSUE: A(f's_mov_b32 s25, {FLB}\nbuffer_load_dwordx4 {v(PV,4)}, v1, s[12:15], s25 offen sc1')
        gs.run(g1step(s_, EV, P.RA0 if s_ < P.RAS else P.RA), [SC, SS, S], P.XA0 if s_ < P.XAS else P.XA, True)
    print('left after pass A:', len(S.l), ' wo issued', woi[0], file=sys.stderr)
    assert wi[0] == 80
    st()
    def cvt2(B, d, c): B(f'v_cvt_pk_bf16_f32 v{d}, v{c}, v{c+1}\nv_cvt_pk_bf16_f32 v{d+1}, v{c+2}, v{c+3}')
    def spread4(B, q, t):
        B(f'v_mov_b32 v{t}, v{q}\nv_permlane16_swap_b32 v{q}, v{t}\nv_mov_b32 v{t+1}, v{q}\nv_mov_b32 v{t+2}, v{t}')
        B(f'v_permlane32_swap_b32 v{q}, v{t+1}\nv_permlane32_swap_b32 v{t}, v{t+2}')
    def att1(B, par):
        tiles = OD if par else EV
        for T in tiles:
            cvt2(B, acc4(T), acc4(T))
            B(f'ds_write_b64 v{AD+10}, {v(acc4(T),2)} offset:{512*T}')
        for T in tiles: cvt2(B, KF + 4*(T - 2*par), accK(T))
        for u in range(2): cvt2(B, QF + 4*u, accQ(1 + 2*par + u))
    def att2(B, par, gap):
        tiles = OD if par else EV
        T1 = 1 + 2*par
        SC, SP, MX, PF, OM = (60, 68, 84, 76, 92) if par else (16, 24, 32, 40, 48)
        O4, OS = QF, KF
        for u in range(2):
            B(f'ds_read_b64 {v(QF+4*u+2,2)}, v{AD+T1+u}')
            if u == 0 and not par: B(f'ds_read_b64 {v(KF+2,2)}, v{AD+5} offset:2560')
            B(f'ds_read_b64 {v(KF+4+4*u+2,2)}, v{AD+5} offset:{2560+512*(T1+u)}')
        for T in tiles: B(f'ds_read_b64_tr_b16 {v(V4+2*(T-2*par),2)}, v{AD+8} offset:{512*T}')
        if not par:
            B(f'ds_read_b64 {v(KH+2,2)}, v{AD} offset:2560\nds_read_b64_tr_b16 {v(V4H,2)}, v{AD+9}')
            for d in range(2): B(f'v_mov_b32_dpp v{KH+d}, v{KF+d} row_ror:8 row_mask:0xf bank_mask:0xf')
        else:
            for d in range(2): B(f'v_mov_b32 v{VS+d}, v{VH+d}\nv_mov_b32 v{V4+d}, v{V4H+d}')
        for T in tiles: cvt2(B, VS + 2*(T - 2*par), accV(T))
        for u in range(2):
            q = v(QF+4*u, 4)
            B(f'{MF} {v(SC+4*u,4)}, {v(KF+4+4*u,4)}, {q}, {v(BC,4)}')
            B(f'{MF} {v(SP+4*u,4)}, {v(KH if (par and u == 0) else KF+4*u,4)}, {q}, {v(BP if u else BH,4)}')
        if not par:
            for d in range(2): B(f'v_mov_b32 v{VH+d}, v{VS+d}\nv_mov_b32 v{AD+6+d}, v{VS+d}')
            for d in range(2): B(f'v_permlane32_swap_b32 v{VH+d}, v{AD+6+d}')
        else: B(f's_add_u32 s96, s96, 40960\ns_add_u32 s95, s95, 40960')
        for t in range(2):
            for r in range(4): B(f'v_max_f32 v{SC+4*t+r}, v{SC+4*t+r}, v{SP+4*t+r}')
            B(f'v_max3_f32 v{MX+t}, v{SC+4*t}, v{SC+4*t+1}, v{SC+4*t+2}\nv_max_f32 v{MX+t}, v{MX+t}, v{SC+4*t+3}')
        B(f'v_permlane32_swap_b32 v{MX}, v{MX+1}\nv_max_f32 v{MX}, v{MX}, v{MX+1}\nv_mov_b32 v{MX+1}, v{MX}')
        B(f'v_permlane16_swap_b32 v{MX}, v{MX+1}\nv_max_f32 v{MX}, v{MX}, v{MX+1}\nv_mul_f32 v{MX+1}, s20, v{MX}\nv_mul_f32 v{MX}, s20, v{MX}')
        B(f'v_permlane32_swap_b32 v{MX}, v{MX+1}')
        B('MID')
        for t in range(2):
            for r in range(4): B(f'v_fma_f32 v{SC+4*t+r}, v{SC+4*t+r}, s20, -v{MX+t}')
        def split(u):
            for d in range(2):
                B(f'v_cndmask_b32_e64 v{PF+4*u+d}, 0, v{SP+2*u+d}, s[56:57]\nv_cndmask_b32_e64 v{PF+4*u+2+d}, v{SP+2*u+d}, 0, s[56:57]')
        def pv(u):
            B(f'{MF} {v(OS+4*u,4)}, {v(ONE,4)}, {v(PF+4*u,4)}, 0\n{MF} {v(OM+4*u,4)}, {v(VS+2*u,4)}, {v(PF+4*u,4)}, 0')
        for r in range(4): B(f'v_exp_f32 v{SC+r}, v{SC+r}')
        B(f'v_exp_f32 v{SC+4}, v{SC+4}')
        cvt2(B, SP, SC); split(0)
        B(f'v_exp_f32 v{SC+5}, v{SC+5}')
        pv(0)
        B(f'v_exp_f32 v{SC+6}, v{SC+6}\nv_exp_f32 v{SC+7}, v{SC+7}')
        B(f'{MF} {v(O4,4)}, {v(V4,4)}, {v(PF,4)}, 0')
        cvt2(B, SP+2, SC+4); split(1)
        B(f'v_rcp_f32 v{MX}, v{OS}')
        pv(1)
        B(f'{MF} {v(O4+4,4)}, {v(V4+2,4)}, {v(PF+4,4)}, 0')
        for r in range(4): B(f'v_mul_f32 v{OM+r}, v{OM+r}, v{MX}')
        cvt2(B, SC, OM)
        B(f'v_rcp_f32 v{MX+1}, v{OS+4}')
        for r in range(4): B(f'v_mul_f32 v{OM+4+r}, v{OM+4+r}, v{MX+1}')
        cvt2(B, SC+2, OM+4)
        B(f'v_cndmask_b32_e64 v{MX}, v{MX}, v{MX+1}, s[58:59]')
        B(f'v_cndmask_b32_e64 v{O4}, v{O4}, v{O4+4}, s[58:59]')
        B(f'v_permlane16_swap_b32 v{SC}, v{SC+2}\nv_permlane16_swap_b32 v{SC+1}, v{SC+3}')
        tag = 'oo' if par else 'oe'
        B(f'buffer_store_dwordx4 {v(SC,4)}, v{AD+11}, s[12:15], s96 offen sc1', tag=tag)
        for r in range(1, 4): B(f'v_cndmask_b32_e64 v{O4+r}, v{O4+r}, v{O4+4+r}, s[58:59]')
        for r in range(4): B(f'v_mul_f32 v{O4+r}, v{O4+r}, v{MX}')
        cvt2(B, O4, O4)
        B(f'buffer_store_dwordx2 {v(O4,2)}, v{AD+12}, s[12:15], s95 offen sc1', tag=tag)
    def flag(ph):
        A(f'OPT s_cmp_lg_u32 s3, 0\ns_add_u32 s6, s52, {4096*ph}\nbuffer_store_dword v14, v10, s[12:15], s6 offen sc1\nENDOPT')
    def publish(ph, tag):
        A.wait_tag(tag); A('s_barrier'); flag(ph)
    def pload(ph, n): A(f's_load_dwordx{n} s[28:{27+n}], s[54:55], {4096*ph} glc', tag='touch')
    def poll_issue(ph, n=8, w0=True):
        A('s_waitcnt lgkmcnt(0)')
        if w0: A('s_cmp_lg_u32 s3, 0'); A(f's_cbranch_scc1 PI{ph}', IF)
        pload(ph, n)
        if w0: A.label(f'PI{ph}', IF)
    def acquire(ph, n=8, w0=True, bar=True):
        A('s_waitcnt lgkmcnt(0)\ns_mov_b32 s61, 0')
        if w0: A('s_cmp_lg_u32 s3, 0'); A(f's_cbranch_scc1 ACQ{ph}_DONE', IF)
        A.label(f'ACQ{ph}', IF)
        for k in range(n): A(f's_xor_b32 s{28+k}, s{28+k}, s94')
        for k in range(2, n, 2): A(f's_or_b64 s[28:29], s[28:29], s[{28+k}:{29+k}]')
        A(f's_cbranch_scc0 ACQ{ph}_DONE', IF)
        pload(ph, n)
        A('s_waitcnt lgkmcnt(0)')
        A(f's_add_u32 s61, s61, 1\ns_cmp_lt_u32 s61, {SPIN}'); A(f's_cbranch_scc1 ACQ{ph}', IF)
        A.label(f'ACQ{ph}_DONE', IF)
        if bar: A('s_barrier')
    att1(S, 0)
    s_ = 0
    while S.l:
        gs.run(g1step(s_, OD, P.RB0), [S], P.XB, True); s_ += 1
    print('exchange barrier before step', s_, file=sys.stderr)
    gs.flush()
    if P.SC_ISSUE < 0: allflags('SYC', 140, 's45')
    A('s_waitcnt lgkmcnt(0)\ns_barrier')
    wolim[0] = 25
    S = Buf(); att2(S, 0, True); S.l = [x for x in S.l if x[0] != 'MID']
    OF, WB, ACC, XC, UF, RX = 16, 56, 92, 112, 136, 180
    GU, AU, BU = 124, 152, 164
    HI = 'OPT s_cmp_ge_u32 s3, 2'
    S3 = Buf()
    S3('s_lshl_b32 s62, s4, 1\ns_and_b32 s7, s3, 1\ns_add_u32 s62, s62, s7\ns_mul_i32 s62, s62, 40960\ns_lshr_b32 s63, s3, 1\ns_lshl_b32 s101, s63, 6')
    S3('s_mul_i32 s97, s5, 160\ns_add_u32 s97, s97, s62\ns_add_u32 s97, s97, s101')
    S3('v_mul_u32_u24 v6, 2560, v5\nv_lshl_add_u32 v7, v3, 3, v6\nv_lshl_add_u32 v6, v3, 4, v6')
    S3('v_lshlrev_b32 v8, 4, v3\nv_lshlrev_b32 v9, 3, v3')
    S3(f's_mul_i32 s62, s63, {OOB}\nv_add_u32 v7, s62, v7')
    S3(f's_lshl_b32 s24, s4, 2\ns_add_u32 s24, s24, s7\ns_mul_i32 s24, s24, 20480\ns_add_u32 s25, s24, {Z_F}\ns_mul_i32 s62, s63, 10240\ns_add_u32 s24, s24, s62\ns_add_u32 s24, s24, {O_F}')
    S3('v_and_b32 v4, 3, v2')
    S3(f'v_mov_b32 v15, {VEC+3072+128}\nv_cmp_eq_u32 vcc, 0, v4\nv_mov_b32 v0, {VEC+1344}\nv_cndmask_b32 v15, v15, v0, vcc')
    S3(f'v_cmp_eq_u32 vcc, 1, v4\nv_mov_b32 v0, {VEC}\nv_cndmask_b32 v15, v15, v0, vcc')
    S3('v_add_u32 v0, v15, v8\nv_add_u32 v15, v15, v9')
    VL = 16; n3 = len(S3.l)
    S4 = Buf(); S5 = Buf()
    S5('s_lshl_b32 s44, s3, 6\nv_add_u32 v40, s44, v2')
    S5(f'v_mov_b32 v41, {(3200-80-1280)*16}\ns_movk_i32 s45, 79\nv_cmp_lt_u32 s[46:47], s45, v40\nv_cndmask_b32_e64 v41, 0, v41, s[46:47]\nv_lshl_add_u32 v41, v40, 4, v41')
    S5(f's_mul_i32 s45, s5, {80*16}\ns_add_u32 s45, s45, {MODP + 1280*16}\ns_add_u32 s44, s23, {1920*16}')
    for i in range(5):
        S5(f'buffer_load_dwordx4 {v(VL+4*i,4)}, v1, s[12:15], s44 offen sc1')
        if i < 4: S5('s_add_u32 s44, s44, 4096')
    S5(f'buffer_load_dwordx4 {v(VL+20,4)}, v41, s[12:15], s45 offen sc1')
    S5(f'v_lshlrev_b32 v42, 3, v40\nv_add_u32 v42, {VEC}, v42\nds_write_b64 v42, {v(ONE,2)} offset:3072')
    S5(f'v_lshlrev_b32 v40, 1, v40\nv_add_u32 v40, {VEC}, v40\nv_cndmask_b32_e64 v43, 0, 64, s[34:35]\nv_add_u32 v43, v43, v40')
    quadsum(S5, VL, 6)
    for i in range(6):
        modfin(S5, VL+4*i, [0, 0, 2, 1, 1, 0][i], True)
        S5(f'ds_write_b16_d16_hi {"v43" if i == 2 else "v40"}, v{VL+4*i} offset:{512*i + (64 if i > 2 else 0)}')
    while s_ < 20:
        if s_ == P.SC_ISSUE:
            assert 'F' in done
            A(f's_mov_b32 s45, {FLC}\nbuffer_load_dwordx4 {v(56,4)}, v1, s[12:15], s45 offen sc1')
        if not S.l and S5.l and s_ > P.SC_ISSUE + 2:
            if P.SC_ISSUE >= 0:
                assert len(S3.l) in (0, n3)
                gs.flush(); allflags('SYC', 56, 's45')
            S4.l = S5.l; S5.l = []
        if s_ == P.OE_PUB:
            print('left at OE_PUB:', gs.drain(S), file=sys.stderr)
            publish(PH_OE, 'oe')
        n0 = len(S.l)
        gs.run(g1step(s_, OD, P.RB0 if s_ < P.RBS else P.RB), [S] if S.l and P.XB else [S, S4, S3], P.XB if S.l else P.XB2, True); s_ += 1
        if n0 and not S.l: print('even attention ends in step', s_-1, file=sys.stderr)
    assert not S5.l
    print('left after pass B:', gs.drain(S3, S4), file=sys.stderr)
    assert woi[0] == 25
    print('w1 issued in pass B:', w1i[0], file=sys.stderr)
    st()
    X = Buf(); att1(X, 1)
    timed(A, X, w1load, P.IVA, first=0)
    A.wait_tag('wo')
    A('s_waitcnt lgkmcnt(0)\ns_barrier')
    X = Buf(); att2(X, 1, False); X.l = [x for x in X.l if x[0] != 'MID']
    nrd = [i for i, x in enumerate(X.l) if x[0].startswith('v_mfma')][3] + 1
    for l_, t_ in X.l[:nrd]: A(l_, t_)
    XR_ = X.l[nrd:]
    oi = [10]
    def oload(B):
        k = oi[0]
        if k >= 10: return 0
        oi[0] += 1
        B(f'buffer_load_dwordx4 {v(OF+4*k,4)}, v1, s[12:15], s24 offen offset:{1024*(k%4)} sc1')
        if k % 4 == 3: B('s_add_u32 s24, s24, 4096')
        if k == 9: B(f's_add_u32 s24, s24, {40960 - 8192}')
        return 1
    def oloads():
        oi[0] = 0
        for _ in range(P.ON): oload(A)
    def part(lo, hi, iv, stop=0):
        Y = Buf(); Y.l = XR_[lo:hi]
        timed(A, Y, w1load, iv, stop_before=stop, first=0 if iv < 999 else None)
    poll_issue(PH_OE)
    part(0, P.OE_AT, P.IVE)
    st2()
    acquire(PH_OE)
    st2()
    oloads()
    part(P.OE_AT, None, P.IVO, P.OST)
    st()
    NB = 9
    XU, ZU, SS, ZP, SM = 56, 68, 80, 112, 92
    EX1, EX2, EX3 = X4, WOL + 40960, X4 + 8192
    POS = [0, 1, 4, 2, 3]
    A(f's_mul_i32 s6, s63, 20480\ns_add_u32 s6, s6, {WOL}\nv_add_u32 v12, s6, v1\ns_mul_i32 s6, s63, 30720\nv_add_u32 v13, s6, v1')
    def e1pair(B):
        if w1i[0] < 40: return w1load(B)
        T_ = Buf(); n = w1load(T_, 2)
        if n:
            B('OPT s_cmp_eq_u32 s3, 3\n' + '\n'.join(x[0] for x in T_.l if x[0].startswith('buffer')) + '\nENDOPT')
            for x in T_.l:
                if not x[0].startswith('buffer'): B(x[0])
        return n
    def g2(ph, hooks, rate, ivepi, nall):
        items = [(s_, u) for s_ in range(10) for u in ([0, 1, 2, 3, 4] if s_ < 9 else [3, 4, 2, 0, 1])]
        def rd(B, k):
            d = WB + (k % NB)*4; ad = woaddr(5*items[k][0] + POS[items[k][1]])
            B(f'ds_read_b128 v[{d}:{d+3}], ' + (f'v12 offset:{ad-WOL}' if ad >= WOL else f'v13 offset:{ad}'))
        for k in range(NB-1): rd(A, k)
        S = Buf(); S2 = Buf()
        if ph == 0:
            A(f'v_add_u32 v4, {VEC}, v9\ns_add_u32 s6, s101, {VEC}\nv_add_u32 v{XC}, s6, v8\ns_mul_i32 s7, s5, 160')
            A(f'ds_read_b128 {v(GU+6,4)}, v{XC} offset:2624\nds_read_b64 {v(GU+10,2)}, v4 offset:{2624+128}')
            A(f'v_add_u32 v{XC}, s7, v{XC}\nv_add_u32 v4, s7, v4')
            A(f'ds_read_b128 {v(AU+6,4)}, v{XC} offset:1344\nds_read_b64 {v(AU+10,2)}, v4 offset:{1344+128}')
            A(f'ds_read_b128 {v(BU+6,4)}, v{XC}\nds_read_b64 {v(BU+10,2)}, v4 offset:128')
            S('GAP 8\ns_cmp_lt_u32 s3, 2\ns_cselect_b32 s62, -1, 0')
            S(f'v_and_b32 v{GU+10}, s62, v{GU+10}\nv_and_b32 v{GU+11}, s62, v{GU+11}')
            for b in (GU, AU, BU):
                for d in range(6): S(f'v_lshlrev_b32 v{b+2*d}, 16, v{b+6+d}\nv_and_b32 v{b+2*d+1}, 0xffff0000, v{b+6+d}')
            S2(f'v_add_u32 v176, s60, v1\nv_xor_b32 v177, 2048, v176\nv_lshrrev_b32 v178, 1, v176\nv_lshrrev_b32 v179, 1, v1')
            S2(f'v_add_u32 v176, {EX1}, v176\nv_add_u32 v177, {EX1}, v177\nv_add_u32 v178, {EX3}, v178\nv_add_u32 v179, {EX3}, v179')
            S2('s_lshl_b32 s96, s5, 1\ns_add_u32 s96, s96, s63\ns_lshl_b32 s96, s96, 10\ns_add_u32 s96, s96, s25')
            S2(f's_lshr_b32 s95, s5, 1\ns_lshl_b32 s95, s95, 10\ns_add_u32 s95, s95, s25\ns_and_b32 s7, s5, 1\ns_lshl_b32 s7, s7, 3\ns_add_u32 s95, s95, s7\ns_add_u32 s95, s95, {16*1024}')
            S2(f's_lshl_b32 s26, s4, 14\ns_lshl_b32 s7, s5, 10\ns_add_u32 s26, s26, s7\ns_add_u32 s26, s26, {STB}')
        else:
            S2('s_add_u32 s96, s96, 40960\ns_add_u32 s95, s95, 40960\ns_add_u32 s26, s26, 8192')
        g = GS(A)
        for k, (s_, u) in enumerate(items):
            if k in hooks: g.flush(); hooks[k]()
            M = Buf()
            M(f'{MF} {v(ACC+4*u,4)}, {v(WB+(k%NB)*4,4)}, {v(OF+4*s_,4)}, {v(ACC+4*u,4) if s_ else "0"}')
            if k < 49: M(f'NEED {v(WB+((k+1)%NB)*4,4)}, ' + (v(OF,40) if k == nall else v(OF+4*((k+1)//5),4)))
            if k + NB - 1 < 50: rd(M, k + NB - 1)
            assert oi[0] > (k+1)//5 or k == 49
            if oi[0] < 10:
                if k % P.OG == 0: oload(M)
            elif int((k+1)*rate) != int(k*rate) and (w1i[0] < 40 or k >= nall): e1pair(M)
            g.run(M, [S, S2], 0, True)
        g.drain(S, S2)
        st2()
        rx = RX + 6*ph
        unpack(A, XU, rx); unpack(A, XU+2, rx+1)
        A(f'ds_write_b128 v176, {v(ACC+12,4)}\nds_write_b128 v176, {v(ACC+16,4)} offset:4096\nds_write_b128 v176, {v(ACC+8,4)} offset:{EX2-EX1}')
        A('s_waitcnt lgkmcnt(0)\ns_barrier')
        A(f'ds_read_b128 {v(XC,4)}, v177\nds_read_b128 {v(XC+4,4)}, v177 offset:4096\nds_read_b128 {v(XC+8,4)}, v177 offset:{EX2-EX1}')
        for d in range(2, 6): unpack(A, XU+2*d, rx+d)
        for d in range(6): A(f'v_pk_fma_f32 {pr(XU+2*d)}, {pr(ACC+2*d)}, {pr(GU+2*d)}, {pr(XU+2*d)}')
        for d in range(6): A(f'v_pk_fma_f32 {pr(XU+2*d)}, {pr(XC+2*d)}, {pr(GU+2*d)}, {pr(XU+2*d)}')
        if 'x' in hooks: hooks['x']()
        E = Buf()
        for d in range(6): E(f'v_pk_mul_f32 {pr(ZU+2*d)}, {pr(XU+2*d)}, {pr(AU+2*d)}')
        for d in range(6): E(f'v_cvt_pk_bf16_f32 v{ZP+d}, v{ZU+2*d}, v{ZU+2*d+1}')
        E(f'buffer_store_dwordx4 {v(ZP,4)}, v1, s[12:15], s96 offen sc1', tag='z')
        E(f'{HI}\nbuffer_store_dwordx2 {v(ZP+4,2)}, v1, s[12:15], s95 offen sc1\nENDOPT', tag='z')
        for d in range(6):
            x_, z_, a_, b_ = pr(XU+2*d), pr(ZU+2*d), pr(AU+2*d), pr(BU+2*d)
            if d == 0:
                E(f'v_pk_add_f32 {pr(SS)}, {x_}, {pr(XU+2)}\nv_pk_mul_f32 {pr(SS+2)}, {x_}, {x_}\nv_pk_add_f32 {pr(SS+4)}, {z_}, {pr(ZU+2)}')
                E(f'v_pk_mul_f32 {pr(SS+6)}, {z_}, {a_}\nv_pk_mul_f32 {pr(SS+8)}, {z_}, {z_}\nv_pk_mul_f32 {pr(SS+10)}, {z_}, {b_}')
            else:
                if d > 1: E(f'v_pk_add_f32 {pr(SS)}, {pr(SS)}, {x_}')
                E(f'v_pk_fma_f32 {pr(SS+2)}, {x_}, {x_}, {pr(SS+2)}')
                if d > 1: E(f'v_pk_add_f32 {pr(SS+4)}, {pr(SS+4)}, {z_}')
                E(f'v_pk_fma_f32 {pr(SS+6)}, {z_}, {a_}, {pr(SS+6)}\nv_pk_fma_f32 {pr(SS+8)}, {z_}, {z_}, {pr(SS+8)}\nv_pk_fma_f32 {pr(SS+10)}, {z_}, {b_}, {pr(SS+10)}')
        for k in range(6): E(f'v_add_f32 v{SM+k}, v{SS+2*k}, v{SS+2*k+1}')
        for k in range(3): E(f'v_permlane32_swap_b32 v{SM+2*k}, v{SM+1+2*k}')
        E(f'v_add_f32 v{SM}, v{SM}, v{SM+1}\nv_add_f32 v{SM+2}, v{SM+2}, v{SM+3}\nv_add_f32 v{SM+1}, v{SM+4}, v{SM+5}\nv_add_f32 v{SM+3}, v{SM+4}, v{SM+5}')
        E(f'v_permlane16_swap_b32 v{SM}, v{SM+2}\nv_permlane16_swap_b32 v{SM+1}, v{SM+3}\nv_add_f32 v{SM}, v{SM}, v{SM+2}\nv_add_f32 v{SM+1}, v{SM+1}, v{SM+3}')
        timed(A, E, e1pair, ivepi, stop_before=P.EST)
        A(f'ds_write_b64 v178, {v(SM,2)}')
        st2()
        if 'y' in hooks: hooks['y'](); st2()
        else: A('s_waitcnt lgkmcnt(0)\ns_barrier')
        for w in range(4): A(f'ds_read_b64 {v(SM+2*w,2)}, v179 offset:{512*w}')
        if 'z' in hooks: hooks['z']()
        for d in range(6): A(f'v_cvt_pk_bf16_f32 v{rx+d}, v{XU+2*d}, v{XU+2*d+1}')
        A(f'v_pk_add_f32 {pr(SM)}, {pr(SM)}, {pr(SM+4)}\nv_pk_add_f32 {pr(SM+2)}, {pr(SM+2)}, {pr(SM+6)}')
        A(f'OPT s_cmp_lg_u32 s3, 0\nbuffer_store_dwordx4 {v(SM,4)}, v1, s[12:15], s26 offen sc1\nENDOPT', tag='z')
        if 'w' in hooks: hooks['w']()
    B1R, UA, GA = 108, UF+8, 168
    def mfread(B, d, s_):
        if s_ < 16: B(f'ds_read_b128 {v(d,4)}, v0 offset:{160*(s_>>1)+64*(s_&1)}')
        else:
            for h in range(2): B(f'ds_read_b64 {v(d+2*h,2)}, v15 offset:{320*(s_-16)+160*h+128}')
    def uhead(lo, hi):
        for s_ in range(lo, min(hi, lo + NB - 1)): mfread(A, WB+(s_%NB)*4, s_)
    def ubody(lo, hi, hooks, every):
        g = GS(A)
        for k in range(2*lo, 2*hi):
            s_, t = k >> 1, k & 1
            if k - 2*lo in hooks: g.flush(); hooks[k - 2*lo]()
            if w1i[0] <= min(k + 6, 39): g.flush(); w1load(A, min(k + 6, 39) + 1 - w1i[0])
            M = Buf(); M(f'{MF} {v(UA+4*t,4)}, {v(WB+(s_%NB)*4,4)}, {R(wreg(s_,t),4)}, {v(UA+4*t,4) if s_ else "0"}')
            if t == 0 and s_ + NB - 1 < hi: mfread(M, WB+((s_+NB-1)%NB)*4, s_+NB-1)
            elif oi[0] < 10:
                if (k - 2*lo) % P.OG == 1: oload(M)
            elif int((k+1)/every) != int(k/every): w1load(M)
            g.run(M, (), 0, True)
        g.flush()
        for k in sorted(hooks):
            if k >= 2*(hi - lo): hooks[k]()
    def ufrag(B, t, u, b, tm):
        d = UF + 4*t
        B(f'v_cvt_pk_bf16_f32 v{d+1}, v{u+2}, v{b}\nv_cvt_pk_bf16_f32 v{d}, v{u}, v{u+1}')
        B(f'v_lshlrev_b32 v{tm}, 16, v{d}\nv_and_b32 v{tm+1}, 0xffff0000, v{d}\nv_lshlrev_b32 v{tm+2}, 16, v{d+1}')
        B(f'v_sub_f32 v{tm}, v{u}, v{tm}\nv_sub_f32 v{tm+1}, v{u+1}, v{tm+1}\nv_sub_f32 v{tm+2}, v{u+2}, v{tm+2}')
        B(f'v_cvt_pk_bf16_f32 v{d+2}, v{tm}, v{tm+1}\nv_cvt_pk_bf16_f32 v{d+3}, v{tm+2}, 0')
    CFX = 102400
    ZB = [61440, 81920, 0, 20480]
    def statload(B, SL, ph):
        for i in range(8):
            if i % 4 == 0: B(f's_add_u32 s7, s63, {8192*ph + 1024*i}')
            B(f'buffer_load_dwordx4 {v(SL+4*i,4)}, v1, s[12:15], s7 offen offset:{1024*(i%4)} sc1')
    def statsum(S, SL, S1):
        for stp in (4, 2, 1):
            for j in range(stp):
                for k in range(2):
                    d = S1 if (stp == 1 and k) else SL+4*j+2*k
                    S(f'v_pk_add_f32 {pr(d)}, {pr(SL+4*j+2*k)}, {pr(SL+4*(j+stp)+2*k)}')
    def stats(S, SL, T):
        S(f'v_mul_f32 v{SL}, s21, v{SL}\nv_mul_f32 v{SL+1}, s21, v{SL+1}')
        q = SL + 8
        spread4(S, SL, SL+2)
        S(f'v_mov_b32 v{q+5}, v{SL+1}\nv_mov_b32 v{q}, v{SL}\nv_mov_b32 v{q+1}, v{SL+3}\nv_permlane32_swap_b32 v{SL+1}, v{q+5}')
        S(f'v_mov_b32 v{q+2}, v{SL+2}\nv_mov_b32 v{q+3}, v{SL+4}\nv_mov_b32 v{q+4}, v{SL+1}')
        t = SL
        S(f'v_fma_f32 v{q+1}, -v{q}, v{q}, v{q+1}\nv_max_f32 v{q+1}, 0, v{q+1}\nv_add_f32 v{q+1}, s22, v{q+1}\nv_rsq_f32 v{t}, v{q+1}')
        S(f'v_fma_f32 v{q+2}, -v{q}, s58, v{q+2}')
        S(f'v_fma_f32 v{q+5}, -v{q}, s57, v{q+5}')
        S(f'v_mul_f32 v{t+1}, s56, v{q}\nv_fma_f32 v{t+1}, v{q+3}, -2.0, v{t+1}\nv_fma_f32 v{q+4}, v{q}, v{t+1}, v{q+4}')
        S(f'v_mul_f32 v{q+1}, v{q+1}, v{t}')
        S(f'v_fma_f32 v{q+2}, v{t}, v{q+2}, s62')
        S(f'v_mul_f32 v{q+4}, v{q+4}, v{t}\nv_fma_f32 v{q+4}, v{q+5}, 2.0, v{q+4}\nv_fma_f32 v{q+4}, v{q+4}, v{t}, s59')
        S(f'v_fma_f32 v{q+4}, -v{q+2}, v{q+2}, v{q+4}\nv_max_f32 v{q+4}, 0, v{q+4}\nv_add_f32 v{q+4}, s22, v{q+4}\nv_rsq_f32 v{t+1}, v{q+4}')
        S(f'v_sub_f32 v{q}, 0, v{q}')
        S(f'v_mul_f32_e64 v{q+2}, -v{q+2}, v{q+1}')
        S(f'v_mul_f32 v{q+4}, v{q+4}, v{t+1}\nv_mul_f32 v{q+3}, v{q+4}, v{q+1}')
        S(f'v_mul_f32 v{t}, v{t}, v{t+1}')
        c0 = -2*0.7978845608028654*LOG2E
        k_ = SL + 4
        S(f'v_mul_f32 v{k_}, {fl(c0)}, v{t}\nv_mul_f32 v{k_+1}, v{t}, v{t}\nv_mul_f32 v{k_+1}, v{k_+1}, v{k_}\nv_mul_f32 v{k_+1}, {fl(0.044715)}, v{k_+1}\nv_mov_b32 v{k_+2}, v{q+3}\nv_mov_b32 v{k_+3}, 0')
        h_ = SL + 16
        S(f'v_cvt_pk_bf16_f32 v{h_}, v{q}, v{q+1}\nv_cvt_pk_bf16_f32 v{h_+1}, v{q+2}, v{q+3}')
        unpack(S, h_+4, h_); unpack(S, h_+6, h_+1)
        for k in range(4): S(f'v_sub_f32 v{h_+4+k}, v{q+k}, v{h_+4+k}')
        S(f'v_cvt_pk_bf16_f32 v{h_+2}, v{h_+4}, v{h_+5}\nv_cvt_pk_bf16_f32 v{h_+3}, v{h_+6}, v{h_+7}')
        f_ = SL + 24
        S('v_cmp_eq_u32 vcc, 1, v3')
        S(f'v_cndmask_b32 v{f_}, 0, v{h_+2}, vcc\nv_cndmask_b32 v{f_+1}, 0, v{h_+3}, vcc')
        S('v_cmp_eq_u32 vcc, 0, v3')
        S(f'v_cndmask_b32 v{f_}, v{f_}, v{h_}, vcc\nv_cndmask_b32 v{f_+1}, v{f_+1}, v{h_+1}, vcc')
        S(f'v_cndmask_b32 v{f_+2}, 0, v{h_}, vcc\nv_cndmask_b32 v{f_+3}, 0, v{h_+1}, vcc')
        S(f'ds_write_b128 v4, {v(f_,4)} offset:{CFX-61440+1024*T}\nds_write_b128 v4, {v(k_,4)} offset:{CFX-61440+4096+1024*T}')
    def zdma(B, T, lo, n, tag):
        for i in range(n):
            if i % 4 == 0: B(f's_add_u32 m0, s23, {ZB[T] + (lo + i)*1024}\ns_add_u32 s101, s23, s25\ns_add_u32 s101, s101, {T*20480 + (lo + i)*1024}')
            B(f'buffer_load_dwordx4 v1, s[12:15], s101 offen offset:{(i%4)*1024} sc1 lds', tag=tag)
    uhead(0, P.UK)
    ubody(0, P.UK, {}, P.UE0)
    st2()
    w1lim[0] = 80
    def b1load():
        A(f's_lshl_b32 s6, s50, 5\nv_xor_b32 v4, s6, v2\ns_lshl_b32 s6, s3, 7\ns_add_u32 s6, s6, {BIA}\nv_lshl_add_u32 v4, v4, 1, s6\nv_mov_b32 v{B1R}, 0')
        A(f'ds_read_u16_d16_hi v{B1R}, v4')
    g2(0, {P.OO_K: lambda: publish(PH_OO, 'oo'), 'x': lambda: (w1load(A, max(0, 40 - P.EL - w1i[0])), poll_issue(PH_OO)), 'y': lambda: acquire(PH_OO), P.OW: lambda: (w1load(A, max(0, 40 - w1i[0])), oloads())}, P.G2E, P.IVZ, P.G2N)
    st()
    print('w1 before U:', w1i[0], file=sys.stderr)
    uhead(P.UK, 20)
    b1load()
    w1lim[0] = max(40, w1i[0])
    ubody(P.UK, 20, {}, P.UE)
    w1lim[0] = 80
    st()
    if P.ZE_K < 0: publish(PH_ZE, 'z')
    spread4(A, B1R, B1R+1)
    for t in range(2): ufrag(A, t, UA+4*t, B1R+t, 120)
    A(f'v_mov_b32 v{UF+8}, v{B1R+2}\nv_mov_b32 v{UF+12}, v{B1R+3}')
    st()
    def zstart():
        A(f's_mul_i32 s25, s4, {4*20480}\ns_add_u32 s25, s25, {Z_F}\ns_mul_i32 s23, s3, 5120')
        zdma(A, 0, 0, 5, 'z0')
    g2(1, {P.ZE_K: lambda: publish(PH_ZE, 'z'), 'x': lambda: poll_issue(PH_ZE), 'y': lambda: acquire(PH_ZE), 'z': zstart}, P.G2O, P.IVZ2, P.G2N2)
    print('w1 after U:', w1i[0], file=sys.stderr)
    st()
    CF, KC, ACC = 32, 48, 64
    ZRL = [16, 20, 24, 28, 128, 132]
    A('v_add_u32 v4, 61440, v1')
    def zrd(B, T, s_, slot):
        B(f'ds_read_b128 {v(ZRL[slot],4)}, ' + (f'v4 offset:{ZB[T]-61440+s_*1024}' if T < 2 else f'v1 offset:{ZB[T]+s_*1024}'))
    def mm3(B, T, s_, t, slot):
        acc = ACC + (T*4 + t)*4
        B(f'{MF} {v(acc,4)}, {R(wreg(s_,t),4)}, {v(ZRL[slot],4)}, {v(acc,4) if s_ else "0"}')
    NR = 6
    def cfread(B, T): B(f'ds_read_b128 {v(CF+4*T,4)}, v4 offset:{CFX-61440+1024*T}\nds_read_b128 {v(KC+4*T,4)}, v4 offset:{CFX-61440+4096+1024*T}')
    A('s_mul_i32 s26, s3, 14\ns_cmp_eq_u32 s3, 3\ns_cselect_b32 s26, 41, s26')
    A(f's_mul_i32 s95, s5, {54*5120}\ns_add_u32 s95, s95, {W2_F}\ns_mul_i32 s24, s26, 5120\ns_add_u32 s24, s24, s95\ns_add_u32 s24, s24, 15360')
    A(f's_mul_i32 s96, s3, 15360\ns_add_u32 s96, s96, 110592\ns_cmp_eq_u32 s3, 3\ns_cselect_b32 s96, 40960, s96')
    A(f's_mul_i32 s53, s4, {54*4096}\ns_add_u32 s53, s53, {HID}\ns_lshl_b32 s98, s98, 12\ns_add_u32 s98, s98, s53\ns_lshl_b32 s99, s99, 12\ns_add_u32 s99, s99, s53')
    def corr(B, T, es=(0, 1)):
        for t in [2*e + k for e in es for k in range(2)]:
            acc = ACC + (T*4 + t)*4
            B(f'{MF} {v(acc,4)}, {v(UF+4*t,4)}, {v(CF+4*T,4)}, {v(acc,4)}')
    G = 152
    def gelu(B, T, e, pk, tag, G=152):
        b = ACC + (T*4 + 2*e)*4; g_ = G + (T & 1 if T < 2 else e)*8; k = KC + 4*T
        if pk:
            for d in range(4): B(f'v_pk_mul_f32 {pr(g_+2*d)}, {pr(b+2*d)}, {pr(b+2*d)}')
            for d in range(4): B(f'v_pk_fma_f32 {pr(g_+2*d)}, {pr(g_+2*d)}, {pr(k)}, {pr(k)} op_sel:[0,1,0] op_sel_hi:[1,1,0]')
            for d in range(4): B(f'v_pk_mul_f32 {pr(g_+2*d)}, {pr(g_+2*d)}, {pr(b+2*d)}')
        else:
            for d in range(8): B(f'v_mul_f32 v{g_+d}, v{b+d}, v{b+d}')
            for d in range(8): B(f'v_fma_f32 v{g_+d}, v{g_+d}, v{k+1}, v{k}')
            for d in range(8): B(f'v_mul_f32 v{g_+d}, v{g_+d}, v{b+d}')
        for d in range(8): B(f'v_exp_f32 v{g_+d}, v{g_+d}')
        if pk:
            for d in range(4): B(f'v_pk_fma_f32 {pr(g_+2*d)}, {pr(g_+2*d)}, {pr(k+2)}, {pr(k+2)} op_sel_hi:[1,0,0]')
        else:
            for d in range(8): B(f'v_fma_f32 v{g_+d}, v{g_+d}, v{k+2}, v{k+2}')
        for d in range(8): B(f'v_rcp_f32 v{g_+d}, v{g_+d}')
        if pk:
            for d in range(4): B(f'v_pk_mul_f32 {pr(g_+2*d)}, {pr(g_+2*d)}, {pr(b+2*d)}')
        else:
            for d in range(8): B(f'v_mul_f32 v{g_+d}, v{g_+d}, v{b+d}')
        for d in range(4): B(f'v_cvt_pk_bf16_f32 v{b+d}, v{g_+2*d}, v{g_+2*d+1}')
        sto = f'buffer_store_dwordx4 {v(b,4)}, {"v1" if e else "v11"}, s[12:15], s{98+e} offen offset:{1024*T} sc1'
        B(f'OPT s_cmp_eq_u32 s3, 3\n{sto}\nENDOPT' if e and T == 3 else sto, tag=tag)
    def k13(k, t): return f'OPT s_cmp_ge_u32 s3, 2\n{t}\nENDOPT' if k == 13 else t
    w2i = [0]; w2lim = [50]
    def w2load(B, n=1, limit=55):
        for _ in range(n):
            i = w2i[0]
            if i >= min(w2lim[0], limit): return
            w2i[0] += 1
            B(k13(3 + i//5, f'buffer_load_dwordx4 {a(4*i,4)}, v1, s[12:15], s24 offen offset:{(i%4)*1024} sc1'))
            if i % 4 == 3: B('s_add_u32 s24, s24, 4096')
    U1 = 168
    bar = lambda *tags: (A.wait_tag(list(tags)), A('s_waitcnt lgkmcnt(0)\ns_barrier'))
    def stream(gs, fr, lo, hi, sides, ld, extra=0, hook=None):
        for n in range(lo, hi):
            T, s_, e = fr[n]
            if hook: hook(n)
            M = Buf()
            for t in range(2):
                if T >= 0: mm3(M, T, s_, 2*e + t, n % NR)
                else: M(f'{MF} {v(U1+4*t,4)}, {v(ZRL[n % NR],4)}, {R(wreg(s_,2+t),4)}, {v(U1+4*t,4) if s_ else "0"}')
                if t == 0 and n + NR - 1 < len(fr):
                    T2, s2, _ = fr[n + NR - 1]
                    if T2 >= 0: zrd(M, T2, s2, (n + NR - 1) % NR)
                    else: mfread(M, ZRL[(n + NR - 1) % NR], s2)
                if t == 1:
                    if n + 1 < len(fr):
                        T2, s2, e2 = fr[n+1]
                        M(f'NEED {v(ZRL[(n+1) % NR],4)}' + (f', {R(wreg(s2,2),8)}' if T2 < 0 else ''))
                    ld(M, n)
            gs.run(M, sides, extra, True)
    A('s_cmp_eq_u32 s3, 3')
    A.fork('s_cbranch_scc1 HELP')
    svn = st.n
    zdma(A, 1, 0, 5, 'z1')
    w1load(A, P.WZ)
    A.wait_tag('z0'); A('s_barrier')
    st()
    for s_ in range(NR-1): zrd(A, 0, s_, s_)
    gs = GS(A)
    fr = [(T, s_, 0) for T in range(2) for s_ in range(20)] + [(T, s_, 1) for s_ in range(20) for T in (-1, 0, 1)]
    Q = [Buf(), Buf()]
    def hook(n):
        if n == P.Z1: gs.flush(); A.wait_tag(['z1', 'z']); A('s_barrier'); flag(PH_ZO)
        if n == P.CF1: A('s_barrier')
        for T_ in range(2):
            if n == max(P.CF1, 20*T_ + 20):
                cfread(Q[T_], T_); corr(Q[T_], T_, (0,)); gelu(Q[T_], T_, 0, False, 'hA')
        if n == 40: st()
        if fr[n][2] and w1i[0] < min(80, 40 + 2*fr[n][1] + 6): gs.flush(); w1load(A, min(80, 40 + 2*fr[n][1] + 6) - w1i[0])
    def ld(M, n):
        if int((n+1)*P.R1) != int(n*P.R1): w1load(M)
    stream(gs, fr, 0, 100, Q, ld, P.X1, hook)
    assert P.Z1 <= 20 - NR + 1 and P.Z1 < P.CF1 and w1i[0] == 80
    gs.flush()
    print('gelu left:', [len(q.l) for q in Q], file=sys.stderr)
    st()
    A('s_barrier')
    st()
    for s_ in range(2):
        for e in range(2): zrd(A, 2+e, s_, 2*s_+e)
    S = Buf()
    for t in range(2): ufrag(S, 2+t, U1+4*t, UF+8+4*t, 176)
    stage = -1
    for s_ in range(20):
        if stage == -1 and not S.l:
            for T in range(2): corr(Q[T], T, (1,)); gelu(Q[T], T, 1, False, 'hA')
            stage = 0
        if stage == 0 and not any(q.l for q in Q): print('first half done before step', s_, file=sys.stderr); stage = 1
        if s_ == P.HA_PUB:
            gs.drain(*Q); publish(PH_HA, 'hA')
            cfread(S, 2); cfread(S, 3)
        M = Buf()
        n = int(P.R2*(s_+1)) - int(P.R2*s_)
        for e in range(2):
            for t in range(4):
                g_ = 4*e + t
                mm3(M, 2+e, s_, t, (s_ % 3)*2 + e)
                if g_ < 2 and s_ + 2 < 20: zrd(M, 2+g_, s_+2, ((s_+2) % 3)*2 + g_)
                if g_ in [3, 5, 2, 6][:n] and s_ > 0: w2load(M, 1, 4*s_)
                if g_ == 7 and s_ < 19: M(f'NEED {v(ZRL[((s_+1) % 3)*2],4)}, {v(ZRL[((s_+1) % 3)*2+1],4)}')
        gs.run(M, [S] + Q, P.X2, True)
    gs.drain(S)
    corr(A, 2); corr(A, 3)
    st()
    for e in range(2):
        if e == P.HAP: poll_issue(PH_HA)
        X = Buf(); gelu(X, 2, e, True, 'hB')
        timed(A, X, w2load, P.IV2)
    acquire(PH_HA, bar=False)
    nw2 = w2i[0]
    A.other('HELP', 'HELP_END')
    st.n = svn; w2i[0] = 0; w2lim[0] = nw2
    for s_ in range(20): mfread(A, 48+4*s_, s_)
    A(f's_lshl_b32 s63, s4, 14\ns_add_u32 s63, s63, {STB}')
    statload(A, 16, 0)
    zdma(A, 1, 0, 5, 'z1')
    A('s_mov_b32 s23, 0')
    for s_ in range(20): A(f'{MF} {v(GA+4*(s_&1),4)}, {v(48+4*s_,4)}, {v(48+4*s_,4)}, {v(GA+4*(s_&1),4) if s_ > 1 else "0"}')
    A.wait_tag('z0'); A('s_barrier')
    st()
    DL = Buf()
    for w in range(4):
        for i in range(15):
            if i % 4 == 0: DL(f's_mov_b32 m0, {(110592 + 15360*w if w < 3 else 40960) + i*1024}\ns_add_u32 s6, s95, {[0,14,28,41][w]*5120 + i*1024}')
            DL(f'buffer_load_dwordx4 v1, s[12:15], s6 offen offset:{(i%4)*1024} sc1 lds', tag='w2l')
    def dl(B, n=None):
        while DL.l:
            x = DL.l.pop(0); B(*x)
            if x[0].startswith('buffer'): break
        while DL.l and DL.l[0][0].startswith('s_'): B(*DL.l.pop(0))
    X = Buf()
    for r in range(3): X(f'v_add_f32 v{GA+r}, v{GA+r}, v{GA+4+r}\nv_mul_f32 v{GA+r}, s21, v{GA+r}')
    X(f'v_readlane_b32 s56, v{GA}, 0\nv_readlane_b32 s57, v{GA+1}, 0\nv_readlane_b32 s58, v{GA+2}, 0\nv_readlane_b32 s59, v{GA+1}, 1\nv_readlane_b32 s62, v{GA+2}, 1')
    for x in X.l: A(*x)
    for _ in range(P.DL0): dl(A)
    bar('z1', 'z')
    X = Buf(); statsum(X, 16, 96); stats(X, 16, 0); stats(X, 96, 1)
    timed(A, X, dl, P.IVH1)
    bar()
    st()
    g3 = GS(A)
    def one(T, ld, sides=()):
        fr = [(T, s_, 0) for s_ in range(20)]
        for s_ in range(NR-1): zrd(A, T, s_, s_)
        cfread(A, T)
        stream(g3, fr, 0, 20, sides, ld)
        g3.flush(); corr(A, T, (0,))
    for _ in range(P.DL1): dl(A)
    poll_issue(PH_ZO, 8, False)
    for _ in range(P.DL2): dl(A)
    acquire(PH_ZO, 8, False, False)
    k = 60 - sum(1 for x in DL.l if x[0].startswith('buffer'))
    print('staged before the odd tiles:', k, file=sys.stderr)
    rest = DL.l; DL.l = []
    for h in range(2):
        for T in (2, 3): zdma(DL, T, 10*h, 10, 'z2')
    statload(DL, 96, 1)
    if k < 60:
        w, i = k // 15, k % 15
        DL(f's_mov_b32 m0, {(110592 + 15360*w if w < 3 else 40960) + (i//4)*4096}')
    DL.l += rest
    for i in range(nw2):
        if i % 4 == 2: DL(f's_add_u32 s6, s24, {4096*(i//4)}')
        if i % 4 >= 2: DL(f'buffer_load_dwordx4 {a(4*i,4)}, v1, s[12:15], s6 offen offset:{(i%4)*1024} sc1')
    for _ in range(P.ZN): dl(A)
    one(0, dl)
    while any(x[1] == 'z2' for x in DL.l): dl(A)
    X = Buf(); gelu(X, 0, 0, True, 'hA')
    timed(A, X, dl, P.IVH2)
    st()
    A.wait_tag('z2'); A('s_barrier')
    st()
    one(1, lambda M, n: dl(M) if int((n+1)*P.RH) != int(n*P.RH) else None)
    X = Buf(); gelu(X, 1, 0, True, 'hA')
    timed(A, X, dl, P.IVH3)
    while any(x[1] == 'w2l' for x in DL.l): dl(A)
    X = Buf(); statsum(X, 96, 64); stats(X, 96, 2); stats(X, 64, 3)
    timed(A, X, dl, P.IVH3)
    bar('hA', 'w2l')
    while DL.l: dl(A)
    late = [i for i in range(nw2) if i % 4 < 2]
    def own(M, n):
        if late and late[0] < 4*(n//2):
            i = late.pop(0)
            M(f'buffer_load_dwordx4 {a(4*i,4)}, v1, s[12:15], s24 offen offset:{(i%4)*1024} sc1')
            if i % 4 == 1 and i + 2 < nw2: M('s_add_u32 s24, s24, 4096')
    fr = [(T, s_, 0) for s_ in range(20) for T in (2, 3)]
    for n in range(NR-1): zrd(A, fr[n][0], fr[n][1], n)
    cfread(A, 2); cfread(A, 3)
    stream(g3, fr, 0, 40, (), own)
    g3.flush()
    assert not late
    corr(A, 2, (0,)); corr(A, 3, (0,))
    st()
    gelu(A, 2, 0, True, 'hB')
    w2i[0] = nw2
    A.join('HELP_END')
    A('s_barrier')
    w2lim[0] = 55
    RING = [192+4*i for i in range(16)] + [96, 100, 104, 108, 128, 132, 112, 116, 120, 124]
    NH = len(RING)
    KO = list(range(12)) + [13, 12]
    order = [(e, k) for k in KO for e in range(2)] + [(T, k) for T in (2, 3) for k in KO]
    cons = [(e, k) for k in range(14) for e in range(2)] + [(T, k) for T in (2, 3) for k in range(14)]
    hreg = lambda T, k: RING[order.index((T, k)) % NH]
    hi_ = [0]; used = set(); have = {0, 1}; rlim = [22]
    def hnext():
        i = hi_[0]
        if i >= 56 or order[i][0] not in have or (i < NH and i >= rlim[0]) or (i >= NH and order[i-NH] not in used): return None
        return cons.index(order[i])
    def hload(B):
        T, k = order[hi_[0]]; hi_[0] += 1
        so = ['s25', 's25', 's23', 's63'][T]
        B(k13(k, f'buffer_load_dwordx4 {v(hreg(T,k),4)}, v1, s[12:15], {so} offen offset:{1024*T} sc1'))
        if T and k != 12: B(f's_add_u32 {so}, {so}, {8192 if k == 11 else (-4096 if k == 13 else 4096)}')
    def need4(): return min([x for x in (hnext(), 2*(3 + w2i[0]//5) if w2i[0] < 55 else None, 999) if x is not None])
    def l4(B):
        h = hnext(); w = 2*(3 + w2i[0]//5) - P.WPRI if w2i[0] < 55 else None
        if h is not None and (w is None or h <= w): hload(B)
        elif w is not None: w2load(B)
    A(f's_lshl_b32 s25, s26, 12\ns_add_u32 s25, s25, s53\ns_mov_b32 s23, s25\ns_mov_b32 s63, s25')
    for _ in range(P.HA0): l4(A)
    def w2reg(k, t):
        if k >= 3: return 256 + ((k-3)*5 + t)*4
        i = k*5 + t
        return 256 + 220 + i*4 if i < 9 else 136 + (i-9)*4
    GR, BR = 160, 166
    A(f'v_add_u32 v12, s96, v1')
    for i in range(15): A(f'ds_read_b128 {R(w2reg(i//5, i%5),4)}, v12 offset:{1024*i}')
    A('s_lshr_b32 s6, s3, 1\ns_lshl_b32 s101, s6, 6\nv_add_u32 v8, s101, v8')
    A(f'v_add_u32 v13, {BIA}, v8\nv_add_u32 v4, {BIA}, v9')
    A(f'ds_read_b128 {v(BR,4)}, v13 offset:512\nds_read_b64 {v(BR+4,2)}, v4 offset:{512+128}')
    A(f'ds_read_b128 {v(GR,4)}, v13 offset:{VEC-BIA+2624+160}\nds_read_b64 {v(GR+4,2)}, v4 offset:{VEC-BIA+2624+160+128}')
    A('s_lshl_b32 s7, s6, 11\ns_and_b32 s6, s3, 1\ns_mul_i32 s6, s6, 20480\nv_add_u32 v13, s6, v1\nv_add_u32 v0, s7, v13')
    A('s_mul_i32 s6, s3, 5120\nv_add_u32 v12, s6, v1\nv_add_u32 v4, 40960, v12')
    G = 64
    Q = [Buf(), Buf()]
    for e in range(2):
        if P.PB2 == e - 2: publish(PH_HB, 'jn')
        if e < 2 - P.GSH:
            X = Buf(); gelu(X, 3, e, True, 'hC', G)
            timed(A, X, l4, P.IV3, stop_before=P.ST3 if e else 0)
        else: gelu(Q[e], 3, e, False, 'hC', G)
    st()
    print('w2 issued before G4:', w2i[0], 'hid', hi_[0], file=sys.stderr)
    ACC = 16
    def mm4(T, k, t, B=A):
        acc = ACC + (T*5 + t)*4
        B(f'{MF} {v(acc,4)}, {R(w2reg(k,t),4)}, {v(hreg(T,k),4)}, {v(acc,4) if k else "0"}')
    def redw(T, t, B=A): B(f'ds_write_b128 {"v12" if T < 2 else "v4"}, {v(ACC+(T*5+t)*4,4)} offset:{(T%2)*20480 + t*1024}')
    def rrd(B, d, half, u, w): B(f'ds_read_b128 {v(d,4)}, {"v0" if u < 2 else "v13"} offset:{40960*half + 5120*w + (1024*u if u < 2 else 4096)}')
    def outst(B, half, o):
        B(f'buffer_store_dwordx4 {v(o,4)}, v6, s[16:19], s97 offen offset:{1280*half} {P.OUTF}')
        B(f'buffer_store_dwordx2 {v(o+4,2)}, v7, s[16:19], s97 offen offset:{1280*half+128} {P.OUTF}')
    TU = 16
    gs = GS(A); F = Buf(); wq = []; nm = 0
    for n, (T, k) in enumerate(cons):
        if not any(q.l for q in Q): rlim[0] = NH
        if n == P.PB2: gs.flush(); publish(PH_HB, 'jn')
        if n == P.PB3: gs.drain(*Q); publish(PH_HC, 'hC')
        if n == P.PI2: gs.flush(); poll_issue(PH_HB)
        if n == P.AQ2: gs.flush(); acquire(PH_HB); st(); have.add(2)
        if n == P.PI3: gs.flush(); poll_issue(PH_HC)
        if n == P.AQ3: gs.flush(); acquire(PH_HC); have.add(3)
        if n == 28: assert not any(q.l for q in Q)
        if n == 29: wq += [(T_, t) for T_ in range(2) for t in range(5)]
        if n == 43: wq += [(2, t) for t in range(5)]
        if n == P.RED_AT:
            assert not [x for x in wq if x[0] < 2] and n > 29
            if n != P.AQ3: gs.flush(); A('s_waitcnt lgkmcnt(0)\ns_barrier')
            base = [16, 32, 16]
            for u in range(3):
                for w in range(4): rrd(F, base[u]+4*w, 0, u, w)
                for uu in [[], [0], [1, 2]][u]:
                    b = base[uu]
                    for d in range(2):
                        p_ = 2*uu + d; t_ = 172 + 4*(d & 1)
                        for r in range(2): F(f'v_add_f32 v{b+2*d+r}, v{b+2*d+r}, v{b+4+2*d+r}\nv_add_f32 v{b+8+2*d+r}, v{b+8+2*d+r}, v{b+12+2*d+r}')
                        unpack(F, t_, BR+p_)
                        for r in range(2): F(f'v_add_f32 v{b+2*d+r}, v{b+2*d+r}, v{b+8+2*d+r}')
                        for r in range(2): F(f'v_add_f32 v{b+2*d+r}, v{b+2*d+r}, v{t_+r}')
                        unpack(F, t_, GR+p_); unpack(F, t_+2, RX+p_)
                        for r in range(2): F(f'v_fma_f32 v{t_+2+r}, v{b+2*d+r}, v{t_+r}, v{t_+2+r}')
                        F(f'v_cvt_pk_bf16_f32 v{48+p_}, v{t_+2}, v{t_+3}')
            outst(F, 0, 48)
            for d in range(5):
                unpack(F, TU+6*d, RX+6+d); unpack(F, TU+6*d+2, GR+d); unpack(F, TU+6*d+4, BR+d)
        while hi_[0] <= order.index((T, k)) or (T < 2 and w2i[0] < 5*(k - 2)):
            gs.flush(); c_ = hi_[0] + w2i[0]; l4(A); assert hi_[0] + w2i[0] > c_
        if k == 13:
            gs.flush()
            A('OPT s_cmp_ge_u32 s3, 2')
            for t in range(5): mm4(T, k, t)
            A('ENDOPT')
        else:
            M = Buf()
            for t in range(5):
                mm4(T, k, t, M); nm += 1
                if int(nm*P.HR) != int((nm-1)*P.HR) or (t in P.URG and need4() < n + P.LEAD): l4(M)
                elif wq and t in (1, 3): redw(*wq.pop(0), M)
            gs.run(M, Q + [F], 0, True)
        used.add((T, k))
    gs.flush()
    assert hi_[0] == 56 and not wq
    st()
    print('left of the first half:', gs.drain(F), file=sys.stderr)
    unpack(A, 172, RX+11); unpack(A, 174, GR+5); unpack(A, 176, BR+5)
    for t in range(5): redw(3, t)
    A('s_waitcnt lgkmcnt(0)\ns_barrier')
    RD = 192
    for u in range(3):
        for w in range(4): rrd(A, RD+16*u+4*w, 1, u, w)
    OP = 56
    for d in range(6):
        b = RD + 16*(d >> 1) + 2*(d & 1); t_ = TU+6*d if d < 5 else 172
        A(f'v_pk_add_f32 {pr(b)}, {pr(b)}, {pr(b+4)}\nv_pk_add_f32 {pr(b+8)}, {pr(b+8)}, {pr(b+12)}')
        A(f'v_pk_add_f32 {pr(b)}, {pr(b)}, {pr(b+8)}\nv_pk_add_f32 {pr(b)}, {pr(b)}, {pr(t_+4)}')
        A(f'v_pk_fma_f32 {pr(t_)}, {pr(b)}, {pr(t_+2)}, {pr(t_)}')
        A(f'v_cvt_pk_bf16_f32 v{OP+d}, v{t_}, v{t_+1}')
        if d == 3: A(f'buffer_store_dwordx4 {v(OP,4)}, v6, s[16:19], s97 offen offset:1280 {P.OUTF}')
    A(f'buffer_store_dwordx2 {v(OP+4,2)}, v7, s[16:19], s97 offen offset:1408 {P.OUTF}')
    st.flush()
    A.label('KP_END')
    A('s_endpgm')
    return khead(KN) + A.finish() + kd(KN, 512, 256, 102)

P.IV2, P.HA0, P.HB_PUB, P.HB_ISSUE, P.HB_CHECK, P.HR, P.HB0 = 80, 8, 4, 8, 11, 2, 10
for _kv in 'UE=4 G2O=0.2 G2E=0.2 Z1=15 OE_AT=99 XB=1 RB0=1.75 RBS=8 RB=1.75 OE_PUB=13 UE0=99 WZ=0 G2N=44 CF1=44 ZN=20 X2=1 HA_PUB=15 R2=1.75 OO_K=2 UK=11 HR=0.25 HA0=2 RED_AT=36 HAP=1 ST3=0 G2O=0.25 G2N2=38 IVZ2=140 IVZ=80 EST=50 G2E=0.25 R1=0.6 DL0=10 DL1=10 DL2=17 IVH1=60 ZN=26 IVH2=40 RH=0.8 IVH3=80 R2=2.0 HA_PUB=15 IV2=40 RB0=2.0 RB=2.0 IVA=60 IVE=100 UK=7 OO_K=6 CF1=42 LEAD=11 PB2=-1 PB3=5 PI2=10 AQ2=16 PI3=22 AQ3=31 IV3=50 WPRI=10 W0=4 W1=3 IV=45 MP="ssssssWwWwWwWwW" SB_ISSUE=10 SB_CHECK=14 FB_STEP=-1 A1=17 XA0=2 XA=0 XAS=5 RA0=4 RA=3'.split():
    setattr(P, _kv.split('=')[0], eval(_kv.split('=')[1]))
def build():
    hdr = '; persistent fused block: one workgroup per CU, hand-offs through d_ws\n'
    hdr += f'; @launch grid=(256,1,1) block=(256,1,1) lds={LDS_BYTES}\n'
    return hdr + '.amdgcn_target "amdgcn-amd-amdhsa--gfx950"\n' + kp()

if __name__ == '__main__':
    Cfg.STAMP = sys.argv[2] if len(sys.argv) > 2 and sys.argv[2] != '-' else False
    for kv in sys.argv[3:]:
        k_, v_ = kv.split('=', 1); setattr(P, k_, eval(v_))
    open(sys.argv[1], 'w').write(build())
```
